```python
import torch

def _softmax(x, axis=-1):
    return torch.softmax(x, dim=axis)
def _gelu(x):
    return torch.nn.functional.gelu(x, approximate="tanh")
def _silu(x):
    return torch.nn.functional.silu(x)
def _sigmoid(x):
    return torch.sigmoid(x)
def _layernorm(x, axis=-1, eps=1e-5):
    m = x.mean(dim=axis, keepdim=True)
    v = x.var(dim=axis, keepdim=True, unbiased=False)
    return (x - m) / torch.sqrt(v + eps)
def _scatter_add(tgt, idx, src, axis=0):
    return tgt.clone().index_add_(axis, idx, src)
def _segment_sum(src, seg, n):
    out = torch.zeros((n,) + src.shape[1:], dtype=src.dtype)
    return out.index_add_(0, seg, src)
def _pad(x, pw):
    flat = tuple(v for pair in reversed(pw) for v in pair)
    return torch.nn.functional.pad(x, flat)

kernel_name = 'gather_scatter__edge_featured_mpnn_gatedgcn__graph'

def setup_inputs():

    _w = (lambda a: (lambda t: t.to(torch.bfloat16) if t.is_floating_point() else t)(torch.as_tensor(a)))
    N, deg, D, De = 50000, 16, 64, max(0, 1)
    E = N * deg
    return {
        "x": _w((lambda *s: torch.randn(*s, dtype=torch.bfloat16) * 0.4)(N, D)),
        "e_attr": _w((lambda *s: torch.randn(*s, dtype=torch.bfloat16) * 0.8)(E, De)),
        "src": _w((lambda lo, hi, *s: torch.randint(lo, hi, s))(0, N, E).to(torch.int64)),
        "dst": _w((lambda lo, hi, *s: torch.randint(lo, hi, s))(0, N, E).to(torch.int64)),
        "w_a": _w((lambda *s: torch.randn(*s, dtype=torch.bfloat16) * 0.8)(D, D)),
        "w_b": _w((lambda *s: torch.randn(*s, dtype=torch.bfloat16) * 0.4)(D, D)),
        "w_c": _w((lambda *s: torch.randn(*s, dtype=torch.bfloat16) * 0.8)(De, D)),
        "w_u": _w((lambda *s: torch.randn(*s, dtype=torch.bfloat16) * 0.05)(D, D)),
        "w_v": _w((lambda *s: torch.randn(*s, dtype=torch.bfloat16) * 0.05)(D, D)),
    }

def reference(x, e_attr, src, dst, w_a, w_b, w_c, w_u, w_v):
    N, D = x.shape
    hv = x @ w_v
    g = x[dst] @ w_a + x[src] @ w_b + e_attr @ w_c
    eta = _sigmoid(g)
    denom = _segment_sum(eta, dst, N) + 1e-6
    eta_n = eta / denom[dst]
    agg = _segment_sum(eta_n * hv[src], dst, N)
    z = x @ w_u + agg
    relu_z = torch.where(z > 0, z, 0 * z)
    return x + relu_z
```

```python
import sys, struct
NAME = "gather_scatter__edge_featured_mpnn_gatedgcn__graph"
N, E, R, P, CH = 50000, 800000, 196, 250, 3200
NB = 256
WS_ENT, WS_TAB, WS_WF, WS_ACC = 0, 0x680000, 0x6C0000, 0x800000
LCAP = 27
L_LIST, L_WU, L_NODE, L_CNT, L_HIST, L_LG, L_RING = 0, 32768, 40960, 43008, 45056, 45312, 45568
BLK, SLOT = 1040, 4160
RINGW = 3 * SLOT
LDS2 = L_RING + 8 * RINGW
def f32(x): return "0x%08x" % struct.unpack("<I", struct.pack("<f", x))[0]
NLOG2E = -1.4426950408889634

class A:
    def __init__(s): s.l = []
    def __call__(s, t):
        for x in t.strip("\n").split("\n"):
            x = x.strip()
            if x: s.l.append(x if x.endswith(":") else "    " + x)
    def text(s): return "\n".join(s.l) + "\n"

def vr(a, n): return f"v[{a}:{a+n-1}]"

def scan(o, v):
    for sh in (1, 2, 4, 8):
        o(f"s_nop 1\nv_add_u32_dpp v{v}, v{v}, v{v} row_shr:{sh} row_mask:0xf bank_mask:0xf")
    o(f"s_nop 1\nv_add_u32_dpp v{v}, v{v}, v{v} row_bcast:15 row_mask:0xa bank_mask:0xf")
    o(f"s_nop 1\nv_add_u32_dpp v{v}, v{v}, v{v} row_bcast:31 row_mask:0xc bank_mask:0xf")

def k1():
    o = A()
    o(f"""
part_kernel:
    s_cmp_ge_u32 s2, {P}
    s_cbranch_scc1 K1_W
    s_load_dwordx4 s[4:7], s[0:1], 8
    s_load_dwordx2 s[8:9], s[0:1], 24
    s_load_dwordx2 s[10:11], s[0:1], 88
    v_cmp_gt_u32 vcc, 800, v0
    s_mul_i32 s12, s2, {CH*4}
    v_lshlrev_b32 v1, 4, v0
    v_add_u32 v2, s12, v1
    v_lshrrev_b32 v3, 1, v2
    v_lshlrev_b32 v4, 2, v0
    v_mov_b32 v5, 0
    v_mov_b32 v6, 1
    s_and_b64 exec, exec, vcc
    s_mov_b64 s[20:21], exec
    s_waitcnt lgkmcnt(0)
    global_load_dwordx4 v[8:11], v2, s[8:9]
    global_load_dwordx4 v[12:15], v2, s[6:7]
    global_load_dwordx2 v[16:17], v3, s[4:5]
    ds_write_b32 v4, v5
    s_movk_i32 s13, -{R*8}
    s_mov_b32 s14, 0xffff0000
    s_waitcnt lgkmcnt(0)
    s_barrier
    s_waitcnt vmcnt(2)
    """)
    for i in range(4):
        o(f"""
        v_mul_u32_u24 v{20+i}, 0x14e5f, v{8+i}
        v_lshrrev_b32 v{20+i}, 24, v{20+i}
        v_lshlrev_b32 v{24+i}, 2, v{20+i}
        ds_add_rtn_u32 v{28+i}, v{24+i}, v6
        """)
    for i in range(4):
        o(f"""
        v_lshlrev_b32 v{8+i}, 3, v{8+i}
        v_mad_i32_i24 v{33+2*i}, v{20+i}, s13, v{8+i}
        """)
    o(f"""
    s_waitcnt vmcnt(0)
    v_lshl_or_b32 v32, v16, 16, v12
    v_and_or_b32 v34, v16, s14, v13
    v_lshl_or_b32 v36, v17, 16, v14
    v_and_or_b32 v38, v17, s14, v15
    s_mov_b64 exec, -1
    v_and_b32 v7, 63, v0
    v_lshlrev_b32 v7, 4, v7
    s_waitcnt lgkmcnt(0)
    s_barrier
    ds_read_b128 v[40:43], v7
    s_waitcnt lgkmcnt(0)
    v_add_u32 v45, v40, v41
    v_add_u32 v46, v45, v42
    v_add_u32 v48, v46, v43
    v_mov_b32 v49, v48
    """)
    scan(o, 48)
    o(f"""
    v_sub_u32 v44, v48, v49
    v_add_u32 v47, v44, v46
    v_add_u32 v46, v44, v45
    v_add_u32 v45, v44, v40
    ds_write_b128 v7, v[44:47] offset:1024
    s_mov_b64 exec, s[20:21]
    """)
    for i in range(4):
        o(f"ds_read_b32 v{20+i}, v{24+i} offset:1024")
    o(f"""
    v_readfirstlane_b32 s15, v0
    s_cmp_ge_u32 s15, 64
    s_cbranch_scc1 K1_NOTAB
    v_lshl_or_b32 v44, v40, 16, v44
    v_lshl_or_b32 v45, v41, 16, v45
    v_lshl_or_b32 v46, v42, 16, v46
    v_lshl_or_b32 v47, v43, 16, v47
    s_lshl_b32 s16, s2, 10
    s_add_u32 s16, s16, {WS_TAB}
    v_add_u32 v7, s16, v7
    global_store_dwordx4 v7, v[44:47], s[10:11]
K1_NOTAB:
    """)
    for i in range(4):
        o(f"""
        s_waitcnt lgkmcnt({3})
        v_add_lshl_u32 v{20+i}, v{20+i}, v{28+i}, 3
        ds_write_b64 v{20+i}, v[{32+2*i}:{33+2*i}] offset:2048
        """)
    o(f"""
    s_mul_i32 s12, s2, {CH*8}
    v_add_u32 v2, s12, v1
    v_add_u32 v3, {CH*4}, v2
    s_waitcnt lgkmcnt(0)
    s_barrier
    ds_read_b128 v[8:11], v1 offset:2048
    ds_read_b128 v[12:15], v1 offset:{2048+CH*4}
    s_waitcnt lgkmcnt(1)
    global_store_dwordx4 v2, v[8:11], s[10:11]
    s_waitcnt lgkmcnt(0)
    global_store_dwordx4 v3, v[12:15], s[10:11]
    s_endpgm
K1_W:
    s_cmp_ge_u32 s2, {P+5}
    s_cbranch_scc1 K1_END
    s_load_dwordx8 s[4:11], s[0:1], 32
    s_load_dwordx2 s[12:13], s[0:1], 64
    s_load_dwordx2 s[14:15], s[0:1], 88
    s_sub_u32 s3, s2, {P}
    v_bfe_u32 v1, v0, 2, 1
    v_lshlrev_b32 v1, 5, v1
    v_and_b32 v2, 3, v0
    v_add_u32 v1, v1, v2
    v_bfe_u32 v2, v0, 3, 2
    v_lshl_add_u32 v1, v2, 2, v1
    s_cmp_eq_u32 s3, 4
    s_cbranch_scc1 K1_WC
    v_cmp_gt_u32 vcc, 512, v0
    s_and_b64 exec, exec, vcc
    s_cbranch_execz K1_END
    v_bfe_u32 v2, v0, 8, 1
    v_lshl_add_u32 v1, v2, 4, v1
    v_lshlrev_b32 v1, 1, v1
    v_bfe_u32 v2, v0, 5, 1
    v_lshl_add_u32 v1, v2, 12, v1
    v_bfe_u32 v2, v0, 6, 2
    v_lshl_add_u32 v1, v2, 10, v1
    s_waitcnt lgkmcnt(0)
    s_mov_b32 s18, 1.0
    s_cmp_eq_u32 s3, 0
    s_cselect_b32 s16, s6, s12
    s_cselect_b32 s17, s7, s13
    s_cselect_b32 s18, {f32(NLOG2E)}, s18
    s_cmp_eq_u32 s3, 2
    s_cselect_b32 s16, s4, s16
    s_cselect_b32 s17, s5, s17
    s_cmp_eq_u32 s3, 3
    s_cselect_b32 s16, s10, s16
    s_cselect_b32 s17, s11, s17
    """)
    for j in range(8):
        o(f"global_load_ushort v{8+j}, v1, s[16:17] offset:{128*j}")
    o(f"""
    s_lshl_b32 s19, s3, 13
    s_add_u32 s19, s19, {WS_WF}
    v_lshlrev_b32 v2, 4, v0
    v_add_u32 v2, s19, v2
    s_waitcnt vmcnt(0)
    """)
    for j in range(8):
        o(f"v_lshlrev_b32 v{8+j}, 16, v{8+j}\nv_mul_f32 v{8+j}, s18, v{8+j}")
    for j in range(4):
        o(f"v_cvt_pk_bf16_f32 v{16+j}, v{8+2*j}, v{9+2*j}")
    o(f"""
    global_store_dwordx4 v2, v[16:19], s[14:15]
    s_endpgm
K1_WC:
    v_cmp_gt_u32 vcc, 128, v0
    s_and_b64 exec, exec, vcc
    s_cbranch_execz K1_END
    v_bfe_u32 v2, v0, 6, 1
    v_lshl_add_u32 v1, v2, 4, v1
    v_lshlrev_b32 v1, 1, v1
    s_waitcnt lgkmcnt(0)
    global_load_ushort v8, v1, s[8:9]
    v_lshlrev_b32 v2, 2, v0
    v_add_u32 v2, {WS_WF+32768}, v2
    v_and_b32 v3, 32, v0
    v_cmp_eq_u32 vcc, 0, v3
    v_mov_b32 v4, 0
    s_waitcnt vmcnt(0)
    v_lshlrev_b32 v8, 16, v8
    v_mul_f32 v8, {f32(NLOG2E)}, v8
    v_cvt_pk_bf16_f32 v9, v4, v8
    v_sub_f32 v10, v8, v9
    v_cvt_pk_bf16_f32 v10, v4, v10
    v_or_b32 v9, 0x7f7f, v9
    v_cndmask_b32 v9, v10, v9, vcc
    global_store_dword v2, v9, s[14:15]
K1_END:
    s_endpgm
    """)
    return o.text()

VT, XL, XA, CK, D0, LD, LE, EP, WC, X, WB, WV, AP, DEN, NUM = 0, 1, 2, 3, 4, 8, 9, 10, 12, 16, 32, 64, 96, 128, 160
G = (192, 224); V = (208, 240)
ENT, RK, TB, OF, RM, INF, WA = 128, 160, 176, 180, 184, 192, 224
PM = 64

def mf(d, a, b, c):
    cs = "0" if c is None else vr(c, 16)
    return f"v_mfma_f32_32x32x16_bf16 {vr(d,16)}, {vr(a,4)}, {vr(b,4)}, {cs}"
def mfe(t):
    return f"v_mfma_f32_32x32x8_bf16 {vr(G[t],16)}, {vr(WC+2*t,2)}, {vr(EP,2)}, {vr(AP+16*t,16)}"
def mf_list(t):
    l = [mfe(t)]
    for s in range(4):
        l.append(mf(G[t], WB+16*t+4*s, X+4*s, G[t]))
        l.append(mf(V[t], WV+16*t+4*s, X+4*s, None if s == 0 else V[t]))
    return l
def dma(i):
    so = ("s28", "s29", "s30", "0")[i]
    off = f" offset:{BLK*i}" if i else ""
    return f"buffer_load_dwordx4 v{D0+i}, s[4:7], {so} offen{off} lds"
def mads():
    return [f"v_mad_u32_u16 v{D0+i}, v{D0+i}, s31, v{CK}" for i in range(4)]
def xread(s): return f"ds_read_b128 {vr(X+4*s,4)}, v{XA}" + (f" offset:{16*s}" if s else "")
ADV = ["s_add_u32 s42, s42, %d" % SLOT, "s_cmp_eq_u32 s42, s41", "s_cselect_b32 s42, s40, s42"]

def phase(o, t, mfs, slots, fill1, fill2, pk1=(), pk2=()):
    g, v, den, num = G[t], V[t], DEN+16*t, NUM+16*t
    e = [f"v_exp_f32 v{g+i}, v{g+i}" for i in range(16)]
    r = [f"v_rcp_f32 v{g+i}, v{g+i}" for i in range(16)]
    def M(i):
        o(mfs[i])
        for x in slots[i]: o(x)
    k = 0
    for i in range(5):
        M(i)
        n = 3 if i < 4 else 4
        for x in e[k:k+n]: o(x)
        k += n
    for x in fill1: o(x)
    pk1 = list(pk1)
    for i in range(8):
        o(f"v_pk_add_f32 {vr(g+2*i,2)}, {vr(g+2*i,2)}, s[34:35]")
        if pk1: o(pk1.pop(0))
    k = 0
    for i in range(5, 9):
        M(i)
        n = 3 if i < 8 else 7
        for x in r[k:k+n]: o(x)
        k += n
    for x in fill2: o(x)
    pk2 = list(pk2)
    for i in range(8):
        o(f"v_pk_add_f32 {vr(den+2*i,2)}, {vr(den+2*i,2)}, {vr(g+2*i,2)}")
        if pk2: o(pk2.pop(0))
        o(f"v_pk_fma_f32 {vr(num+2*i,2)}, {vr(g+2*i,2)}, {vr(v+2*i,2)}, {vr(num+2*i,2)}")
        if pk2: o(pk2.pop(0))

def k2():
    o = A()
    slots16 = [(q, v, k) for v in range(2) for q in range(4) for k in range(2)]
    def ereg(q, v, k): return ENT + (v*4+q)*4 + 2*k
    def idx(q, v, k): return (v*4+q)*2 + k
    def pm(i): return f"s[{PM+2*i}:{PM+2*i+1}]"
    o(f"""
main_kernel:
    s_cmp_ge_u32 s2, {NB}
    s_cbranch_scc1 K2_END
    s_load_dwordx2 s[56:57], s[0:1], 0
    s_load_dwordx2 s[58:59], s[0:1], 72
    s_load_dwordx2 s[60:61], s[0:1], 88
    v_lshrrev_b32 v1, 6, v0
    s_mov_b32 s45, 0
    s_mov_b32 s46, 0
    v_readfirstlane_b32 s3, v1
    s_mov_b32 s47, 0
    s_mov_b32 s14, {P*1024}
    s_mov_b32 s15, 0x20000
    s_waitcnt lgkmcnt(0)
    s_add_u32 s12, s60, {WS_TAB}
    s_addc_u32 s13, s61, 0
    s_add_u32 s16, s60, {WS_WF}
    s_addc_u32 s17, s61, 0
    s_mov_b32 s18, {32768+1024}
    s_mov_b32 s19, 0x20000
    s_mov_b32 s8, s60
    s_mov_b32 s9, s61
    s_mov_b32 s10, {E*8+64}
    s_mov_b32 s11, 0x20000
    s_sub_u32 s4, s56, {3*BLK}
    s_subb_u32 s5, s57, 0
    s_mov_b32 s6, {N*128+3*BLK}
    s_mov_b32 s7, 0x20000
    s_mov_b32 s20, s58
    s_mov_b32 s21, s59
    s_mov_b32 s22, {N*128}
    s_mov_b32 s23, 0x20000
    s_add_u32 s24, s60, {WS_ACC}
    s_addc_u32 s25, s61, 0
    s_mov_b32 s26, {N*512}
    s_mov_b32 s27, 0x20000
K2_RESTART:
    v_mbcnt_lo_u32_b32 v20, -1, 0
    v_mbcnt_hi_u32_b32 v20, -1, v20
    s_lshl_b32 s48, s3, 6
    v_add_u32 v21, s48, v20
    v_lshrrev_b32 v22, 3, v21
    s_lshl_b32 s49, s2, 2
    v_lshl_add_u32 v{OF}, v22, 10, s49
    """)
    for q in range(1, 4):
        o(f"v_add_u32 v{OF+q}, {q*65536}, v{OF}")
    for q in range(4):
        o(f"buffer_load_dword v{TB+q}, v{OF+q}, s[12:15], 0 offen")
    o(f"""
    v_lshlrev_b32 v24, 4, v21
    s_lshl_b32 s50, s3, 10
    s_add_u32 m0, s50, {L_RING}
    v_add_u32 v25, 8192, v24
    buffer_load_dwordx4 v24, s[16:19], 0 offen lds
    s_add_u32 m0, s50, {L_RING+8192}
    v_add_u32 v26, 16384, v24
    buffer_load_dwordx4 v25, s[16:19], 0 offen lds
    s_add_u32 m0, s50, {L_RING+16384}
    v_add_u32 v27, 24576, v24
    buffer_load_dwordx4 v26, s[16:19], 0 offen lds
    s_add_u32 m0, s50, {L_WU}
    v_lshlrev_b32 v28, 2, v20
    buffer_load_dwordx4 v27, s[16:19], 0 offen lds
    v_add_u32 v29, 32768, v28
    buffer_load_dword v{WC}, v29, s[16:19], 0 offen
    buffer_load_dword v{WC+2}, v29, s[16:19], 0 offen offset:256
    v_mov_b32 v32, 0xffff
    v_mov_b32 v33, 0xffff
    v_mov_b32 v34, 0xffff
    v_mov_b32 v35, 0xffff
    v_mov_b32 v36, 0
    v_mov_b32 v37, 0
    v_lshlrev_b32 v30, 3, v21
    ds_write_b128 v24, v[32:35]
    ds_write_b128 v24, v[32:35] offset:8192
    ds_write_b128 v24, v[32:35] offset:16384
    ds_write_b128 v24, v[32:35] offset:24576
    v_cmp_gt_u32 vcc, {(L_RING-L_CNT)//8}, v21
    s_and_b64 exec, exec, vcc
    ds_write_b64 v30, v[36:37] offset:{L_CNT}
    s_mov_b64 exec, -1
    ; constants
    s_mov_b32 s28, {3*BLK}
    s_mov_b32 s29, {2*BLK}
    s_mov_b32 s30, {BLK}
    s_mov_b32 s31, 128
    s_mov_b32 s32, {N}
    s_mov_b32 s34, 1.0
    s_mov_b32 s35, 1.0
    s_mov_b32 s36, {f32(1e-6)}
    s_mov_b32 s37, {f32(1e-6)}
    s_mov_b32 s38, {f32(NLOG2E)}
    s_mov_b32 s39, {f32(NLOG2E)}
    s_mul_i32 s40, s3, {RINGW}
    s_add_u32 s40, s40, {L_RING}
    s_add_u32 s41, s40, {RINGW}
    s_lshl_b32 s48, s3, 2
    s_lshr_b32 s44, 0x72106453, s48
    s_and_b32 s44, s44, 7
    v_mov_b32 v{WC+1}, 0
    v_mov_b32 v{WC+3}, 0
    v_mov_b32 v{EP+1}, 0
    v_mov_b32 v31, 1
    v_bfe_u32 v{CK}, v20, 4, 1
    v_lshlrev_b32 v{CK}, 2, v{CK}
    v_and_b32 v23, 7, v20
    v_xor_b32 v{CK}, v{CK}, v23
    v_lshlrev_b32 v{CK}, 4, v{CK}
    v_lshlrev_b32 v23, 1, v23
    ; column c = l&31, h = l>>5; r = (c3 c2 c4); i = c&3
    v_bfe_u32 v38, v20, 2, 2
    v_bfe_u32 v39, v20, 4, 1
    v_lshl_or_b32 v38, v38, 1, v39
    v_and_b32 v39, 3, v20
    v_lshl_or_b32 v{LE}, v38, 2, v39
    v_lshlrev_b32 v{LE}, 2, v{LE}
    s_lshl_b32 s48, s44, 12
    v_add_u32 v{LE}, s48, v{LE}
    v_lshrrev_b32 v{LD}, 3, v20
    v_lshl_add_u32 v{LD}, v{LD}, 4, s48
    v_mul_u32_u24 v{XL}, {BLK}, v39
    v_lshl_add_u32 v{XL}, v38, 7, v{XL}
    v_bfe_u32 v39, v38, 1, 1
    v_lshrrev_b32 v38, 5, v20
    v_xor_b32 v39, v39, v38
    v_lshl_add_u32 v{XL}, v39, 6, v{XL}
    v_mul_u32_u24 v40, {CH}, v22
    v_add3_u32 v40, v40, v23, s45
    v_add_u32 v41, s45, v23
    s_waitcnt vmcnt(6)
    """)
    for q in range(4):
        o(f"""
        v_and_b32 v42, 0xffff, v{TB+q}
        v_lshrrev_b32 v{TB+q}, 16, v{TB+q}
        v_add_u32 v42, v42, v40
        v_sub_u32 v{RM+q}, v{TB+q}, v41
        v_lshlrev_b32 v{OF+q}, 3, v42
        """)
        if q: o(f"v_add_u32 v{OF+q}, {q*64*CH*8}, v{OF+q}")
    o(f"""
    s_cmp_lg_u32 s47, 0
    s_cbranch_scc1 K2_KEEPMASK
    """)
    for (q, v, k) in slots16:
        o(f"v_cmp_lt_i32 {pm(idx(q,v,k))}, {16*v+k}, v{RM+q}")
    o("K2_KEEPMASK:")
    for v in range(2):
        for q in range(4):
            i = idx(q, v, 0)
            o(f"s_or_b64 exec, {pm(i)}, {pm(i+1)}")
            o(f"buffer_load_dwordx4 {vr(ereg(q,v,0),4)}, v{OF+q}, s[8:11], 0 offen" + (" offset:128" if v else ""))
    o(f"""
    s_mov_b64 exec, -1
    v_max3_u32 v42, v{TB}, v{TB+1}, v{TB+2}
    v_max_u32 v42, v42, v{TB+3}
    s_add_u32 s48, s45, 32
    v_mov_b32 v43, {L_LG+32}
    v_mov_b32 v44, 64
    v_cmp_lt_u32 vcc, s48, v42
    s_waitcnt lgkmcnt(0)
    s_barrier
    s_and_b64 exec, exec, vcc
    ds_write_b32 v43, v44
    """)
    for n, (q, v, k) in enumerate(slots16):
        if k == 0: o(f"s_waitcnt vmcnt({7 - n//2})")
        o(f"s_mov_b64 exec, {pm(idx(q,v,k))}")
        o(f"ds_add_rtn_u32 v{RK+idx(q,v,k)}, v{ereg(q,v,k)+1}, v31 offset:{L_CNT}")
    o(f"""
    s_mov_b64 exec, -1
    s_mul_i32 s48, s2, {R}
    s_sub_u32 s49, {N}, s48
    s_min_u32 s49, s49, {R}
    v_cmp_gt_u32 s[52:53], s49, v21
    v_add_u32 v45, s48, v21
    v_lshlrev_b32 v46, 4, v20
    v_add_u32 v46, {L_RING}, v46
    s_waitcnt lgkmcnt(0)
    s_barrier
    ds_read_b32 v47, v30 offset:{L_CNT}
    s_waitcnt lgkmcnt(0)
    v_min_u32 v48, 63, v47
    v_sub_u32 v48, 63, v48
    v_lshlrev_b32 v48, 2, v48
    s_mov_b64 exec, s[52:53]
    ds_add_rtn_u32 v49, v48, v31 offset:{L_HIST}
    s_mov_b64 exec, -1
    """)
    for f in range(8):
        o(f"ds_read_b128 {vr(WV+4*f,4)}, v46 offset:{8192+1024*f}")
    o(f"""
    s_waitcnt lgkmcnt(8)
    s_barrier
    ds_read_b32 v50, v28 offset:{L_HIST}
    """)
    for f in range(8):
        o(f"ds_read_b128 {vr(WA+4*f,4)}, v46 offset:{16384+1024*f}")
    o(f"""
    s_waitcnt lgkmcnt(8)
    v_mov_b32 v51, v50
    """)
    scan(o, 50)
    o(f"""
    v_sub_u32 v50, v50, v51
    ds_bpermute_b32 v50, v48, v50
    v_mov_b32 v18, v46
    v_mov_b32 v19, v30
    v_mov_b32 v17, v45
    v_mov_b32 v16, v47
    s_waitcnt lgkmcnt(0)
    v_add_u32 v50, v50, v49
    v_add_u32 v51, 56, v50
    v_lshrrev_b32 v52, 5, v51
    v_and_b32 v53, 31, v51
    v_mov_b32 v54, 128
    v_add_u32 v51, 8, v50
    v_lshrrev_b32 v55, 4, v51
    v_and_b32 v56, 15, v51
    v_cmp_gt_u32 vcc, 40, v50
    v_cmp_gt_u32 s[54:55], 8, v50
    s_nop 0
    v_cndmask_b32 v52, v52, v55, vcc
    v_cndmask_b32 v53, v53, v56, vcc
    v_cndmask_b32 v54, v54, 64, vcc
    v_cndmask_b32 v53, v53, v50, s[54:55]
    v_cndmask_b32 v23, v54, 32, s[54:55]
    v_lshlrev_b32 v53, 2, v53
    v_lshl_add_u32 v22, v52, 12, v53
    v_mul_u32_u24 v24, v16, v23
    v_add_u32 v24, 127, v24
    v_lshrrev_b32 v24, 7, v24
    v_lshlrev_b32 v25, 2, v52
    s_mov_b64 exec, s[52:53]
    ds_write_b64 v19, v[22:23] offset:{L_NODE}
    ds_write_b32 v22, v17
    ds_max_u32 v25, v24 offset:{L_LG}
    s_mov_b64 exec, -1
    """)
    for f in range(8):
        o(f"ds_read_b128 {vr(WB+4*f,4)}, v18 offset:{1024*f}")
    o(f"""
    s_cmp_ge_u32 s44, 3
    s_cselect_b32 s48, 0x70, 0x30
    s_cmp_eq_u32 s44, 0
    s_cselect_b32 s48, 0x10, s48
    s_or_b32 s48, s48, 0xf000
    v_and_b32 v26, s48, v{LD}
    s_waitcnt lgkmcnt(0)
    s_barrier
    ds_read_b128 {vr(D0,4)}, v26
    ds_read_b32 v27, v28 offset:{L_LG}
    """)
    for (q, v, k) in slots16[:12]:
        i = idx(q, v, k)
        o(f"s_mov_b64 exec, {pm(i)}\nds_read_b64 {vr(INF+2*i,2)}, v{ereg(q,v,k)+1} offset:{L_NODE}")
    o(f"""
    s_mov_b64 exec, -1
    s_waitcnt lgkmcnt(12)
    v_cmp_lt_u32 vcc, {LCAP}, v27
    v_readlane_b32 s43, v27, s44
    s_mov_b32 m0, s40
    s_min_u32 s43, s43, {LCAP}
    s_lshl_b32 s48, s43, 7
    v_add_u32 v26, s48, v{LD}
    ds_write_b128 v26, {vr(D0,4)} offset:128
    s_and_b32 s47, vcc_lo, 0xff
    s_and_b32 s33, vcc_lo, 0x1ff
    s_nop 0
    """)
    for x in mads(): o(x)
    for i in range(4): o(dma(i))
    for (q, v, k) in slots16[12:]:
        i = idx(q, v, k)
        o(f"s_mov_b64 exec, {pm(i)}\nds_read_b64 {vr(INF+2*i,2)}, v{ereg(q,v,k)+1} offset:{L_NODE}")
    o(f"""
    s_mov_b64 exec, -1
    s_cmp_lg_u32 s47, 0
    s_waitcnt lgkmcnt(0)
    s_cbranch_scc1 K2_SLOWSCAT
    """)
    for (q, v, k) in slots16:
        i = idx(q, v, k)
        o(f"v_mad_u32_u24 v{INF+2*i}, v{RK+i}, v{INF+2*i+1}, v{INF+2*i}")
    for (q, v, k) in slots16:
        i = idx(q, v, k)
        o(f"s_mov_b64 exec, {pm(i)}\nds_write_b32 v{INF+2*i}, v{ereg(q,v,k)} offset:128")
    o(f"""
K2_SCATDONE:
    s_mov_b64 exec, -1
    s_waitcnt lgkmcnt(0)
    s_barrier
    ds_read_b128 {vr(D0,4)}, v{LD} offset:128
    ds_read_b128 v[20:23], v{LD} offset:256
    ds_read_b128 v[24:27], v{LD} offset:384
    ds_read_b128 v[28:31], v{LD} offset:512
    ds_read_b32 v{VT}, v{LE} offset:128
    s_add_u32 m0, s40, {SLOT}
    s_waitcnt lgkmcnt(4)
    """)
    for x in mads(): o(x)
    for i in range(4): o(dma(i))
    o(f"s_add_u32 m0, s40, {2*SLOT}\ns_waitcnt lgkmcnt(3)")
    for i in range(4): o(f"v_mad_u32_u16 v{D0+i}, v{20+i}, s31, v{CK}")
    for i in range(4): o(dma(i))
    o("s_waitcnt lgkmcnt(0)")
    for i in range(8): o(f"v_mad_u32_u16 v{V[0]+i}, v{24+i}, s31, v{CK}")
    o(f"""
    v_pk_sub_u16 v{EP}, v{VT}, s32 clamp
    v_add_u32 v{XA}, s40, v{XL}
    v_add_u32 v{LD}, {5*128}, v{LD}
    v_add_u32 v{LE}, {2*128}, v{LE}
    s_cmp_lg_u32 s46, 0
    s_cbranch_scc1 K2_LOADACC
    """)
    for i in range(64): o(f"v_mov_b32 v{DEN+i}, 0")
    o(f"""
K2_ACCDONE:
    s_waitcnt vmcnt(8)
    """)
    for s in range(4): o(xread(s))
    o(f"s_mov_b32 m0, s40")
    for i in range(4): o(f"v_mov_b32 v{D0+i}, v{V[0]+i}")
    o("s_waitcnt lgkmcnt(0)")
    for i in range(4): o(dma(i))
    for s in range(4):
        for t in range(2):
            o(mf(AP+16*t, WA+16*t+4*s, X+4*s, None if s == 0 else AP+16*t))
    o(f"""
    v_add_u32 v{XA}, {SLOT}, v{XA}
    s_add_u32 s42, s40, {SLOT}
    s_waitcnt vmcnt(8)
    """)
    for s in range(4): o(xread(s))
    o(f"s_mov_b32 m0, s42")
    for i in range(4): o(f"v_mov_b32 v{D0+i}, v{V[0]+4+i}")
    o("s_waitcnt lgkmcnt(0)")
    for i in range(4): o(dma(i))
    o("s_nop 3")
    for i in range(16): o(f"v_pk_mul_f32 {vr(AP+2*i,2)}, {vr(AP+2*i,2)}, s[38:39]")
    o("s_nop 1")
    for x in mf_list(0): o(x)
    o(f"""
    s_add_u32 s42, s42, {SLOT}
    v_add_u32 v{XA}, {SLOT}, v{XA}
    s_nop 7
    s_sub_u32 s43, s43, 1
    s_cbranch_scc1 K2_LOOPEND
    .p2align 4
K2_LOOP:
    """)
    sl = [[] for _ in range(9)]
    sl[0] = [f"ds_read_b32 v{VT}, v{LE}"]
    sl[1] = ["s_waitcnt vmcnt(8)"]
    sl[2] = [xread(0)]
    sl[3] = [f"ds_read_b128 {vr(D0,4)}, v{LD}"]
    sl[4] = [xread(1)]
    sl[5] = ["s_mov_b32 m0, s42"]
    sl[6] = [xread(2)]
    sl[7] = ["s_waitcnt lgkmcnt(2)"]
    sl[8] = [xread(3)]
    phase(o, 0, mf_list(1), sl,
          [f"v_add_u32 v{LE}, 128, v{LE}", f"v_add_u32 v{LD}, 128, v{LD}"],
          [f"v_pk_sub_u16 v{EP}, v{VT}, s32 clamp"] + mads(),
          pk1=(), pk2=ADV + ["s_waitcnt lgkmcnt(0)"])
    sl = [[] for _ in range(9)]
    for i in range(4): sl[i] = [dma(i)]
    sl[8] = ["s_sub_u32 s43, s43, 1"]
    phase(o, 1, mf_list(0), sl, [f"v_add_u32 v{XA}, s42, v{XL}"], [])
    o(f"""
    s_cbranch_scc0 K2_LOOP
K2_LOOPEND:
    v_mbcnt_lo_u32_b32 v{D0}, -1, 0
    v_mbcnt_hi_u32_b32 v{D0}, -1, v{D0}
    v_lshlrev_b32 v{D0+1}, 4, v{D0}
    v_subrev_u32 v{LE}, 128, v{LE}
    ds_read_b32 v{VT}, v{LE}
    """)
    for f in range(8):
        o(f"ds_read_b128 {vr(WB+4*f,4)}, v{D0+1} offset:{L_WU+1024*f}")
    o(f"""
    s_mov_b32 s48, 0
    s_cmp_ge_u32 s44, 3
    s_cbranch_scc1 K2_NOCOMB
    s_mov_b32 s48, 8
    """)
    for i in range(64): o(f"v_add_f32_dpp v{DEN+i}, v{DEN+i}, v{DEN+i} row_ror:8 row_mask:0xf bank_mask:0xf")
    o(f"""
    s_cmp_lg_u32 s44, 0
    s_cbranch_scc1 K2_NOCOMB
    s_mov_b32 s48, 12
    """)
    for i in range(64): o(f"v_add_f32_dpp v{DEN+i}, v{DEN+i}, v{DEN+i} row_ror:4 row_mask:0xf bank_mask:0xf")
    o(f"""
K2_NOCOMB:
    v_and_b32 v{D0+2}, s48, v{D0}
    v_cmp_eq_u32 vcc, 0, v{D0+2}
    v_mov_b32 v{D0+3}, 0xffff
    v_lshrrev_b32 v{D0}, 5, v{D0}
    s_waitcnt lgkmcnt(0)
    v_cndmask_b32 v{D0+2}, v{D0+3}, v{VT}, vcc
    s_cmp_lg_u32 s33, 0
    s_cbranch_scc1 K2_STOREACC
    v_lshlrev_b32 v{D0}, 6, v{D0}
    v_lshl_add_u32 v{D0}, v{D0+2}, 7, v{D0}
    """)
    for i in range(16): o(f"v_pk_add_f32 {vr(DEN+2*i,2)}, {vr(DEN+2*i,2)}, s[36:37]")
    k = 0
    for s in range(4):
        for t in range(2):
            o(mf(G[t], WB+16*t+4*s, X+4*s, None if s == 0 else G[t]))
            n = 3 if (s, t) != (3, 1) else 11
            for i in range(k, k+n): o(f"v_rcp_f32 v{DEN+i}, v{DEN+i}")
            k += n
    o("s_mov_b32 s49, 0xffff0000\ns_nop 0")
    for t in range(2):
        for i in range(8):
            o(f"v_pk_fma_f32 {vr(G[t]+2*i,2)}, {vr(NUM+16*t+2*i,2)}, {vr(DEN+16*t+2*i,2)}, {vr(G[t]+2*i,2)}")
    for t in range(2):
        for i in range(8):
            o(f"v_lshlrev_b32 v{V[t]+2*i}, 16, v{X+8*t+i}")
            o(f"v_and_b32 v{V[t]+2*i+1}, s49, v{X+8*t+i}")
            o(f"v_max_f32 v{G[t]+2*i}, 0, v{G[t]+2*i}")
            o(f"v_max_f32 v{G[t]+2*i+1}, 0, v{G[t]+2*i+1}")
            o(f"v_pk_add_f32 {vr(G[t]+2*i,2)}, {vr(G[t]+2*i,2)}, {vr(V[t]+2*i,2)}")
            o(f"v_cvt_pk_bf16_f32 v{DEN+8*t+i}, v{G[t]+2*i}, v{G[t]+2*i+1}")
            if i % 4 == 3:
                j = 2*t + i//4
                o(f"buffer_store_dwordx4 {vr(DEN+4*j,4)}, v{D0}, s[20:23], 0 offen" + (f" offset:{16*j}" if j else ""))
    o(f"""
K2_END:
    s_endpgm
K2_SLOWSCAT:
    s_movk_i32 s48, {LCAP*128}
    """)
    for (q, v, k) in slots16:
        i = idx(q, v, k)
        o(f"""
        s_mov_b64 exec, {pm(i)}
        v_mul_u32_u24 v{INF+2*i+1}, v{RK+i}, v{INF+2*i+1}
        v_cmp_gt_u32 vcc, s48, v{INF+2*i+1}
        v_add_u32 v{INF+2*i}, v{INF+2*i}, v{INF+2*i+1}
        s_andn2_b64 {pm(i)}, {pm(i)}, vcc
        s_mov_b64 exec, vcc
        ds_write_b32 v{INF+2*i}, v{ereg(q,v,k)} offset:128
        """)
    o(f"""
    s_branch K2_SCATDONE
K2_LOADACC:
    s_lshl_b32 s48, s43, 7
    s_sub_u32 s48, s48, 128
    v_add_u32 v{G[0]}, s48, v{LE}
    ds_read_b32 v{G[0]}, v{G[0]}
    v_mbcnt_lo_u32_b32 v{G[0]+1}, -1, 0
    v_mbcnt_hi_u32_b32 v{G[0]+1}, -1, v{G[0]+1}
    s_cmp_ge_u32 s44, 3
    s_cselect_b32 s48, 0, 8
    s_cmp_eq_u32 s44, 0
    s_cselect_b32 s48, 12, s48
    v_and_b32 v{G[0]+2}, s48, v{G[0]+1}
    v_cmp_eq_u32 vcc, 0, v{G[0]+2}
    v_mov_b32 v{G[0]+3}, 0xffff
    v_lshrrev_b32 v{G[0]+1}, 5, v{G[0]+1}
    v_lshlrev_b32 v{G[0]+1}, 8, v{G[0]+1}
    s_waitcnt lgkmcnt(0)
    v_cndmask_b32 v{G[0]}, v{G[0]+3}, v{G[0]}, vcc
    v_lshl_add_u32 v{G[0]}, v{G[0]}, 9, v{G[0]+1}
    """)
    for j in range(16):
        o(f"buffer_load_dwordx4 {vr(DEN+4*j,4)}, v{G[0]}, s[24:27], 0 offen offset:{16*j}")
    o(f"""
    s_waitcnt vmcnt(0)
    s_branch K2_ACCDONE
K2_STOREACC:
    v_lshlrev_b32 v{D0}, 8, v{D0}
    v_lshl_add_u32 v{D0}, v{D0+2}, 9, v{D0}
    """)
    for j in range(16):
        o(f"buffer_store_dwordx4 {vr(DEN+4*j,4)}, v{D0}, s[24:27], 0 offen offset:{16*j}")
    o(f"""
    s_mov_b32 s46, 1
    s_cmp_lg_u32 s47, 0
    s_cselect_b32 s48, 0, 32
    s_add_u32 s45, s45, s48
    s_waitcnt vmcnt(0) lgkmcnt(0)
    s_barrier
    s_branch K2_RESTART
    """)
    return o.text()

def desc(name, nv, ns):
    return f"""
.p2align 6
.amdhsa_kernel {name}
  .amdhsa_next_free_vgpr {nv}
  .amdhsa_next_free_sgpr {ns}
  .amdhsa_accum_offset {(nv+3)//4*4}
  .amdhsa_group_segment_fixed_size 0
  .amdhsa_kernarg_size 96
  .amdhsa_user_sgpr_count 2
  .amdhsa_user_sgpr_kernarg_segment_ptr 1
  .amdhsa_system_sgpr_workgroup_id_x 1
  .amdhsa_float_denorm_mode_32 3
.end_amdhsa_kernel
"""

def build():
    hdr = open(f"cdna_kernels/{NAME}.s.ref").read().split("; Override launch geometry")[0]
    s = hdr
    s += f"; @launch kernel=part_kernel grid=({P+5},1,1) block=(832,1,1) lds={2048+CH*8}\n"
    s += f"; @launch kernel=main_kernel grid=({NB},1,1) block=(512,1,1) lds={LDS2}\n"
    s += '.amdgcn_target "amdgcn-amd-amdhsa--gfx950"\n.text\n'
    for nm, body in (("part_kernel", k1()), ("main_kernel", k2())):
        s += f".globl {nm}\n.p2align 8\n.type {nm},@function\n" + body
    s += '.section .rodata,"a"\n' + desc("part_kernel", 52, 24) + desc("main_kernel", 256, 96)
    return s

if __name__ == "__main__":
    out = sys.argv[1] if len(sys.argv) > 1 else f"cdna_kernels/{NAME}.s"
    open(out, "w").write(build())
```

```python
import sys, struct
NAME = "gather_scatter__edge_featured_mpnn_gatedgcn__graph"
N, E, R, P, CH = 50000, 800000, 196, 250, 3200
NB = 256
WS_ENT, WS_TAB, WS_WF, WS_ACC = 0, 0x680000, 0x6C0000, 0x800000
LCAP = 27
L_LIST, L_WU, L_NODE, L_CNT, L_HIST, L_LG, L_RING = 0, 32768, 40960, 43008, 45056, 45312, 45568
BLK, SLOT = 1040, 4160
RINGW = 3 * SLOT
LDS2 = L_RING + 8 * RINGW
def f32(x): return "0x%08x" % struct.unpack("<I", struct.pack("<f", x))[0]
NLOG2E = -1.4426950408889634

DIAG = False
import os
OPT = dict(XMAP=1, PFOWN=1, PFQ="00", PFH=2, PFB=0, PFBH=1)
for kv in os.environ.get("GOPT", "").split(","):
    if kv:
        k_, v_ = kv.split("="); OPT[k_] = v_ if k_ == "PFQ" else int(v_)
ST_REGS = [56, 58, 60, 62, 96, 98, 64, 66, 68, 70, 72, 74]
def stamp(o, i, real=False):
    if DIAG:
        r = ST_REGS[i]
        o(f"s_mem{'real' if real else ''}time s[{r}:{r+1}]")
def dump(o, n, base, extra=()):
    if DIAG:
        o("s_load_dwordx2 s[100:101], s[0:1], 88\ns_waitcnt lgkmcnt(0)\ns_mov_b64 exec, -1")
        for i in range(n): o(f"v_writelane_b32 v1, s{ST_REGS[i]}, {i}")
        for j, x in enumerate(extra): o(f"v_writelane_b32 v1, {x}, {n+j}")
        o(f"""v_mbcnt_lo_u32_b32 v2, -1, 0
        v_mbcnt_hi_u32_b32 v2, -1, v2
        s_lshl_b32 s99, s2, 4
        s_add_u32 s99, s99, s3
        s_lshl_b32 s99, s99, 8
        s_add_u32 s99, s99, {base}
        v_lshl_add_u32 v2, v2, 2, s99
        global_store_dword v2, v1, s[100:101]""")

class A:
    def __init__(s): s.l = []
    def __call__(s, t):
        for x in t.strip("\n").split("\n"):
            x = x.strip()
            if x.startswith("@ST") or x.startswith("@RT"):
                stamp(s, int(x.split()[1]), x.startswith("@RT")); continue
            if x: s.l.append(x if x.endswith(":") else "    " + x)
    def text(s): return "\n".join(s.l) + "\n"

def vr(a, n): return f"v[{a}:{a+n-1}]"

def scan(o, v):
    for sh in (1, 2, 4, 8):
        o(f"s_nop 1\nv_add_u32_dpp v{v}, v{v}, v{v} row_shr:{sh} row_mask:0xf bank_mask:0xf")
    o(f"s_nop 1\nv_add_u32_dpp v{v}, v{v}, v{v} row_bcast:15 row_mask:0xa bank_mask:0xf")
    o(f"s_nop 1\nv_add_u32_dpp v{v}, v{v}, v{v} row_bcast:31 row_mask:0xc bank_mask:0xf")

def k1():
    o = A()
    o(f"""
part_kernel:
    s_cmp_ge_u32 s2, {P}
    s_cbranch_scc1 K1_W
@RT 4
@ST 0
    s_load_dwordx4 s[4:7], s[0:1], 8
    s_load_dwordx2 s[8:9], s[0:1], 24
    s_load_dwordx2 s[10:11], s[0:1], 88
    v_cmp_gt_u32 vcc, 800, v0
    s_mul_i32 s12, s2, {CH*4}
    v_lshlrev_b32 v1, 4, v0
    v_add_u32 v2, s12, v1
    v_lshrrev_b32 v3, 1, v2
    v_lshlrev_b32 v4, 2, v0
    v_mov_b32 v5, 0
    v_mov_b32 v6, 1
    s_and_b64 exec, exec, vcc
    s_mov_b64 s[20:21], exec
    s_waitcnt lgkmcnt(0)
@ST 1
    global_load_dwordx4 v[8:11], v2, s[8:9]
    global_load_dwordx4 v[12:15], v2, s[6:7]
    global_load_dwordx2 v[16:17], v3, s[4:5]
    ds_write_b32 v4, v5
    s_movk_i32 s13, -{R*8}
    s_mov_b32 s14, 0xffff0000
    s_waitcnt lgkmcnt(0)
    s_barrier
    s_waitcnt vmcnt(2)
@ST 2
    """)
    for i in range(4):
        o(f"""
        v_mul_u32_u24 v{20+i}, 0x14e5f, v{8+i}
        v_lshrrev_b32 v{20+i}, 24, v{20+i}
        v_lshlrev_b32 v{24+i}, 2, v{20+i}
        ds_add_rtn_u32 v{28+i}, v{24+i}, v6
        """)
    for i in range(4):
        o(f"""
        v_lshlrev_b32 v{8+i}, 3, v{8+i}
        v_mad_i32_i24 v{33+2*i}, v{20+i}, s13, v{8+i}
        """)
    o(f"""
    s_waitcnt vmcnt(0)
    v_lshl_or_b32 v32, v16, 16, v12
    v_and_or_b32 v34, v16, s14, v13
    v_lshl_or_b32 v36, v17, 16, v14
    v_and_or_b32 v38, v17, s14, v15
    s_mov_b64 exec, -1
    v_and_b32 v7, 63, v0
    v_lshlrev_b32 v7, 4, v7
    s_waitcnt lgkmcnt(0)
    s_barrier
@ST 3
    ds_read_b128 v[40:43], v7
    s_waitcnt lgkmcnt(0)
    v_add_u32 v45, v40, v41
    v_add_u32 v46, v45, v42
    v_add_u32 v48, v46, v43
    v_mov_b32 v49, v48
    """)
    scan(o, 48)
    o(f"""
    v_sub_u32 v44, v48, v49
    v_add_u32 v47, v44, v46
    v_add_u32 v46, v44, v45
    v_add_u32 v45, v44, v40
    ds_write_b128 v7, v[44:47] offset:1024
    s_mov_b64 exec, s[20:21]
    """)
    for i in range(4):
        o(f"ds_read_b32 v{20+i}, v{24+i} offset:1024")
    o(f"""
    v_readfirstlane_b32 s15, v0
    s_cmp_ge_u32 s15, 64
    s_cbranch_scc1 K1_NOTAB
    v_lshl_or_b32 v44, v40, 16, v44
    v_lshl_or_b32 v45, v41, 16, v45
    v_lshl_or_b32 v46, v42, 16, v46
    v_lshl_or_b32 v47, v43, 16, v47
    s_lshl_b32 s16, s2, 10
    s_add_u32 s16, s16, {WS_TAB}
    v_add_u32 v7, s16, v7
    global_store_dwordx4 v7, v[44:47], s[10:11]
K1_NOTAB:
    """)
    for i in range(4):
        o(f"""
        s_waitcnt lgkmcnt({3})
        v_add_lshl_u32 v{20+i}, v{20+i}, v{28+i}, 3
        ds_write_b64 v{20+i}, v[{32+2*i}:{33+2*i}] offset:2048
        """)
    o(f"""
    s_mul_i32 s12, s2, {CH*8}
    v_add_u32 v2, s12, v1
    v_add_u32 v3, {CH*4}, v2
    s_waitcnt lgkmcnt(0)
    s_barrier
@ST 6
    ds_read_b128 v[8:11], v1 offset:2048
    ds_read_b128 v[12:15], v1 offset:{2048+CH*4}
    s_waitcnt lgkmcnt(1)
    global_store_dwordx4 v2, v[8:11], s[10:11]
    s_waitcnt lgkmcnt(0)
    global_store_dwordx4 v3, v[12:15], s[10:11]
    """)
    if DIAG: o("@ST 7\ns_waitcnt vmcnt(0)\n@ST 8\n@RT 5\nv_lshrrev_b32 v1, 6, v0\ns_nop 1\nv_readfirstlane_b32 s3, v1")
    dump(o, 9, 0x4800000)
    o(f"""
    s_endpgm
K1_W:
    s_cmp_ge_u32 s2, {P+5}
    s_cbranch_scc1 K1_END
    s_load_dwordx8 s[4:11], s[0:1], 32
    s_load_dwordx2 s[12:13], s[0:1], 64
    s_load_dwordx2 s[14:15], s[0:1], 88
    s_sub_u32 s3, s2, {P}
    v_bfe_u32 v1, v0, 2, 1
    v_lshlrev_b32 v1, 5, v1
    v_and_b32 v2, 3, v0
    v_add_u32 v1, v1, v2
    v_bfe_u32 v2, v0, 3, 2
    v_lshl_add_u32 v1, v2, 2, v1
    s_cmp_eq_u32 s3, 4
    s_cbranch_scc1 K1_WC
    v_cmp_gt_u32 vcc, 512, v0
    s_and_b64 exec, exec, vcc
    s_cbranch_execz K1_END
    v_bfe_u32 v2, v0, 8, 1
    v_lshl_add_u32 v1, v2, 4, v1
    v_lshlrev_b32 v1, 1, v1
    v_bfe_u32 v2, v0, 5, 1
    v_lshl_add_u32 v1, v2, 12, v1
    v_bfe_u32 v2, v0, 6, 2
    v_lshl_add_u32 v1, v2, 10, v1
    s_waitcnt lgkmcnt(0)
    s_mov_b32 s18, 1.0
    s_cmp_eq_u32 s3, 0
    s_cselect_b32 s16, s6, s12
    s_cselect_b32 s17, s7, s13
    s_cselect_b32 s18, {f32(NLOG2E)}, s18
    s_cmp_eq_u32 s3, 2
    s_cselect_b32 s16, s4, s16
    s_cselect_b32 s17, s5, s17
    s_cmp_eq_u32 s3, 3
    s_cselect_b32 s16, s10, s16
    s_cselect_b32 s17, s11, s17
    """)
    for j in range(8):
        o(f"global_load_ushort v{8+j}, v1, s[16:17] offset:{128*j}")
    o(f"""
    s_lshl_b32 s19, s3, 13
    s_add_u32 s19, s19, {WS_WF}
    v_lshlrev_b32 v2, 4, v0
    v_add_u32 v2, s19, v2
    s_waitcnt vmcnt(0)
    """)
    for j in range(8):
        o(f"v_lshlrev_b32 v{8+j}, 16, v{8+j}\nv_mul_f32 v{8+j}, s18, v{8+j}")
    for j in range(4):
        o(f"v_cvt_pk_bf16_f32 v{16+j}, v{8+2*j}, v{9+2*j}")
    o(f"""
    global_store_dwordx4 v2, v[16:19], s[14:15]
    s_endpgm
K1_WC:
    v_cmp_gt_u32 vcc, 128, v0
    s_and_b64 exec, exec, vcc
    s_cbranch_execz K1_END
    v_bfe_u32 v2, v0, 6, 1
    v_lshl_add_u32 v1, v2, 4, v1
    v_lshlrev_b32 v1, 1, v1
    s_waitcnt lgkmcnt(0)
    global_load_ushort v8, v1, s[8:9]
    v_lshlrev_b32 v2, 2, v0
    v_add_u32 v2, {WS_WF+32768}, v2
    v_and_b32 v3, 32, v0
    v_cmp_eq_u32 vcc, 0, v3
    v_mov_b32 v4, 0
    s_waitcnt vmcnt(0)
    v_lshlrev_b32 v8, 16, v8
    v_mul_f32 v8, {f32(NLOG2E)}, v8
    v_cvt_pk_bf16_f32 v9, v4, v8
    v_sub_f32 v10, v8, v9
    v_cvt_pk_bf16_f32 v10, v4, v10
    v_or_b32 v9, 0x7f7f, v9
    v_cndmask_b32 v9, v10, v9, vcc
    global_store_dword v2, v9, s[14:15]
K1_END:
    s_endpgm
    """)
    return o.text()

VT, XL, XA, CK, D0, LD, LE, EP, WC, X, WB, WV, AP, DEN, NUM = 0, 1, 2, 3, 4, 8, 9, 10, 12, 16, 32, 64, 96, 128, 160
G = (192, 224); V = (208, 240)
ENT, RK, TB, OF, RM, INF, WA = 128, 160, 176, 180, 184, 192, 224
PM = 64

def mf(d, a, b, c):
    cs = "0" if c is None else vr(c, 16)
    return f"v_mfma_f32_32x32x16_bf16 {vr(d,16)}, {vr(a,4)}, {vr(b,4)}, {cs}"
def mfe(t):
    return f"v_mfma_f32_32x32x8_bf16 {vr(G[t],16)}, {vr(WC+2*t,2)}, {vr(EP,2)}, {vr(AP+16*t,16)}"
def mf_list(t):
    l = [mfe(t)]
    for s in range(4):
        l.append(mf(G[t], WB+16*t+4*s, X+4*s, G[t]))
        l.append(mf(V[t], WV+16*t+4*s, X+4*s, None if s == 0 else V[t]))
    return l
def dma(i):
    so = ("s28", "s29", "s30", "0")[i]
    off = f" offset:{BLK*i}" if i else ""
    return f"buffer_load_dwordx4 v{D0+i}, s[4:7], {so} offen{off} lds"
def mads():
    return [f"v_mad_u32_u16 v{D0+i}, v{D0+i}, s31, v{CK}" for i in range(4)]
def xread(s): return f"ds_read_b128 {vr(X+4*s,4)}, v{XA}" + (f" offset:{16*s}" if s else "")
ADV = ["s_add_u32 s42, s42, %d" % SLOT, "s_cmp_eq_u32 s42, s41", "s_cselect_b32 s42, s40, s42"]

def phase(o, t, mfs, slots, fill1, fill2, pk1=(), pk2=()):
    g, v, den, num = G[t], V[t], DEN+16*t, NUM+16*t
    e = [f"v_exp_f32 v{g+i}, v{g+i}" for i in range(16)]
    r = [f"v_rcp_f32 v{g+i}, v{g+i}" for i in range(16)]
    def M(i):
        o(mfs[i])
        for x in slots[i]: o(x)
    k = 0
    for i in range(5):
        M(i)
        n = 3 if i < 4 else 4
        for x in e[k:k+n]: o(x)
        k += n
    for x in fill1: o(x)
    pk1 = list(pk1)
    for i in range(8):
        o(f"v_pk_add_f32 {vr(g+2*i,2)}, {vr(g+2*i,2)}, s[34:35]")
        if pk1: o(pk1.pop(0))
    k = 0
    for i in range(5, 9):
        M(i)
        n = 3 if i < 8 else 7
        for x in r[k:k+n]: o(x)
        k += n
    for x in fill2: o(x)
    pk2 = list(pk2)
    for i in range(8):
        o(f"v_pk_add_f32 {vr(den+2*i,2)}, {vr(den+2*i,2)}, {vr(g+2*i,2)}")
        if pk2: o(pk2.pop(0))
        o(f"v_pk_fma_f32 {vr(num+2*i,2)}, {vr(g+2*i,2)}, {vr(v+2*i,2)}, {vr(num+2*i,2)}")
        if pk2: o(pk2.pop(0))

def k2():
    o = A()
    slots16 = [(q, v, k) for v in range(2) for q in range(4) for k in range(2)]
    def ereg(q, v, k): return ENT + (v*4+q)*4 + 2*k
    def idx(q, v, k): return (v*4+q)*2 + k
    def pm(i): return f"s[{PM+2*i}:{PM+2*i+1}]"
    def tabloads():
        o(f"""
        v_mbcnt_lo_u32_b32 v20, -1, 0
        v_mbcnt_hi_u32_b32 v20, -1, v20
        s_lshl_b32 s48, s3, 6
        v_add_u32 v21, s48, v20
        v_lshrrev_b32 v22, 3, v21
        s_lshl_b32 s49, s2, 2
        v_lshl_add_u32 v{OF}, v22, 10, s49
        """)
        for q in range(1, 4):
            o(f"v_add_u32 v{OF+q}, {q*65536}, v{OF}")
    def tabissue():
        for q in range(4):
            o(f"buffer_load_dword v{TB+q}, v{OF+q}, s[12:15], 0 offen")
    o(f"""
main_kernel:
    s_cmp_ge_u32 s2, {NB}
    s_cbranch_scc1 K2_END
    s_load_dwordx2 s[8:9], s[0:1], 88
    s_load_dwordx2 s[4:5], s[0:1], 0
    s_load_dwordx2 s[20:21], s[0:1], 72
@RT 4
@ST 0
    v_lshrrev_b32 v1, 6, v0
    s_mov_b32 s14, {P*1024}
    s_mov_b32 s15, 0x20000
    v_readfirstlane_b32 s3, v1
    """)
    if OPT["XMAP"]:
        o("""
        s_and_b32 s48, s2, 7
        s_lshr_b32 s2, s2, 3
        s_lshl_b32 s48, s48, 5
        s_or_b32 s2, s2, s48
        """)
    tabloads()
    o(f"""
    s_mov_b32 s18, {32768+1024}
    s_mov_b32 s19, 0x20000
    s_waitcnt lgkmcnt(0)
    s_add_u32 s12, s8, {WS_TAB}
    s_addc_u32 s13, s9, 0
    """)
    tabissue()
    o(f"""
    s_add_u32 s16, s8, {WS_WF}
    s_addc_u32 s17, s9, 0
    s_mov_b32 s45, 0
    s_mov_b32 s46, 0
    s_mov_b32 s47, 0
    s_mov_b32 s10, {E*8+64}
    s_mov_b32 s11, 0x20000
    s_sub_u32 s4, s4, {3*BLK}
    s_subb_u32 s5, s5, 0
    s_mov_b32 s6, {N*128+3*BLK}
    s_mov_b32 s7, 0x20000
    s_mov_b32 s22, {N*128}
    s_mov_b32 s23, 0x20000
    s_add_u32 s24, s8, {WS_ACC}
    s_addc_u32 s25, s9, 0
    s_mov_b32 s26, {N*512}
    s_mov_b32 s27, 0x20000
K2_RESTART:
    """)
    o(f"""
    v_lshlrev_b32 v24, 4, v21
    s_lshl_b32 s50, s3, 10
    s_add_u32 m0, s50, {L_RING}
    v_add_u32 v25, 8192, v24
    buffer_load_dwordx4 v24, s[16:19], 0 offen lds
    s_add_u32 m0, s50, {L_RING+8192}
    v_add_u32 v26, 16384, v24
    buffer_load_dwordx4 v25, s[16:19], 0 offen lds
    s_add_u32 m0, s50, {L_RING+16384}
    v_add_u32 v27, 24576, v24
    buffer_load_dwordx4 v26, s[16:19], 0 offen lds
    s_add_u32 m0, s50, {L_WU}
    v_lshlrev_b32 v28, 2, v20
    buffer_load_dwordx4 v27, s[16:19], 0 offen lds
    v_add_u32 v29, 32768, v28
    buffer_load_dword v{WC}, v29, s[16:19], 0 offen
    buffer_load_dword v{WC+2}, v29, s[16:19], 0 offen offset:256
    v_mov_b32 v96, 0xffff
    v_mov_b32 v97, 0xffff
    v_mov_b32 v98, 0xffff
    v_mov_b32 v99, 0xffff
    v_mov_b32 v100, 0
    v_mov_b32 v101, 0
    v_lshlrev_b32 v30, 3, v21
    ds_write_b128 v24, v[96:99]
    ds_write_b128 v24, v[96:99] offset:8192
    ds_write_b128 v24, v[96:99] offset:16384
    ds_write_b128 v24, v[96:99] offset:24576
    v_cmp_gt_u32 vcc, {(L_RING-L_CNT)//8}, v21
    s_and_b64 exec, exec, vcc
    ds_write_b64 v30, v[100:101] offset:{L_CNT}
    s_mov_b64 exec, -1
    ; constants
    s_mov_b32 s28, {3*BLK}
    s_mov_b32 s29, {2*BLK}
    s_mov_b32 s30, {BLK}
    s_mov_b32 s31, 128
    s_mov_b32 s32, {N}
    s_mov_b32 s34, 1.0
    s_mov_b32 s35, 1.0
    s_mov_b32 s36, {f32(1e-6)}
    s_mov_b32 s37, {f32(1e-6)}
    s_mov_b32 s38, {f32(NLOG2E)}
    s_mov_b32 s39, {f32(NLOG2E)}
    s_mul_i32 s40, s3, {RINGW}
    s_add_u32 s40, s40, {L_RING}
    s_add_u32 s41, s40, {RINGW}
    s_lshl_b32 s48, s3, 2
    s_lshr_b32 s44, 0x72106453, s48
    s_and_b32 s44, s44, 7
    v_mov_b32 v{WC+1}, 0
    v_mov_b32 v{WC+3}, 0
    v_mov_b32 v{EP+1}, 0
    v_mov_b32 v31, 1
    v_bfe_u32 v{CK}, v20, 4, 1
    v_lshlrev_b32 v{CK}, 2, v{CK}
    v_and_b32 v23, 7, v20
    v_xor_b32 v{CK}, v{CK}, v23
    v_lshlrev_b32 v{CK}, 4, v{CK}
    v_lshlrev_b32 v23, 1, v23
    ; column c = l&31, h = l>>5; r = (c3 c2 c4); i = c&3
    v_bfe_u32 v102, v20, 2, 2
    v_bfe_u32 v103, v20, 4, 1
    v_lshl_or_b32 v102, v102, 1, v103
    v_and_b32 v103, 3, v20
    v_lshl_or_b32 v{LE}, v102, 2, v103
    v_lshlrev_b32 v{LE}, 2, v{LE}
    s_lshl_b32 s48, s44, 12
    v_add_u32 v{LE}, s48, v{LE}
    v_lshrrev_b32 v{LD}, 3, v20
    v_lshl_add_u32 v{LD}, v{LD}, 4, s48
    v_mul_u32_u24 v{XL}, {BLK}, v103
    v_lshl_add_u32 v{XL}, v102, 7, v{XL}
    v_bfe_u32 v103, v102, 1, 1
    v_lshrrev_b32 v102, 5, v20
    v_xor_b32 v103, v103, v102
    v_lshl_add_u32 v{XL}, v103, 6, v{XL}
    v_mul_u32_u24 v104, {CH}, v22
    v_add3_u32 v104, v104, v23, s45
    v_add_u32 v105, s45, v23
    s_waitcnt vmcnt(6)
@ST 1
    """)
    for q in range(4):
        o(f"""
        v_and_b32 v106, 0xffff, v{TB+q}
        v_lshrrev_b32 v{TB+q}, 16, v{TB+q}
        v_add_u32 v106, v106, v104
        v_sub_u32 v{RM+q}, v{TB+q}, v105
        v_lshlrev_b32 v{OF+q}, 3, v106
        """)
        if q: o(f"v_add_u32 v{OF+q}, {q*64*CH*8}, v{OF+q}")
    o(f"""
    s_cmp_lg_u32 s47, 0
    s_cbranch_scc1 K2_KEEPMASK
    """)
    for (q, v, k) in slots16:
        o(f"v_cmp_lt_i32 {pm(idx(q,v,k))}, {16*v+k}, v{RM+q}")
    o("K2_KEEPMASK:")
    for v in range(2):
        for q in range(4):
            i = idx(q, v, 0)
            o(f"s_or_b64 exec, {pm(i)}, {pm(i+1)}")
            o(f"buffer_load_dwordx4 {vr(ereg(q,v,0),4)}, v{OF+q}, s[8:11], 0 offen" + (" offset:128" if v else ""))
    extra = 0
    o(f"s_mov_b64 exec, -1")
    if OPT["PFOWN"]:
        o(f"""
        s_mul_i32 s48, s2, {R*128}
        v_cmp_gt_u32 vcc, {2*R}, v21
        v_lshl_add_u32 v121, v21, 6, s48
        s_and_b64 exec, exec, vcc
        buffer_load_dword v122, v121, s[4:7], s28 offen
        s_mov_b64 exec, -1
        """)
        extra += 1
    if OPT["PFB"]:
        nl = OPT["PFB"] * 128
        o(f"""
        s_and_b32 s48, s2, 31
        s_mul_i32 s48, s48, {nl*128}
        v_lshl_add_u32 v121, v21, 7, s48
        """)
        for i in range((nl + 511) // 512):
            if (i + 1) * 512 > nl:
                o(f"v_cmp_gt_u32 vcc, {nl - i*512}, v21\ns_and_b64 exec, exec, vcc")
            if i: o(f"v_add_u32 v121, 0x10000, v121")
            for h in range(OPT["PFBH"]):
                o(f"buffer_load_dword v122, v121, s[4:7], s28 offen" + (" offset:64" if h else ""))
                extra += 1
        o("s_mov_b64 exec, -1")
    o(f"""
    v_max3_u32 v106, v{TB}, v{TB+1}, v{TB+2}
    v_max_u32 v106, v106, v{TB+3}
    s_add_u32 s48, s45, 32
    v_mov_b32 v107, {L_LG+32}
    v_mov_b32 v108, 64
    v_lshlrev_b32 v110, 4, v20
    v_add_u32 v110, {L_RING}, v110
    v_cmp_lt_u32 vcc, s48, v106
    s_waitcnt vmcnt({8+extra}) lgkmcnt(0)
    s_barrier
    s_and_b64 exec, exec, vcc
    ds_write_b32 v107, v108
    s_mov_b64 exec, -1
    """)
    for f in range(8):
        o(f"ds_read_b128 {vr(WA+4*f,4)}, v110 offset:{16384+1024*f}")
    for f in range(8):
        o(f"ds_read_b128 {vr(WB+4*f,4)}, v110 offset:{1024*f}")
    for f in range(8):
        o(f"ds_read_b128 {vr(WV+4*f,4)}, v110 offset:{8192+1024*f}")
    pfq = [(int(OPT["PFQ"][i]), int(OPT["PFQ"][i+1])) for i in range(0, len(OPT["PFQ"]) - 1, 2)]
    for n, (q, v, k) in enumerate(slots16):
        if k == 0: o(f"s_waitcnt vmcnt({7 - n//2 + extra})")
        o(f"s_mov_b64 exec, {pm(idx(q,v,k))}")
        o(f"ds_add_rtn_u32 v{RK+idx(q,v,k)}, v{ereg(q,v,k)+1}, v31 offset:{L_CNT}")
        if (q, v) in pfq:
            o(f"v_mad_u32_u16 v{123+k}, v{ereg(q,v,k)}, s31, 0")
            for h in range(OPT["PFH"]):
                o(f"buffer_load_dword v122, v{123+k}, s[4:7], s28 offen" + (" offset:64" if h else ""))
                extra += 1
    o(f"""
    s_mov_b64 exec, -1
    s_mul_i32 s48, s2, {R}
    s_sub_u32 s49, {N}, s48
    s_min_u32 s49, s49, {R}
    v_cmp_gt_u32 s[52:53], s49, v21
    v_add_u32 v109, s48, v21
    s_waitcnt lgkmcnt(0)
    s_barrier
@ST 2
    ds_read_b32 v111, v30 offset:{L_CNT}
    s_waitcnt lgkmcnt(0)
    v_min_u32 v112, 63, v111
    v_sub_u32 v112, 63, v112
    v_lshlrev_b32 v112, 2, v112
    s_mov_b64 exec, s[52:53]
    ds_add_rtn_u32 v113, v112, v31 offset:{L_HIST}
    s_mov_b64 exec, -1
    """)
    o(f"""
    s_waitcnt lgkmcnt(0)
    s_barrier
    ds_read_b32 v114, v28 offset:{L_HIST}
    s_waitcnt lgkmcnt(0)
    v_mov_b32 v115, v114
    """)
    scan(o, 114)
    o(f"""
    v_sub_u32 v114, v114, v115
    ds_bpermute_b32 v114, v112, v114
    s_waitcnt lgkmcnt(0)
    v_add_u32 v114, v114, v113
    v_add_u32 v115, 56, v114
    v_lshrrev_b32 v116, 5, v115
    v_and_b32 v117, 31, v115
    v_mov_b32 v118, 128
    v_add_u32 v115, 8, v114
    v_lshrrev_b32 v119, 4, v115
    v_and_b32 v120, 15, v115
    v_cmp_gt_u32 vcc, 40, v114
    v_cmp_gt_u32 s[54:55], 8, v114
    s_nop 0
    v_cndmask_b32 v116, v116, v119, vcc
    v_cndmask_b32 v117, v117, v120, vcc
    v_cndmask_b32 v118, v118, 64, vcc
    v_cndmask_b32 v117, v117, v114, s[54:55]
    v_cndmask_b32 v23, v118, 32, s[54:55]
    v_lshlrev_b32 v117, 2, v117
    v_lshl_add_u32 v22, v116, 12, v117
    v_mul_u32_u24 v24, v111, v23
    v_add_u32 v24, 127, v24
    v_lshrrev_b32 v24, 7, v24
    v_lshlrev_b32 v25, 2, v116
    s_mov_b64 exec, s[52:53]
    ds_write_b64 v30, v[22:23] offset:{L_NODE}
    ds_write_b32 v22, v109
    ds_max_u32 v25, v24 offset:{L_LG}
    s_mov_b64 exec, -1
    """)
    o(f"""
    s_cmp_ge_u32 s44, 3
    s_cselect_b32 s48, 0x70, 0x30
    s_cmp_eq_u32 s44, 0
    s_cselect_b32 s48, 0x10, s48
    s_or_b32 s48, s48, 0xf000
    v_and_b32 v26, s48, v{LD}
    s_waitcnt lgkmcnt(0)
    s_barrier
@ST 3
    ds_read_b128 {vr(D0,4)}, v26
    ds_read_b32 v27, v28 offset:{L_LG}
    """)
    for (q, v, k) in slots16[:12]:
        i = idx(q, v, k)
        o(f"s_mov_b64 exec, {pm(i)}\nds_read_b64 {vr(INF+2*i,2)}, v{ereg(q,v,k)+1} offset:{L_NODE}")
    o(f"""
    s_mov_b64 exec, -1
    s_waitcnt lgkmcnt(12)
    v_cmp_lt_u32 vcc, {LCAP}, v27
    v_readlane_b32 s43, v27, s44
    s_mov_b32 m0, s40
    s_min_u32 s43, s43, {LCAP}
    s_lshl_b32 s48, s43, 7
    v_add_u32 v26, s48, v{LD}
    ds_write_b128 v26, {vr(D0,4)} offset:128
    s_and_b32 s47, vcc_lo, 0xff
    s_and_b32 s33, vcc_lo, 0x1ff
    s_nop 0
    """)
    for x in mads(): o(x)
    for i in range(4): o(dma(i))
    for (q, v, k) in slots16[12:]:
        i = idx(q, v, k)
        o(f"s_mov_b64 exec, {pm(i)}\nds_read_b64 {vr(INF+2*i,2)}, v{ereg(q,v,k)+1} offset:{L_NODE}")
    o(f"""
    s_mov_b64 exec, -1
    s_cmp_lg_u32 s47, 0
    s_waitcnt lgkmcnt(0)
    s_cbranch_scc1 K2_SLOWSCAT
    """)
    for (q, v, k) in slots16:
        i = idx(q, v, k)
        o(f"v_mad_u32_u24 v{INF+2*i}, v{RK+i}, v{INF+2*i+1}, v{INF+2*i}")
    for (q, v, k) in slots16:
        i = idx(q, v, k)
        o(f"s_mov_b64 exec, {pm(i)}\nds_write_b32 v{INF+2*i}, v{ereg(q,v,k)} offset:128")
    o(f"""
K2_SCATDONE:
    s_mov_b64 exec, -1
    s_waitcnt lgkmcnt(0)
    s_barrier
@ST 6
    {'s_mov_b32 s76, s43' if DIAG else ''}
    ds_read_b128 {vr(D0,4)}, v{LD} offset:128
    ds_read_b128 v[20:23], v{LD} offset:256
    ds_read_b128 v[24:27], v{LD} offset:384
    ds_read_b128 v[28:31], v{LD} offset:512
    ds_read_b32 v{VT}, v{LE} offset:128
    s_add_u32 m0, s40, {SLOT}
    s_waitcnt lgkmcnt(4)
    """)
    for x in mads(): o(x)
    for i in range(4): o(dma(i))
    o(f"s_add_u32 m0, s40, {2*SLOT}\ns_waitcnt lgkmcnt(3)")
    for i in range(4): o(f"v_mad_u32_u16 v{D0+i}, v{20+i}, s31, v{CK}")
    for i in range(4): o(dma(i))
    o("s_waitcnt lgkmcnt(0)")
    for i in range(8): o(f"v_mad_u32_u16 v{V[0]+i}, v{24+i}, s31, v{CK}")
    o(f"""
    v_pk_sub_u16 v{EP}, v{VT}, s32 clamp
    v_add_u32 v{XA}, s40, v{XL}
    v_add_u32 v{LD}, {5*128}, v{LD}
    v_add_u32 v{LE}, {2*128}, v{LE}
    s_cmp_lg_u32 s46, 0
    s_cbranch_scc1 K2_LOADACC
    """)
    for i in range(64): o(f"v_mov_b32 v{DEN+i}, 0")
    o(f"""
K2_ACCDONE:
    s_waitcnt vmcnt(8)
@ST 7
    """)
    for s in range(4): o(xread(s))
    o(f"s_mov_b32 m0, s40")
    for i in range(4): o(f"v_mov_b32 v{D0+i}, v{V[0]+i}")
    o("s_waitcnt lgkmcnt(0)")
    for i in range(4): o(dma(i))
    for s in range(4):
        for t in range(2):
            o(mf(AP+16*t, WA+16*t+4*s, X+4*s, None if s == 0 else AP+16*t))
    o(f"""
    v_add_u32 v{XA}, {SLOT}, v{XA}
    s_add_u32 s42, s40, {SLOT}
    s_waitcnt vmcnt(8)
    """)
    for s in range(4): o(xread(s))
    o(f"s_mov_b32 m0, s42")
    for i in range(4): o(f"v_mov_b32 v{D0+i}, v{V[0]+4+i}")
    o("s_waitcnt lgkmcnt(0)")
    for i in range(4): o(dma(i))
    o("s_nop 3")
    for i in range(16): o(f"v_pk_mul_f32 {vr(AP+2*i,2)}, {vr(AP+2*i,2)}, s[38:39]")
    o("s_nop 1")
    for x in mf_list(0): o(x)
    o(f"""
    s_add_u32 s42, s42, {SLOT}
    v_add_u32 v{XA}, {SLOT}, v{XA}
    s_nop 7
@ST 8
    s_sub_u32 s43, s43, 1
    s_cbranch_scc1 K2_LOOPEND
    .p2align 4
K2_LOOP:
    """)
    sl = [[] for _ in range(9)]
    sl[0] = [f"ds_read_b32 v{VT}, v{LE}"]
    sl[1] = ["s_waitcnt vmcnt(8)"]
    sl[2] = [xread(0)]
    sl[3] = [f"ds_read_b128 {vr(D0,4)}, v{LD}"]
    sl[4] = [xread(1)]
    sl[5] = ["s_mov_b32 m0, s42"]
    sl[6] = [xread(2)]
    sl[7] = ["s_waitcnt lgkmcnt(2)"]
    sl[8] = [xread(3)]
    phase(o, 0, mf_list(1), sl,
          [f"v_add_u32 v{LE}, 128, v{LE}", f"v_add_u32 v{LD}, 128, v{LD}"],
          [f"v_pk_sub_u16 v{EP}, v{VT}, s32 clamp"] + mads(),
          pk1=(), pk2=ADV + ["s_waitcnt lgkmcnt(0)"])
    sl = [[] for _ in range(9)]
    for i in range(4): sl[i] = [dma(i)]
    sl[8] = ["s_sub_u32 s43, s43, 1"]
    phase(o, 1, mf_list(0), sl, [f"v_add_u32 v{XA}, s42, v{XL}"], [])
    o(f"""
    s_cbranch_scc0 K2_LOOP
K2_LOOPEND:
@ST 9
    v_mbcnt_lo_u32_b32 v{D0}, -1, 0
    v_mbcnt_hi_u32_b32 v{D0}, -1, v{D0}
    v_lshlrev_b32 v{D0+1}, 4, v{D0}
    v_subrev_u32 v{LE}, 128, v{LE}
    ds_read_b32 v{VT}, v{LE}
    """)
    for f in range(8):
        o(f"ds_read_b128 {vr(WB+4*f,4)}, v{D0+1} offset:{L_WU+1024*f}")
    o(f"""
    s_mov_b32 s48, 0
    s_cmp_ge_u32 s44, 3
    s_cbranch_scc1 K2_NOCOMB
    s_mov_b32 s48, 8
    """)
    for i in range(64): o(f"v_add_f32_dpp v{DEN+i}, v{DEN+i}, v{DEN+i} row_ror:8 row_mask:0xf bank_mask:0xf")
    o(f"""
    s_cmp_lg_u32 s44, 0
    s_cbranch_scc1 K2_NOCOMB
    s_mov_b32 s48, 12
    """)
    for i in range(64): o(f"v_add_f32_dpp v{DEN+i}, v{DEN+i}, v{DEN+i} row_ror:4 row_mask:0xf bank_mask:0xf")
    o(f"""
K2_NOCOMB:
    v_and_b32 v{D0+2}, s48, v{D0}
    v_cmp_eq_u32 vcc, 0, v{D0+2}
    v_mov_b32 v{D0+3}, 0xffff
    v_lshrrev_b32 v{D0}, 5, v{D0}
    s_waitcnt lgkmcnt(0)
    v_cndmask_b32 v{D0+2}, v{D0+3}, v{VT}, vcc
    s_cmp_lg_u32 s33, 0
    s_cbranch_scc1 K2_STOREACC
    v_lshlrev_b32 v{D0}, 6, v{D0}
    v_lshl_add_u32 v{D0}, v{D0+2}, 7, v{D0}
    """)
    for i in range(16): o(f"v_pk_add_f32 {vr(DEN+2*i,2)}, {vr(DEN+2*i,2)}, s[36:37]")
    k = 0
    for s in range(4):
        for t in range(2):
            o(mf(G[t], WB+16*t+4*s, X+4*s, None if s == 0 else G[t]))
            n = 3 if (s, t) != (3, 1) else 11
            for i in range(k, k+n): o(f"v_rcp_f32 v{DEN+i}, v{DEN+i}")
            k += n
    o("s_mov_b32 s49, 0xffff0000\ns_nop 0")
    for t in range(2):
        for i in range(8):
            o(f"v_pk_fma_f32 {vr(G[t]+2*i,2)}, {vr(NUM+16*t+2*i,2)}, {vr(DEN+16*t+2*i,2)}, {vr(G[t]+2*i,2)}")
    for t in range(2):
        for i in range(8):
            o(f"v_lshlrev_b32 v{V[t]+2*i}, 16, v{X+8*t+i}")
            o(f"v_and_b32 v{V[t]+2*i+1}, s49, v{X+8*t+i}")
            o(f"v_max_f32 v{G[t]+2*i}, 0, v{G[t]+2*i}")
            o(f"v_max_f32 v{G[t]+2*i+1}, 0, v{G[t]+2*i+1}")
            o(f"v_pk_add_f32 {vr(G[t]+2*i,2)}, {vr(G[t]+2*i,2)}, {vr(V[t]+2*i,2)}")
            o(f"v_cvt_pk_bf16_f32 v{DEN+8*t+i}, v{G[t]+2*i}, v{G[t]+2*i+1}")
            if i % 4 == 3:
                j = 2*t + i//4
                o(f"buffer_store_dwordx4 {vr(DEN+4*j,4)}, v{D0}, s[20:23], 0 offen" + (f" offset:{16*j}" if j else ""))
    o("@ST 10\n@RT 5")
    if DIAG: o("s_waitcnt vmcnt(0)\n@ST 11\ns_getreg_b32 s77, hwreg(HW_REG_HW_ID)\ns_getreg_b32 s78, hwreg(HW_REG_XCC_ID)")
    dump(o, 12, 0x4000000, ("s76", "s77", "s78", "s44"))
    o(f"""
K2_END:
    s_endpgm
K2_SLOWSCAT:
    s_movk_i32 s48, {LCAP*128}
    """)
    for (q, v, k) in slots16:
        i = idx(q, v, k)
        o(f"""
        s_mov_b64 exec, {pm(i)}
        v_mul_u32_u24 v{INF+2*i+1}, v{RK+i}, v{INF+2*i+1}
        v_cmp_gt_u32 vcc, s48, v{INF+2*i+1}
        v_add_u32 v{INF+2*i}, v{INF+2*i}, v{INF+2*i+1}
        s_andn2_b64 {pm(i)}, {pm(i)}, vcc
        s_mov_b64 exec, vcc
        ds_write_b32 v{INF+2*i}, v{ereg(q,v,k)} offset:128
        """)
    o(f"""
    s_branch K2_SCATDONE
K2_LOADACC:
    s_lshl_b32 s48, s43, 7
    s_sub_u32 s48, s48, 128
    v_add_u32 v{G[0]}, s48, v{LE}
    ds_read_b32 v{G[0]}, v{G[0]}
    v_mbcnt_lo_u32_b32 v{G[0]+1}, -1, 0
    v_mbcnt_hi_u32_b32 v{G[0]+1}, -1, v{G[0]+1}
    s_cmp_ge_u32 s44, 3
    s_cselect_b32 s48, 0, 8
    s_cmp_eq_u32 s44, 0
    s_cselect_b32 s48, 12, s48
    v_and_b32 v{G[0]+2}, s48, v{G[0]+1}
    v_cmp_eq_u32 vcc, 0, v{G[0]+2}
    v_mov_b32 v{G[0]+3}, 0xffff
    v_lshrrev_b32 v{G[0]+1}, 5, v{G[0]+1}
    v_lshlrev_b32 v{G[0]+1}, 8, v{G[0]+1}
    s_waitcnt lgkmcnt(0)
    v_cndmask_b32 v{G[0]}, v{G[0]+3}, v{G[0]}, vcc
    v_lshl_add_u32 v{G[0]}, v{G[0]}, 9, v{G[0]+1}
    """)
    for j in range(16):
        o(f"buffer_load_dwordx4 {vr(DEN+4*j,4)}, v{G[0]}, s[24:27], 0 offen offset:{16*j}")
    o(f"""
    s_waitcnt vmcnt(0)
    s_branch K2_ACCDONE
K2_STOREACC:
    v_lshlrev_b32 v{D0}, 8, v{D0}
    v_lshl_add_u32 v{D0}, v{D0+2}, 9, v{D0}
    """)
    for j in range(16):
        o(f"buffer_store_dwordx4 {vr(DEN+4*j,4)}, v{D0}, s[24:27], 0 offen offset:{16*j}")
    o(f"""
    s_mov_b32 s46, 1
    s_cmp_lg_u32 s47, 0
    s_cselect_b32 s48, 0, 32
    s_add_u32 s45, s45, s48
    s_waitcnt vmcnt(0) lgkmcnt(0)
    s_barrier
    """)
    tabloads()
    tabissue()
    o("s_branch K2_RESTART")
    return o.text()

def desc(name, nv, ns):
    return f"""
.p2align 6
.amdhsa_kernel {name}
  .amdhsa_next_free_vgpr {nv}
  .amdhsa_next_free_sgpr {ns}
  .amdhsa_accum_offset {(nv+3)//4*4}
  .amdhsa_group_segment_fixed_size 0
  .amdhsa_kernarg_size 96
  .amdhsa_user_sgpr_count 2
  .amdhsa_user_sgpr_kernarg_segment_ptr 1
  .amdhsa_system_sgpr_workgroup_id_x 1
  .amdhsa_float_denorm_mode_32 3
.end_amdhsa_kernel
"""

def build():
    hdr = open(f"cdna_kernels/{NAME}.s.ref").read().split("; Override launch geometry")[0]
    s = hdr
    s += f"; @launch kernel=part_kernel grid=({P+5},1,1) block=(832,1,1) lds={2048+CH*8}\n"
    s += f"; @launch kernel=main_kernel grid=({NB},1,1) block=(512,1,1) lds={LDS2}\n"
    s += '.amdgcn_target "amdgcn-amd-amdhsa--gfx950"\n.text\n'
    for nm, body in (("part_kernel", k1()), ("main_kernel", k2())):
        s += f".globl {nm}\n.p2align 8\n.type {nm},@function\n" + body
    s += '.section .rodata,"a"\n' + desc("part_kernel", 52, 102 if DIAG else 24) + desc("main_kernel", 256, 102 if DIAG else 96)
    return s

if __name__ == "__main__":
    if "--diag" in sys.argv:
        sys.argv.remove("--diag"); DIAG = True
    out = sys.argv[1] if len(sys.argv) > 1 else f"cdna_kernels/{NAME}.s"
    open(out, "w").write(build())
```

```python
import sys, struct
NAME = "gather_scatter__edge_featured_mpnn_gatedgcn__graph"
N, E, R, P, CH = 50000, 800000, 196, 250, 3200
NB = 256
WS_WF, WS_OVF, WS_ACC = 0x800000, 0x840000, 0x1000000
OVS = 25728
K1_HIST = 40960
LDS1 = K1_HIST + 832*4
LCAP = 27
L_LIST, L_WU, L_NODE, L_CNT, L_HIST, L_LG, L_RING = 0, 32768, 40960, 43008, 45056, 45312, 45568
BLK, SLOT = 1040, 4160
RINGW = 3 * SLOT
L_WB = L_RING + 8 * RINGW
L_OWN = L_RING
LDS2 = L_WB + 16384
def f32(x): return "0x%08x" % struct.unpack("<I", struct.pack("<f", x))[0]
NLOG2E = -1.4426950408889634

DIAG = False
import os
OPT = dict(XMAP=1, K1PF=0, K1SC="", OUTSC="", YD=0)
for kv in os.environ.get("GOPT", "").split(","):
    if kv:
        k_, v_ = kv.split("="); OPT[k_] = v_.replace("_", " ") if k_.endswith("SC") else int(v_)
ST_REGS = [56, 58, 60, 62, 96, 98, 64, 66, 68, 70, 72, 74]
def stamp(o, i, real=False):
    if DIAG:
        r = ST_REGS[i]
        o(f"s_mem{'real' if real else ''}time s[{r}:{r+1}]")
def dump(o, n, base, extra=()):
    if DIAG:
        o("s_load_dwordx2 s[100:101], s[0:1], 88\ns_waitcnt lgkmcnt(0)\ns_mov_b64 exec, -1")
        for i in range(n): o(f"v_writelane_b32 v1, s{ST_REGS[i]}, {i}")
        for j, x in enumerate(extra): o(f"v_writelane_b32 v1, {x}, {n+j}")
        o(f"""v_mbcnt_lo_u32_b32 v2, -1, 0
        v_mbcnt_hi_u32_b32 v2, -1, v2
        s_lshl_b32 s99, s2, 4
        s_add_u32 s99, s99, s3
        s_lshl_b32 s99, s99, 8
        s_add_u32 s99, s99, {base}
        v_lshl_add_u32 v2, v2, 2, s99
        global_store_dword v2, v1, s[100:101]""")

class A:
    def __init__(s): s.l = []
    def __call__(s, t):
        for x in t.strip("\n").split("\n"):
            x = x.strip()
            if x.startswith("@ST") or x.startswith("@RT"):
                stamp(s, int(x.split()[1]), x.startswith("@RT")); continue
            if x: s.l.append(x if x.endswith(":") else "    " + x)
    def text(s): return "\n".join(s.l) + "\n"

def vr(a, n): return f"v[{a}:{a+n-1}]"

def scan(o, v):
    for sh in (1, 2, 4, 8):
        o(f"s_nop 1\nv_add_u32_dpp v{v}, v{v}, v{v} row_shr:{sh} row_mask:0xf bank_mask:0xf")
    o(f"s_nop 1\nv_add_u32_dpp v{v}, v{v}, v{v} row_bcast:15 row_mask:0xa bank_mask:0xf")
    o(f"s_nop 1\nv_add_u32_dpp v{v}, v{v}, v{v} row_bcast:31 row_mask:0xc bank_mask:0xf")

def k1():
    o = A()
    o(f"""
part_kernel:
    s_cmp_ge_u32 s2, {P}
    s_cbranch_scc1 K1_W
@RT 4
@ST 0
    s_load_dwordx2 s[8:9], s[0:1], 24
    s_load_dwordx4 s[4:7], s[0:1], 8
    s_load_dwordx2 s[10:11], s[0:1], 88
    s_load_dwordx2 s[22:23], s[0:1], 0
    v_cmp_gt_u32 vcc, 800, v0
    s_mul_i32 s12, s2, {CH*4}
    v_lshlrev_b32 v1, 4, v0
    v_add_u32 v2, s12, v1
    v_lshrrev_b32 v3, 1, v2
    v_lshlrev_b32 v4, 2, v0
    v_mov_b32 v40, 0
    v_mov_b32 v41, 0
    v_mov_b32 v42, 0
    v_mov_b32 v43, 0
    v_mov_b32 v6, 1
    s_mov_b64 s[20:21], vcc
    s_mov_b64 exec, vcc
    s_waitcnt lgkmcnt(0)
@ST 1
    global_load_dwordx4 v[8:11], v2, s[8:9]
    global_load_dwordx4 v[12:15], v2, s[6:7]
    global_load_dwordx2 v[16:17], v3, s[4:5]
    """)
    npf = 0
    if OPT["K1PF"]:
        o(f"""
        s_mul_i32 s13, s2, {200*128}
        v_cmp_gt_u32 vcc, {200*OPT["K1PF"]}, v0
        v_lshlrev_b32 v5, {8-OPT["K1PF"]}, v0
        v_add_u32 v5, s13, v5
        v_min_u32 v5, {N*128-4}, v5
        s_or_b32 vcc_lo, vcc_lo, 1
        s_and_b64 exec, exec, vcc
        global_load_dword v44, v5, s[22:23]
        """)
        npf = 1
    o(f"""
    s_mov_b64 exec, -1
    ds_write_b32 v4, v40 offset:{K1_HIST}
    ds_write_b128 v1, v[40:43]
    ds_write_b128 v1, v[40:43] offset:13312
    ds_write_b128 v1, v[40:43] offset:26624
    s_movk_i32 s13, -{R}
    s_mov_b32 s14, 0xffff0000
    s_mov_b64 exec, s[20:21]
    s_waitcnt lgkmcnt(0)
    s_barrier
    s_waitcnt vmcnt({2+npf})
@ST 2
    """)
    for i in range(4):
        o(f"""
        v_mul_u32_u24 v{20+i}, 0x14e5f, v{8+i}
        v_lshrrev_b32 v{20+i}, 24, v{20+i}
        v_lshlrev_b32 v{24+i}, 2, v{20+i}
        ds_add_rtn_u32 v{28+i}, v{24+i}, v6 offset:{K1_HIST}
        """)
    for i in range(4):
        o(f"""
        v_mad_i32_i24 v{8+i}, v{20+i}, s13, v{8+i}
        v_add_u32 v{8+i}, 1, v{8+i}
        """)
    o(f"""
    s_waitcnt vmcnt({npf})
    v_lshl_or_b32 v32, v16, 16, v12
    v_and_or_b32 v33, v16, s14, v13
    v_lshl_or_b32 v34, v17, 16, v14
    v_and_or_b32 v35, v17, s14, v15
    s_waitcnt lgkmcnt(0)
@ST 3
    v_max3_u32 v36, v28, v29, v30
    v_max_u32 v36, v36, v31
    v_cmp_lt_u32 vcc, 23, v36
    s_cbranch_vccnz K1_OVF
    """)
    def put(i):
        o(f"""
        v_and_b32 v36, 7, v{28+i}
        v_lshl_add_u32 v36, v{24+i}, 1, v36
        v_lshrrev_b32 v37, 3, v{28+i}
        v_lshlrev_b32 v36, 4, v36
        v_lshl_add_u32 v38, v37, 2, v36
        v_add_u32 v39, v37, v36
        ds_write_b32 v38, v{32+i}
        ds_write_b8 v39, v{8+i} offset:12
        """)
    for i in range(4): put(i)
    sc = (" " + OPT["K1SC"]) if OPT["K1SC"] else ""
    o(f"""
K1_PUTDONE:
    s_mov_b64 exec, -1
    s_lshl_b32 s12, s2, 15
    v_add_u32 v2, s12, v1
    v_add_u32 v3, 13312, v2
    v_add_u32 v5, 26624, v2
    v_cmp_gt_u32 vcc, {2048-2*832}, v0
    v_mov_b32 v7, {K1_HIST+1024}
    s_waitcnt lgkmcnt(0)
    s_barrier
@ST 6
    ds_read_b128 v[8:11], v1
    ds_read_b128 v[12:15], v1 offset:13312
    ds_read_b128 v[16:19], v1 offset:26624
    ds_read_b32 v20, v7
    s_waitcnt lgkmcnt(3)
    global_store_dwordx4 v2, v[8:11], s[10:11]{sc}
    s_waitcnt lgkmcnt(2)
    global_store_dwordx4 v3, v[12:15], s[10:11]{sc}
    s_and_b64 exec, exec, vcc
    s_waitcnt lgkmcnt(0)
    global_store_dwordx4 v5, v[16:19], s[10:11]{sc}
    s_mov_b64 exec, -1
    s_mul_i32 s12, s2, {OVS}
    s_add_u32 s12, s12, {WS_OVF}
    v_cmp_eq_u32 vcc, 831, v0
    v_mov_b32 v7, s12
    s_and_b64 exec, exec, vcc
    global_store_dword v7, v20, s[10:11]
    """)
    if DIAG: o("@ST 7\ns_waitcnt vmcnt(0)\n@ST 8\n@RT 5\ns_mov_b64 exec, -1\nv_lshrrev_b32 v1, 6, v0\ns_nop 1\nv_readfirstlane_b32 s3, v1")
    dump(o, 9, 0x4800000)
    o(f"""
    s_endpgm
K1_OVF:
    s_mul_i32 s12, s2, {OVS}
    s_add_u32 s12, s12, {WS_OVF+16}
    v_mov_b32 v7, {K1_HIST+1024}
    v_mov_b32 v45, 0x80000000
    """)
    for i in range(4):
        o(f"""
        s_mov_b64 exec, s[20:21]
        v_cmp_lt_u32 vcc, 23, v{28+i}
        s_andn2_b64 exec, exec, vcc
        """)
        put(i)
        o(f"""
        s_mov_b64 exec, vcc
        s_cbranch_execz K1_OVN{i}
        ds_add_rtn_u32 v36, v7, v6
        v_lshlrev_b32 v37, 7, v{20+i}
        """)
        for u in range(8): o(f"ds_or_b32 v37, v45 offset:{16*u+12}")
        o(f"""
        v_mov_b32 v46, v{32+i}
        v_lshlrev_b32 v47, 3, v{8+i}
        v_lshl_or_b32 v47, v{20+i}, 16, v47
        s_waitcnt lgkmcnt(0)
        v_lshl_add_u32 v36, v36, 3, s12
        global_store_dwordx2 v36, v[46:47], s[10:11]
K1_OVN{i}:
        """)
    o(f"""
    s_branch K1_PUTDONE
K1_W:
    s_cmp_ge_u32 s2, {P+5}
    s_cbranch_scc1 K1_END
    s_load_dwordx8 s[4:11], s[0:1], 32
    s_load_dwordx2 s[12:13], s[0:1], 64
    s_load_dwordx2 s[14:15], s[0:1], 88
    s_sub_u32 s3, s2, {P}
    v_bfe_u32 v1, v0, 2, 1
    v_lshlrev_b32 v1, 5, v1
    v_and_b32 v2, 3, v0
    v_add_u32 v1, v1, v2
    v_bfe_u32 v2, v0, 3, 2
    v_lshl_add_u32 v1, v2, 2, v1
    s_cmp_eq_u32 s3, 4
    s_cbranch_scc1 K1_WC
    v_cmp_gt_u32 vcc, 512, v0
    s_and_b64 exec, exec, vcc
    s_cbranch_execz K1_END
    v_bfe_u32 v2, v0, 8, 1
    v_lshl_add_u32 v1, v2, 4, v1
    v_lshlrev_b32 v1, 1, v1
    v_bfe_u32 v2, v0, 5, 1
    v_lshl_add_u32 v1, v2, 12, v1
    v_bfe_u32 v2, v0, 6, 2
    v_lshl_add_u32 v1, v2, 10, v1
    s_waitcnt lgkmcnt(0)
    s_mov_b32 s18, 1.0
    s_cmp_eq_u32 s3, 0
    s_cselect_b32 s16, s6, s12
    s_cselect_b32 s17, s7, s13
    s_cselect_b32 s18, {f32(NLOG2E)}, s18
    s_cmp_eq_u32 s3, 2
    s_cselect_b32 s16, s4, s16
    s_cselect_b32 s17, s5, s17
    s_cmp_eq_u32 s3, 3
    s_cselect_b32 s16, s10, s16
    s_cselect_b32 s17, s11, s17
    """)
    for j in range(8):
        o(f"global_load_ushort v{8+j}, v1, s[16:17] offset:{128*j}")
    o(f"""
    s_lshl_b32 s19, s3, 13
    s_add_u32 s19, s19, {WS_WF}
    v_lshlrev_b32 v2, 4, v0
    v_add_u32 v2, s19, v2
    s_waitcnt vmcnt(0)
    """)
    for j in range(8):
        o(f"v_lshlrev_b32 v{8+j}, 16, v{8+j}\nv_mul_f32 v{8+j}, s18, v{8+j}")
    for j in range(4):
        o(f"v_cvt_pk_bf16_f32 v{16+j}, v{8+2*j}, v{9+2*j}")
    o(f"""
    global_store_dwordx4 v2, v[16:19], s[14:15]
    s_endpgm
K1_WC:
    v_cmp_gt_u32 vcc, 128, v0
    s_and_b64 exec, exec, vcc
    s_cbranch_execz K1_END
    v_bfe_u32 v2, v0, 6, 1
    v_lshl_add_u32 v1, v2, 4, v1
    v_lshlrev_b32 v1, 1, v1
    s_waitcnt lgkmcnt(0)
    global_load_ushort v8, v1, s[8:9]
    v_lshlrev_b32 v2, 2, v0
    v_add_u32 v2, {WS_WF+32768}, v2
    v_and_b32 v3, 32, v0
    v_cmp_eq_u32 vcc, 0, v3
    v_mov_b32 v4, 0
    s_waitcnt vmcnt(0)
    v_lshlrev_b32 v8, 16, v8
    v_mul_f32 v8, {f32(NLOG2E)}, v8
    v_cvt_pk_bf16_f32 v9, v4, v8
    v_sub_f32 v10, v8, v9
    v_cvt_pk_bf16_f32 v10, v4, v10
    v_or_b32 v9, 0x7f7f, v9
    v_cndmask_b32 v9, v10, v9, vcc
    global_store_dword v2, v9, s[14:15]
K1_END:
    s_endpgm
    """)
    return o.text()

VT, XL, XA, CK, D0, LD, LE, EP, WC, X, WB, WV, AP, DEN, NUM = 0, 1, 2, 3, 4, 8, 9, 10, 12, 16, 32, 64, 96, 128, 160
G = (192, 224); V = (208, 240)
ENT, DLR, QK, RK, OF, QC, INF, WA = 128, 144, 156, 160, 176, 180, 192, 224
NS = 14
PM = 64

def mf(d, a, b, c):
    cs = "0" if c is None else vr(c, 16)
    return f"v_mfma_f32_32x32x16_bf16 {vr(d,16)}, {vr(a,4)}, {vr(b,4)}, {cs}"
def mfe(t):
    return f"v_mfma_f32_32x32x8_bf16 {vr(G[t],16)}, {vr(WC+2*t,2)}, {vr(EP,2)}, {vr(AP+16*t,16)}"
def mf_list(t):
    l = [mfe(t)]
    for s in range(4):
        l.append(mf(G[t], WB+16*t+4*s, X+4*s, G[t]))
        l.append(mf(V[t], WV+16*t+4*s, X+4*s, None if s == 0 else V[t]))
    return l
def dma(i):
    so = ("s28", "s29", "s30", "0")[i]
    off = f" offset:{BLK*i}" if i else ""
    return f"buffer_load_dwordx4 v{D0+i}, s[4:7], {so} offen{off} lds"
def mads():
    return [f"v_mad_u32_u16 v{D0+i}, v{D0+i}, s31, v{CK}" for i in range(4)]
def xread(s): return f"ds_read_b128 {vr(X+4*s,4)}, v{XA}" + (f" offset:{16*s}" if s else "")
ADV = ["s_add_u32 s42, s42, %d" % SLOT, "s_cmp_eq_u32 s42, s41", "s_cselect_b32 s42, s40, s42"]

def phase(o, t, mfs, slots, fill1, fill2, pk1=(), pk2=()):
    g, v, den, num = G[t], V[t], DEN+16*t, NUM+16*t
    e = [f"v_exp_f32 v{g+i}, v{g+i}" for i in range(16)]
    r = [f"v_rcp_f32 v{g+i}, v{g+i}" for i in range(16)]
    def M(i):
        o(mfs[i])
        for x in slots[i]: o(x)
    k = 0
    for i in range(5):
        M(i)
        n = 3 if i < 4 else 4
        for x in e[k:k+n]: o(x)
        k += n
    for x in fill1: o(x)
    pk1 = list(pk1)
    for i in range(8):
        o(f"v_pk_add_f32 {vr(g+2*i,2)}, {vr(g+2*i,2)}, s[34:35]")
        if pk1: o(pk1.pop(0))
    k = 0
    for i in range(5, 9):
        M(i)
        n = 3 if i < 8 else 7
        for x in r[k:k+n]: o(x)
        k += n
    for x in fill2: o(x)
    pk2 = list(pk2)
    for i in range(8):
        o(f"v_pk_add_f32 {vr(den+2*i,2)}, {vr(den+2*i,2)}, {vr(g+2*i,2)}")
        if pk2: o(pk2.pop(0))
        o(f"v_pk_fma_f32 {vr(num+2*i,2)}, {vr(g+2*i,2)}, {vr(v+2*i,2)}, {vr(num+2*i,2)}")
        if pk2: o(pk2.pop(0))

def k2():
    o = A()
    def pay(i): return ENT + 4*(i//3) + i % 3 if i < 12 else QK + 2*(i-12)
    def dl8(i): return DLR + i if i < 12 else QK + 2*(i-12) + 1
    def meta(q): return ENT + 4*q + 3
    def pm(i): return f"s[{PM+2*i}:{PM+2*i+1}]"
    def celladdr():
        o(f"""
        v_mbcnt_lo_u32_b32 v20, -1, 0
        v_mbcnt_hi_u32_b32 v20, -1, v20
        s_lshl_b32 s48, s3, 6
        v_add_u32 v21, s48, v20
        v_lshrrev_b32 v22, 3, v21
        v_and_b32 v23, 7, v20
        v_lshlrev_b32 v23, 4, v23
        s_lshl_b32 s49, s2, 7
        v_lshl_add_u32 v{OF}, v22, 15, s49
        v_add_u32 v{OF}, v{OF}, v23
        """)
        for q in range(1, 4):
            o(f"v_add_u32 v{OF+q}, {q*64*32768}, v{OF}")
    def cellissue():
        for q in range(4):
            o(f"buffer_load_dwordx4 {vr(ENT+4*q,4)}, v{OF+q}, s[8:11], 0 offen")
    o(f"""
main_kernel:
    s_cmp_ge_u32 s2, {NB}
    s_cbranch_scc1 K2_END
    s_load_dwordx2 s[8:9], s[0:1], 88
    s_load_dwordx2 s[4:5], s[0:1], 0
    s_load_dwordx2 s[20:21], s[0:1], 72
@RT 4
@ST 0
    v_lshrrev_b32 v1, 6, v0
    s_mov_b32 s10, {P*32768}
    s_mov_b32 s11, 0x20000
    v_readfirstlane_b32 s3, v1
    """)
    if OPT["XMAP"]:
        o("""
        s_and_b32 s48, s2, 7
        s_lshr_b32 s2, s2, 3
        s_lshl_b32 s48, s48, 5
        s_or_b32 s2, s2, s48
        """)
    celladdr()
    o("s_waitcnt lgkmcnt(0)")
    cellissue()
    o(f"""
    s_add_u32 s16, s8, {WS_WF}
    s_addc_u32 s17, s9, 0
    s_mov_b32 s18, {32768+1024}
    s_mov_b32 s19, 0x20000
    s_add_u32 s12, s8, {WS_OVF}
    s_addc_u32 s13, s9, 0
    s_mov_b32 s14, {P*OVS+128}
    s_mov_b32 s15, 0x20000
    s_mov_b32 s45, 0
    s_mov_b32 s46, 0
    s_mov_b32 s47, 0
    s_sub_u32 s4, s4, {3*BLK}
    s_subb_u32 s5, s5, 0
    s_mov_b32 s6, {N*128+3*BLK}
    s_mov_b32 s7, 0x20000
    s_mov_b32 s22, {N*128}
    s_mov_b32 s23, 0x20000
    s_add_u32 s24, s8, {WS_ACC}
    s_addc_u32 s25, s9, 0
    s_mov_b32 s26, {N*512}
    s_mov_b32 s27, 0x20000
K2_RESTART:
    v_lshlrev_b32 v24, 4, v21
    v_mov_b32 v96, 0xffff
    v_mov_b32 v97, 0xffff
    v_mov_b32 v98, 0xffff
    v_mov_b32 v99, 0xffff
    v_mov_b32 v100, 0
    v_mov_b32 v101, 0
    v_lshlrev_b32 v30, 3, v21
    v_cmp_gt_u32 vcc, {(L_RING-L_CNT)//8}, v21
    ds_write_b128 v24, v[96:99]
    ds_write_b128 v24, v[96:99] offset:8192
    ds_write_b128 v24, v[96:99] offset:16384
    ds_write_b128 v24, v[96:99] offset:24576
    s_and_b64 exec, exec, vcc
    ds_write_b64 v30, v[100:101] offset:{L_CNT}
    s_mov_b64 exec, -1
    s_mov_b32 s28, {3*BLK}
    s_and_b32 s48, s3, 1
    s_lshl_b32 s48, s48, 6
    v_and_b32 v102, 0x30, v20
    v_or_b32 v102, s48, v102
    v_xor_b32 v102, v102, v24
    s_mul_i32 s51, s2, {R*128}
    v_add_u32 v102, s51, v102
    v_add_u32 v103, 8192, v102
    v_add_u32 v104, 16384, v102
    v_add_u32 v105, 24576, v102
    v_add_u32 v25, 8192, v24
    v_add_u32 v27, 24576, v24
    v_lshlrev_b32 v28, 2, v20
    v_lshlrev_b32 v110, 4, v20
    v_add_u32 v26, 16384, v110
    v_add_u32 v29, 32768, v28
    s_lshl_b32 s50, s3, 10
    s_add_u32 m0, s50, {L_OWN}
    s_waitcnt lgkmcnt(0)
    s_barrier
    buffer_load_dwordx4 v102, s[4:7], s28 offen lds
    s_add_u32 m0, s50, {L_OWN+8192}
    v_cmp_gt_u32 vcc, 32, v21
    buffer_load_dwordx4 v103, s[4:7], s28 offen lds
    s_add_u32 m0, s50, {L_OWN+16384}
    s_or_b32 vcc_lo, vcc_lo, 1
    buffer_load_dwordx4 v104, s[4:7], s28 offen lds
    s_add_u32 m0, s50, {L_OWN+24576}
    s_and_b64 exec, exec, vcc
    buffer_load_dwordx4 v105, s[4:7], s28 offen lds
    s_mov_b64 exec, -1
    s_add_u32 m0, s50, {L_WB}
    v_add_u32 v106, 4096, v26
    buffer_load_dwordx4 v24, s[16:19], 0 offen lds
    s_add_u32 m0, s50, {L_WB+8192}
    s_nop 0
    buffer_load_dwordx4 v25, s[16:19], 0 offen lds
    s_add_u32 m0, s50, {L_WU}
    s_nop 0
    buffer_load_dwordx4 v27, s[16:19], 0 offen lds
    """)
    for f in range(8):
        o(f"buffer_load_dwordx4 {vr(WA+4*f,4)}, v{26 if f < 4 else 106}, s[16:19], 0 offen" + (f" offset:{1024*(f%4)}" if f % 4 else ""))
    NLATE = 7 + 8 + 2
    o(f"""
    buffer_load_dword v{WC}, v29, s[16:19], 0 offen
    buffer_load_dword v{WC+2}, v29, s[16:19], 0 offen offset:256
    ; constants
    s_mov_b32 s29, {2*BLK}
    s_mov_b32 s30, {BLK}
    s_mov_b32 s31, 128
    s_mov_b32 s32, {N}
    s_mov_b32 s34, 1.0
    s_mov_b32 s35, 1.0
    s_mov_b32 s36, {f32(1e-6)}
    s_mov_b32 s37, {f32(1e-6)}
    s_mov_b32 s38, {f32(NLOG2E)}
    s_mov_b32 s39, {f32(NLOG2E)}
    s_mul_i32 s40, s3, {RINGW}
    s_add_u32 s40, s40, {L_RING}
    s_add_u32 s41, s40, {RINGW}
    s_lshl_b32 s48, s3, 2
    s_lshr_b32 s44, 0x72106453, s48
    s_and_b32 s44, s44, 7
    v_mov_b32 v{WC+1}, 0
    v_mov_b32 v{WC+3}, 0
    v_mov_b32 v{EP+1}, 0
    v_mov_b32 v31, 1
    v_bfe_u32 v{CK}, v20, 4, 1
    v_lshlrev_b32 v{CK}, 6, v{CK}
    v_xor_b32 v{CK}, v{CK}, v23
    ; column c = l&31, h = l>>5; r = (c3 c2 c4); i = c&3
    v_bfe_u32 v102, v20, 2, 2
    v_bfe_u32 v103, v20, 4, 1
    v_lshl_or_b32 v102, v102, 1, v103
    v_and_b32 v103, 3, v20
    v_lshl_or_b32 v{LE}, v102, 2, v103
    v_lshlrev_b32 v{LE}, 2, v{LE}
    s_lshl_b32 s48, s44, 12
    v_add_u32 v{LE}, s48, v{LE}
    v_lshrrev_b32 v{LD}, 3, v20
    v_lshl_add_u32 v{LD}, v{LD}, 4, s48
    v_mul_u32_u24 v{XL}, {BLK}, v103
    v_lshl_add_u32 v{XL}, v102, 7, v{XL}
    v_bfe_u32 v103, v102, 1, 1
    v_lshrrev_b32 v102, 5, v20
    v_xor_b32 v103, v103, v102
    v_lshl_add_u32 v{XL}, v103, 6, v{XL}
    s_mul_i32 s48, s2, {R}
    s_sub_u32 s49, {N}, s48
    s_min_u32 s49, s49, {R}
    v_cmp_gt_u32 s[52:53], s49, v21
    v_add_u32 v109, s48, v21
    s_or_b32 s48, s45, s47
    s_cbranch_scc1 K2_SLOWLOAD
    s_mov_b64 {pm(12)}, 0
    s_mov_b64 {pm(13)}, 0
    """)
    def ext(i):
        o(f"v_lshlrev_b32_sdwa v{dl8(i)}, 3, v{meta(i//3)} dst_sel:DWORD dst_unused:UNUSED_PAD src0_sel:DWORD src1_sel:BYTE_{i%3}")
    def cnt(i):
        o(f"s_mov_b64 exec, {pm(i)}\nds_add_rtn_u32 v{RK+i}, v{dl8(i)}, v31 offset:{L_CNT-8}")
    for q in range(4):
        o(f"s_waitcnt vmcnt({3-q+NLATE})")
        if q == 0: o("@ST 1")
        for j in range(3): ext(3*q+j)
        for j in range(3): o(f"v_cmp_ne_u32 {pm(3*q+j)}, 0, v{dl8(3*q+j)}")
        for j in range(3): cnt(3*q+j)
        o("s_mov_b64 exec, -1")
    o(f"""
    v_or3_b32 v102, v{meta(0)}, v{meta(1)}, v{meta(2)}
    v_or_b32 v102, v102, v{meta(3)}
    v_cmp_gt_i32 vcc, 0, v102
    s_cbranch_vccnz K2_QUICK
K2_COUNTED:
    s_mov_b64 exec, -1
    s_waitcnt lgkmcnt(0)
    s_barrier
@ST 2
    ds_read_b32 v111, v30 offset:{L_CNT}
    s_waitcnt lgkmcnt(0)
    v_min_u32 v112, 63, v111
    v_sub_u32 v112, 63, v112
    v_lshlrev_b32 v112, 2, v112
    s_mov_b64 exec, s[52:53]
    ds_add_rtn_u32 v113, v112, v31 offset:{L_HIST}
    s_mov_b64 exec, -1
    s_waitcnt lgkmcnt(0)
    s_barrier
    ds_read_b32 v114, v28 offset:{L_HIST}
    s_waitcnt lgkmcnt(0)
    v_mov_b32 v115, v114
    """)
    scan(o, 114)
    o(f"""
    v_sub_u32 v114, v114, v115
    ds_bpermute_b32 v114, v112, v114
    s_cmp_ge_u32 s44, 3
    s_cselect_b32 s48, 0x7c, 0x3c
    s_cmp_eq_u32 s44, 0
    s_cselect_b32 s48, 0x1c, s48
    s_or_b32 s48, s48, 0xf000
    v_and_b32 v26, s48, v{LD}
    v_and_b32 v121, s48, v{LE}
    v_and_b32 v122, 32, v20
    v_lshlrev_b32 v122, 1, v122
    s_waitcnt lgkmcnt(0)
    v_add_u32 v114, v114, v113
    v_add_u32 v115, 56, v114
    v_lshrrev_b32 v116, 5, v115
    v_and_b32 v117, 31, v115
    v_mov_b32 v118, 128
    v_add_u32 v115, 8, v114
    v_lshrrev_b32 v119, 4, v115
    v_and_b32 v120, 15, v115
    v_cmp_gt_u32 vcc, 40, v114
    v_cmp_gt_u32 s[54:55], 8, v114
    s_nop 0
    v_cndmask_b32 v116, v116, v119, vcc
    v_cndmask_b32 v117, v117, v120, vcc
    v_cndmask_b32 v118, v118, 64, vcc
    v_cndmask_b32 v117, v117, v114, s[54:55]
    v_cndmask_b32 v23, v118, 32, s[54:55]
    v_lshlrev_b32 v117, 2, v117
    v_lshl_add_u32 v22, v116, 12, v117
    v_mul_u32_u24 v24, v111, v23
    v_add_u32 v24, 127, v24
    v_lshrrev_b32 v24, 7, v24
    v_lshlrev_b32 v25, 2, v116
    s_mov_b64 exec, s[52:53]
    ds_write_b64 v30, v[22:23] offset:{L_NODE}
    ds_write_b32 v22, v109
    ds_max_u32 v25, v24 offset:{L_LG}
    s_mov_b64 exec, -1
    s_mul_i32 s48, s2, {R}
    s_waitcnt vmcnt(0) lgkmcnt(0)
    s_barrier
@ST 3
    ds_read_b32 v121, v121
    ds_read_b128 {vr(D0,4)}, v26
    ds_read_b32 v123, v28 offset:{L_LG}
    """)
    def inf(i):
        o(f"s_mov_b64 exec, {pm(i)}\nds_read_b64 {vr(INF+2*i,2)}, v{dl8(i)} offset:{L_NODE-8}")
    for i in range(12): inf(i)
    o(f"""
    s_mov_b64 exec, -1
    s_waitcnt lgkmcnt(12)
    v_subrev_u32 v121, s48, v121
    v_min_u32 v121, {R-1}, v121
    v_lshlrev_b32 v124, 3, v121
    v_and_b32 v124, 0x70, v124
    v_xor_b32 v124, v124, v122
    v_lshl_add_u32 v124, v121, 7, v124
    v_xor_b32 v125, 16, v124
    v_xor_b32 v126, 32, v124
    v_xor_b32 v127, 48, v124
    v_cmp_lt_u32 vcc, {LCAP}, v123
    v_readlane_b32 s43, v123, s44
    """)
    inf(12); inf(13)
    o(f"""
    s_mov_b64 exec, -1
    s_min_u32 s43, s43, {LCAP}
    s_lshl_b32 s48, s43, 7
    v_add_u32 v121, s48, v{LD}
    s_and_b32 s47, vcc_lo, 0xff
    s_and_b32 s33, vcc_lo, 0x1ff
    s_cmp_lg_u32 s47, 0
    s_waitcnt lgkmcnt(0)
    s_cbranch_scc1 K2_SLOWSCAT
    """)
    for i in range(NS):
        o(f"v_mad_u32_u24 v{INF+2*i}, v{RK+i}, v{INF+2*i+1}, v{INF+2*i}")
    for i in range(NS):
        o(f"s_mov_b64 exec, {pm(i)}\nds_write_b32 v{INF+2*i}, v{pay(i)} offset:128")
    T = G[0]
    o(f"""
K2_SCATDONE:
    s_mov_b64 exec, -1
    ds_write_b128 v121, {vr(D0,4)} offset:128
    """)
    for s_ in range(4): o(f"ds_read_b128 {vr(X+4*s_,4)}, v{124+s_} offset:{L_OWN}")
    o(f"""
    v_add_u32 v{VT}, {L_WB}, v110
    s_mov_b32 m0, s40
    s_waitcnt lgkmcnt(0)
    s_barrier
@ST 6
    {'s_mov_b32 s76, s43' if DIAG else ''}
    ds_read_b128 {vr(D0,4)}, v{LD} offset:128
    ds_read_b128 {vr(T,4)}, v{LD} offset:256
    ds_read_b128 {vr(T+4,4)}, v{LD} offset:384
    ds_read_b128 {vr(T+8,4)}, v{LD} offset:512
    ds_read_b32 v{EP}, v{LE} offset:128
    s_waitcnt lgkmcnt(4)
    """)
    for x in mads(): o(x)
    for i in range(4): o(dma(i))
    for f in range(8):
        o(f"ds_read_b128 {vr(WB+4*f,4)}, v{VT} offset:{1024*f}" if f else f"ds_read_b128 {vr(WB,4)}, v{VT}")
    o(f"s_add_u32 m0, s40, {SLOT}\ns_waitcnt lgkmcnt(8)")
    for i in range(4): o(f"v_mad_u32_u16 v{D0+i}, v{T+i}, s31, v{CK}")
    for i in range(4): o(dma(i))
    o(f"s_add_u32 m0, s40, {2*SLOT}")
    for i in range(4): o(f"v_mad_u32_u16 v{D0+i}, v{T+4+i}, s31, v{CK}")
    for i in range(4): o(dma(i))
    for f in range(8):
        o(f"ds_read_b128 {vr(WV+4*f,4)}, v{VT} offset:{8192+1024*f}")
    k = 0
    for s_ in range(4):
        for t in range(2):
            o(mf(AP+16*t, WA+16*t+4*s_, X+4*s_, None if s_ == 0 else AP+16*t))
            for i in range(8*k, 8*k+8): o(f"v_mov_b32 v{DEN+i}, 0")
            k += 1
    for i in range(4): o(f"v_mad_u32_u16 v{D0+i}, v{T+8+i}, s31, v{CK}")
    o(f"""
    v_pk_sub_u16 v{EP}, v{EP}, s32 clamp
    v_add_u32 v{XA}, s40, v{XL}
    v_add_u32 v{LD}, {5*128}, v{LD}
    v_add_u32 v{LE}, {2*128}, v{LE}
    s_cmp_lg_u32 s46, 0
    s_cbranch_scc1 K2_LOADACC
K2_ACCDONE:
    s_mov_b32 m0, s40
    s_add_u32 s42, s40, {SLOT}
    """)
    for i in range(16): o(f"v_pk_mul_f32 {vr(AP+2*i,2)}, {vr(AP+2*i,2)}, s[38:39]")
    o(f"""
    s_waitcnt vmcnt(8)
@ST 7
    """)
    for s_ in range(4): o(xread(s_))
    ml = mf_list(0)
    o(ml[0])
    o("s_waitcnt lgkmcnt(0)")
    for i in range(4): o(ml[1+2*i]); o(dma(i))
    for i in range(4): o(ml[2+2*i])
    o(f"""
    v_add_u32 v{XA}, {SLOT}, v{XA}
@ST 8
    s_sub_u32 s43, s43, 1
    s_cbranch_scc1 K2_LOOPEND
    .p2align 4
K2_LOOP:
    """)
    sl = [[] for _ in range(9)]
    sl[0] = [f"ds_read_b32 v{VT}, v{LE}"]
    sl[1] = ["s_waitcnt vmcnt(8)"]
    sl[2] = [xread(0)]
    sl[3] = [f"ds_read_b128 {vr(D0,4)}, v{LD}"]
    sl[4] = [xread(1)]
    sl[5] = ["s_mov_b32 m0, s42"]
    sl[6] = [xread(2)]
    sl[7] = ["s_waitcnt lgkmcnt(2)"]
    sl[8] = [xread(3)]
    phase(o, 0, mf_list(1), sl,
          [f"v_add_u32 v{LE}, 128, v{LE}", f"v_add_u32 v{LD}, 128, v{LD}"],
          [f"v_pk_sub_u16 v{EP}, v{VT}, s32 clamp"] + mads(),
          pk1=(), pk2=ADV + ["s_waitcnt lgkmcnt(0)"])
    sl = [[] for _ in range(9)]
    for i in range(4): sl[i] = [dma(i)]
    sl[8] = ["s_sub_u32 s43, s43, 1"]
    phase(o, 1, mf_list(0), sl, [f"v_add_u32 v{XA}, s42, v{XL}"], [])
    o(f"""
    s_cbranch_scc0 K2_LOOP
K2_LOOPEND:
@ST 9
    v_mbcnt_lo_u32_b32 v{D0}, -1, 0
    v_mbcnt_hi_u32_b32 v{D0}, -1, v{D0}
    v_lshlrev_b32 v{D0+1}, 4, v{D0}
    v_subrev_u32 v{LE}, 128, v{LE}
    ds_read_b32 v{VT}, v{LE}
    """)
    for f in range(8):
        o(f"ds_read_b128 {vr(WB+4*f,4)}, v{D0+1} offset:{L_WU+1024*f}")
    o(f"""
    s_mov_b32 s48, 0
    s_cmp_ge_u32 s44, 3
    s_cbranch_scc1 K2_NOCOMB
    s_mov_b32 s48, 8
    """)
    for i in range(64): o(f"v_add_f32_dpp v{DEN+i}, v{DEN+i}, v{DEN+i} row_ror:8 row_mask:0xf bank_mask:0xf")
    o(f"""
    s_cmp_lg_u32 s44, 0
    s_cbranch_scc1 K2_NOCOMB
    s_mov_b32 s48, 12
    """)
    for i in range(64): o(f"v_add_f32_dpp v{DEN+i}, v{DEN+i}, v{DEN+i} row_ror:4 row_mask:0xf bank_mask:0xf")
    o(f"""
K2_NOCOMB:
    v_and_b32 v{D0+2}, s48, v{D0}
    v_cmp_eq_u32 vcc, 0, v{D0+2}
    v_mov_b32 v{D0+3}, 0xffff
    v_lshrrev_b32 v{D0}, 5, v{D0}
    s_waitcnt lgkmcnt(0)
    v_cndmask_b32 v{D0+2}, v{D0+3}, v{VT}, vcc
    s_cmp_lg_u32 s33, 0
    s_cbranch_scc1 K2_STOREACC
    v_lshlrev_b32 v{D0}, 6, v{D0}
    v_lshl_add_u32 v{D0}, v{D0+2}, 7, v{D0}
    """)
    for i in range(16): o(f"v_pk_add_f32 {vr(DEN+2*i,2)}, {vr(DEN+2*i,2)}, s[36:37]")
    k = 0
    for s in range(4):
        for t in range(2):
            o(mf(G[t], WB+16*t+4*s, X+4*s, None if s == 0 else G[t]))
            n = 3 if (s, t) != (3, 1) else 11
            for i in range(k, k+n): o(f"v_rcp_f32 v{DEN+i}, v{DEN+i}")
            k += n
    o("s_mov_b32 s49, 0xffff0000\ns_nop 0")
    for t in range(2):
        for i in range(8):
            o(f"v_pk_fma_f32 {vr(G[t]+2*i,2)}, {vr(NUM+16*t+2*i,2)}, {vr(DEN+16*t+2*i,2)}, {vr(G[t]+2*i,2)}")
    for t in range(2):
        for i in range(8):
            o(f"v_lshlrev_b32 v{V[t]+2*i}, 16, v{X+8*t+i}")
            o(f"v_and_b32 v{V[t]+2*i+1}, s49, v{X+8*t+i}")
            o(f"v_max_f32 v{G[t]+2*i}, 0, v{G[t]+2*i}")
            o(f"v_max_f32 v{G[t]+2*i+1}, 0, v{G[t]+2*i+1}")
            o(f"v_pk_add_f32 {vr(G[t]+2*i,2)}, {vr(G[t]+2*i,2)}, {vr(V[t]+2*i,2)}")
            o(f"v_cvt_pk_bf16_f32 v{DEN+8*t+i}, v{G[t]+2*i}, v{G[t]+2*i+1}")
            if i % 4 == 3:
                j = 2*t + i//4
                o(f"buffer_store_dwordx4 {vr(DEN+4*j,4)}, v{D0}, s[20:23], 0 offen" + (f" offset:{16*j}" if j else ""))
    o("@ST 10\n@RT 5")
    if DIAG: o("s_waitcnt vmcnt(0)\n@ST 11\ns_getreg_b32 s77, hwreg(HW_REG_HW_ID)\ns_getreg_b32 s78, hwreg(HW_REG_XCC_ID)")
    dump(o, 12, 0x4000000, ("s76", "s77", "s78", "s44"))
    o(f"""
K2_END:
    s_endpgm
K2_SLOWSCAT:
    s_movk_i32 s48, {LCAP*128}
    """)
    for i in range(NS):
        o(f"""
        s_mov_b64 exec, {pm(i)}
        v_mul_u32_u24 v{INF+2*i+1}, v{RK+i}, v{INF+2*i+1}
        v_cmp_gt_u32 vcc, s48, v{INF+2*i+1}
        v_add_u32 v{INF+2*i}, v{INF+2*i}, v{INF+2*i+1}
        s_andn2_b64 {pm(i)}, {pm(i)}, vcc
        s_mov_b64 exec, vcc
        ds_write_b32 v{INF+2*i}, v{pay(i)} offset:128
        """)
    def more(v):
        o(f"""
        v_mov_b32 v107, {L_LG+32}
        v_mov_b32 v108, 64
        s_and_b64 exec, exec, vcc
        ds_write_b32 v107, v108
        """)
    o(f"""
    s_branch K2_SCATDONE
K2_QUICK:
    s_mov_b64 s[54:55], vcc
    v_mov_b32 v102, 192
    v_mov_b32 v103, 128
    v_cmp_gt_i32 vcc, 0, v{meta(2)}
    v_lshrrev_b32 v104, 31, v{meta(0)}
    v_lshrrev_b32 v105, 31, v{meta(1)}
    v_cndmask_b32 v102, v102, v103, vcc
    v_cmp_gt_i32 vcc, 0, v{meta(1)}
    v_add_u32 v104, v104, v105
    v_lshrrev_b32 v105, 31, v{meta(2)}
    v_cndmask_b32 v102, v102, 64, vcc
    v_cmp_gt_i32 vcc, 0, v{meta(0)}
    v_add_u32 v104, v104, v105
    v_lshrrev_b32 v105, 31, v{meta(3)}
    v_cndmask_b32 v102, v102, 0, vcc
    v_add_u32 v104, v104, v105
    v_add_u32 v102, v102, v22
    v_mul_u32_u24 v102, {OVS}, v102
    v_add_u32 v103, v102, v23
    s_mov_b64 exec, s[54:55]
    buffer_load_dword v{QC}, v102, s[12:15], 0 offen
    buffer_load_dwordx4 {vr(QK,4)}, v103, s[12:15], 0 offen offset:16
    v_lshrrev_b32 v105, 3, v23
    v_lshlrev_b32 v104, 4, v104
    s_waitcnt vmcnt(0)
    s_cmp_lg_u32 s47, 0
    s_cbranch_scc1 K2_QKEEP
    v_cmp_lt_u32 vcc, v105, v{QC}
    v_cmp_eq_u32_sdwa {pm(12)}, s2, v{QK+1} src0_sel:DWORD src1_sel:WORD_1
    v_add_u32 v105, 1, v105
    s_and_b64 {pm(12)}, {pm(12)}, vcc
    v_cmp_lt_u32 vcc, v105, v{QC}
    v_cmp_eq_u32_sdwa {pm(13)}, s2, v{QK+3} src0_sel:DWORD src1_sel:WORD_1
    s_and_b64 {pm(13)}, {pm(13)}, vcc
K2_QKEEP:
    v_and_b32 v{QK+1}, 0xffff, v{QK+1}
    v_and_b32 v{QK+3}, 0xffff, v{QK+3}
    v_max_u32 v104, v104, v{QC}
    v_cmp_lt_u32 vcc, 16, v104
    """)
    more(0)
    cnt(12); cnt(13)
    o(f"""
    s_branch K2_COUNTED
K2_SLOWLOAD:
    s_waitcnt vmcnt(0)
    s_cmp_lg_u32 s45, 0
    s_cbranch_scc1 K2_CHUNK
    """)
    for i in range(12): ext(i)
    for i in range(12): cnt(i)
    o(f"""
    s_mov_b64 exec, -1
    v_or3_b32 v102, v{meta(0)}, v{meta(1)}, v{meta(2)}
    v_or_b32 v102, v102, v{meta(3)}
    v_cmp_gt_i32 vcc, 0, v102
    s_cbranch_vccnz K2_QUICK
    s_branch K2_COUNTED
K2_CHUNK:
    s_sub_u32 s48, s45, 16
    s_lshl_b32 s49, s48, 3
    v_mul_u32_u24 v102, {OVS}, v22
    v_lshrrev_b32 v105, 3, v23
    v_add_u32 v105, s48, v105
    v_add_u32 v106, 1, v105
    s_cmp_eq_u32 s48, 0
    s_cselect_b64 s[54:55], 0, -1
    v_mov_b32 v104, 0
    """)
    for q in range(4):
        o(f"""
        s_mov_b64 exec, -1
        v_mov_b32 v{QC+q}, 0
        v_cmp_gt_i32 vcc, 0, v{meta(q)}
        v_add3_u32 v103, v102, v23, s49
        s_mov_b64 exec, vcc
        buffer_load_dword v{QC+q}, v102, s[12:15], 0 offen
        buffer_load_dwordx4 {vr(INF+4*q,4)}, v103, s[12:15], 0 offen offset:16
        s_waitcnt vmcnt(0)
        v_max_u32 v104, v104, v{QC+q}
        s_andn2_b64 exec, vcc, s[54:55]
        v_mov_b32 v{QC+q}, 0
        s_or_b64 s[54:55], s[54:55], vcc
        s_mov_b64 exec, -1
        v_add_u32 v102, {64*OVS}, v102
        """)
    o(f"""
    s_cmp_lg_u32 s47, 0
    s_cbranch_scc1 K2_CKEEP
    s_mov_b64 {pm(12)}, 0
    s_mov_b64 {pm(13)}, 0
    """)
    for q in range(4):
        o(f"s_mov_b64 {pm(3*q+2)}, 0")
        for k in range(2):
            o(f"""
            v_cmp_lt_u32 vcc, v{105+k}, v{QC+q}
            v_cmp_eq_u32_sdwa {pm(3*q+k)}, s2, v{INF+4*q+2*k+1} src0_sel:DWORD src1_sel:WORD_1
            s_and_b64 {pm(3*q+k)}, {pm(3*q+k)}, vcc
            """)
    o("K2_CKEEP:")
    for q in range(4):
        for k in range(2):
            o(f"v_mov_b32 v{pay(3*q+k)}, v{INF+4*q+2*k}\nv_and_b32 v{dl8(3*q+k)}, 0xffff, v{INF+4*q+2*k+1}")
    o(f"v_cmp_lt_u32 vcc, s45, v104")
    more(0)
    for q in range(4):
        for k in range(2): cnt(3*q+k)
    o(f"""
    s_branch K2_COUNTED
K2_LOADACC:
    s_lshl_b32 s48, s43, 7
    s_sub_u32 s48, s48, 128
    v_add_u32 v{G[0]}, s48, v{LE}
    ds_read_b32 v{G[0]}, v{G[0]}
    v_mbcnt_lo_u32_b32 v{G[0]+1}, -1, 0
    v_mbcnt_hi_u32_b32 v{G[0]+1}, -1, v{G[0]+1}
    s_cmp_ge_u32 s44, 3
    s_cselect_b32 s48, 0, 8
    s_cmp_eq_u32 s44, 0
    s_cselect_b32 s48, 12, s48
    v_and_b32 v{G[0]+2}, s48, v{G[0]+1}
    v_cmp_eq_u32 vcc, 0, v{G[0]+2}
    v_mov_b32 v{G[0]+3}, 0xffff
    v_lshrrev_b32 v{G[0]+1}, 5, v{G[0]+1}
    v_lshlrev_b32 v{G[0]+1}, 8, v{G[0]+1}
    s_waitcnt lgkmcnt(0)
    v_cndmask_b32 v{G[0]}, v{G[0]+3}, v{G[0]}, vcc
    v_lshl_add_u32 v{G[0]}, v{G[0]}, 9, v{G[0]+1}
    """)
    for j in range(16):
        o(f"buffer_load_dwordx4 {vr(DEN+4*j,4)}, v{G[0]}, s[24:27], 0 offen offset:{16*j}")
    o(f"""
    s_waitcnt vmcnt(0)
    s_branch K2_ACCDONE
K2_STOREACC:
    v_lshlrev_b32 v{D0}, 8, v{D0}
    v_lshl_add_u32 v{D0}, v{D0+2}, 9, v{D0}
    """)
    for j in range(16):
        o(f"buffer_store_dwordx4 {vr(DEN+4*j,4)}, v{D0}, s[24:27], 0 offen offset:{16*j}")
    o(f"""
    s_mov_b32 s46, 1
    s_cmp_lg_u32 s47, 0
    s_cselect_b32 s48, 0, 16
    s_add_u32 s45, s45, s48
    s_waitcnt vmcnt(0) lgkmcnt(0)
    s_barrier
    """)
    celladdr()
    cellissue()
    o("s_branch K2_RESTART")
    return o.text()

def desc(name, nv, ns):
    return f"""
.p2align 6
.amdhsa_kernel {name}
  .amdhsa_next_free_vgpr {nv}
  .amdhsa_next_free_sgpr {ns}
  .amdhsa_accum_offset {(nv+3)//4*4}
  .amdhsa_group_segment_fixed_size 0
  .amdhsa_kernarg_size 96
  .amdhsa_user_sgpr_count 2
  .amdhsa_user_sgpr_kernarg_segment_ptr 1
  .amdhsa_system_sgpr_workgroup_id_x 1
  .amdhsa_float_denorm_mode_32 3
.end_amdhsa_kernel
"""

def build():
    hdr = open(f"cdna_kernels/{NAME}.s.ref").read().split("; Override launch geometry")[0]
    s = hdr
    s += f"; @launch kernel=part_kernel grid=({P+5},1,1) block=(832,1,1) lds={LDS1}\n"
    s += f"; @launch kernel=main_kernel grid=({NB},1,1) block=(512,1,1) lds={LDS2}\n"
    s += '.amdgcn_target "amdgcn-amd-amdhsa--gfx950"\n.text\n'
    for nm, body in (("part_kernel", k1()), ("main_kernel", k2())):
        s += f".globl {nm}\n.p2align 8\n.type {nm},@function\n" + body
    s += '.section .rodata,"a"\n' + desc("part_kernel", 52, 102 if DIAG else 24) + desc("main_kernel", 256, 102 if DIAG else 96)
    return s

if __name__ == "__main__":
    if "--diag" in sys.argv:
        sys.argv.remove("--diag"); DIAG = True
    out = sys.argv[1] if len(sys.argv) > 1 else f"cdna_kernels/{NAME}.s"
    open(out, "w").write(build())
```

```python
import sys, struct
NAME = "gather_scatter__edge_featured_mpnn_gatedgcn__graph"
N, E, R, P, CH = 50000, 800000, 196, 250, 3200
NB = 256
WS_WF, WS_OVF, WS_ACC = 0x800000, 0x840000, 0x1000000
OVS = 25728
K1_HIST = 40960
LDS1 = K1_HIST + 832*4
LCAP = 26
GS = (LCAP + 2) * 128
L_LIST = 0
L_WB = 8 * GS
L_WU = L_WB + 24576
L_NODE = L_WB + 32768
L_CNT = L_NODE + 1024
L_HIST = L_CNT + 1024
L_LG = L_HIST + 256
L_RING = L_LG + 64
BLK, SLOT = 1040, 4160
RINGW = 3 * SLOT
L_OWN = L_RING
LDS2 = L_RING + 8 * RINGW
def f32(x): return "0x%08x" % struct.unpack("<I", struct.pack("<f", x))[0]
NLOG2E = -1.4426950408889634

DIAG = False
import os
OPT = dict(XMAP=1, K1PF=0, K1SC="sc1", OUTSC="", YD=1, STSET=0, K1TLB=0, OUTTLB=1, K1LATE=0)
for kv in os.environ.get("GOPT", "").split(","):
    if kv:
        k_, v_ = kv.split("="); OPT[k_] = v_.replace("_", " ") if k_.endswith("SC") else int(v_)
ST_REGS = [56, 58, 60, 62, 96, 98, 64, 66, 68, 70, 72, 92]
def stamp(o, i, real=False):
    if DIAG:
        r = ST_REGS[i]
        o(f"s_mem{'real' if real else ''}time s[{r}:{r+1}]")
def dump(o, n, base, extra=()):
    if DIAG:
        o("s_load_dwordx2 s[100:101], s[0:1], 88\ns_waitcnt lgkmcnt(0)\ns_mov_b64 exec, -1")
        for i in range(n): o(f"v_writelane_b32 v1, s{ST_REGS[i]}, {i}")
        for j, x in enumerate(extra): o(f"v_writelane_b32 v1, {x}, {n+j}")
        o(f"""v_mbcnt_lo_u32_b32 v2, -1, 0
        v_mbcnt_hi_u32_b32 v2, -1, v2
        s_lshl_b32 s99, s2, 4
        s_add_u32 s99, s99, s3
        s_lshl_b32 s99, s99, 8
        s_add_u32 s99, s99, {base}
        v_lshl_add_u32 v2, v2, 2, s99
        global_store_dword v2, v1, s[100:101]""")

class A:
    def __init__(s): s.l = []
    def __call__(s, t):
        for x in t.strip("\n").split("\n"):
            x = x.strip()
            if x.startswith("@SA") or x.startswith("@SB"):
                if OPT["STSET"] == (0 if x[2] == "A" else 1): stamp(s, int(x.split()[1]))
                continue
            if x.startswith("@ST") or x.startswith("@RT"):
                stamp(s, int(x.split()[1]), x.startswith("@RT")); continue
            if x: s.l.append(x if x.endswith(":") else "    " + x)
    def text(s): return "\n".join(s.l) + "\n"

def vr(a, n): return f"v[{a}:{a+n-1}]"

def scan(o, v):
    for sh in (1, 2, 4, 8):
        o(f"s_nop 1\nv_add_u32_dpp v{v}, v{v}, v{v} row_shr:{sh} row_mask:0xf bank_mask:0xf")
    o(f"s_nop 1\nv_add_u32_dpp v{v}, v{v}, v{v} row_bcast:15 row_mask:0xa bank_mask:0xf")
    o(f"s_nop 1\nv_add_u32_dpp v{v}, v{v}, v{v} row_bcast:31 row_mask:0xc bank_mask:0xf")

def k1():
    o = A()
    o(f"""
part_kernel:
    s_cmp_ge_u32 s2, {P}
    s_cbranch_scc1 K1_W
@RT 4
@ST 0
    s_load_dwordx2 s[8:9], s[0:1], 24
    s_load_dwordx4 s[4:7], s[0:1], 8
    s_load_dwordx2 s[10:11], s[0:1], 88
    s_load_dwordx2 s[22:23], s[0:1], 0
    """)
    if OPT["K1TLB"]:
        o("v_readfirstlane_b32 s15, v0\ns_cmp_ge_u32 s15, 832\ns_cbranch_scc1 K1_T")
    o(f"""
    v_cmp_gt_u32 vcc, 800, v0
    s_mul_i32 s12, s2, {CH*4}
    v_lshlrev_b32 v1, 4, v0
    v_add_u32 v2, s12, v1
    v_lshrrev_b32 v3, 1, v2
    v_lshlrev_b32 v4, 2, v0
    v_mov_b32 v40, 0
    v_mov_b32 v41, 0
    v_mov_b32 v42, 0
    v_mov_b32 v43, 0
    v_mov_b32 v6, 1
    s_mov_b64 s[20:21], vcc
    s_mov_b64 exec, vcc
    s_waitcnt lgkmcnt(0)
@ST 1
    global_load_dwordx4 v[8:11], v2, s[8:9]
    global_load_dwordx4 v[12:15], v2, s[6:7]
    global_load_dwordx2 v[16:17], v3, s[4:5]
    """)
    npf = 0
    if OPT["K1PF"]:
        o(f"""
        s_mul_i32 s13, s2, {200*128}
        v_cmp_gt_u32 vcc, {200*OPT["K1PF"]}, v0
        v_lshlrev_b32 v5, {8-OPT["K1PF"]}, v0
        v_add_u32 v5, s13, v5
        v_min_u32 v5, {N*128-4}, v5
        s_or_b32 vcc_lo, vcc_lo, 1
        s_and_b64 exec, exec, vcc
        global_load_dword v44, v5, s[22:23]
        """)
        npf = 1
    o(f"""
    s_mov_b64 exec, -1
    ds_write_b32 v4, v40 offset:{K1_HIST}
    ds_write_b128 v1, v[40:43]
    ds_write_b128 v1, v[40:43] offset:13312
    ds_write_b128 v1, v[40:43] offset:26624
    s_movk_i32 s13, -{R}
    s_mov_b32 s14, 0xffff0000
    s_mov_b64 exec, s[20:21]
    s_waitcnt lgkmcnt(0)
    s_barrier
    s_waitcnt vmcnt({2+npf})
@ST 2
    """)
    for i in range(4):
        o(f"""
        v_mul_u32_u24 v{20+i}, 0x14e5f, v{8+i}
        v_lshrrev_b32 v{20+i}, 24, v{20+i}
        v_lshlrev_b32 v{24+i}, 2, v{20+i}
        ds_add_rtn_u32 v{28+i}, v{24+i}, v6 offset:{K1_HIST}
        """)
    for i in range(4):
        o(f"""
        v_mad_i32_i24 v{8+i}, v{20+i}, s13, v{8+i}
        v_add_u32 v{8+i}, 1, v{8+i}
        """)
    o(f"""
    s_waitcnt vmcnt({npf})
    v_lshl_or_b32 v32, v16, 16, v12
    v_and_or_b32 v33, v16, s14, v13
    v_lshl_or_b32 v34, v17, 16, v14
    v_and_or_b32 v35, v17, s14, v15
    s_waitcnt lgkmcnt(0)
@ST 3
    v_max3_u32 v36, v28, v29, v30
    v_max_u32 v36, v36, v31
    v_cmp_lt_u32 vcc, 23, v36
    s_cbranch_vccnz K1_OVF
    """)
    def put(i):
        o(f"""
        v_and_b32 v36, 7, v{28+i}
        v_lshl_add_u32 v36, v{24+i}, 1, v36
        v_lshrrev_b32 v37, 3, v{28+i}
        v_lshlrev_b32 v36, 4, v36
        v_lshl_add_u32 v38, v37, 2, v36
        v_add_u32 v39, v37, v36
        ds_write_b32 v38, v{32+i}
        ds_write_b8 v39, v{8+i} offset:12
        """)
    for i in range(4): put(i)
    sc = (" " + OPT["K1SC"]) if OPT["K1SC"] else ""
    o(f"""
K1_PUTDONE:
    s_mov_b64 exec, -1
    s_lshl_b32 s12, s2, 15
    v_add_u32 v2, s12, v1
    v_add_u32 v3, 13312, v2
    v_add_u32 v5, 26624, v2
    v_cmp_gt_u32 vcc, {2048-2*832}, v0
    v_mov_b32 v7, {K1_HIST+1024}
    s_waitcnt lgkmcnt(0)
    s_barrier
@ST 6
    ds_read_b128 v[8:11], v1
    ds_read_b128 v[12:15], v1 offset:13312
    ds_read_b128 v[16:19], v1 offset:26624
    ds_read_b32 v20, v7
    s_waitcnt lgkmcnt(3)
    global_store_dwordx4 v2, v[8:11], s[10:11]{sc}
    s_waitcnt lgkmcnt(2)
    global_store_dwordx4 v3, v[12:15], s[10:11]{sc}
    s_and_b64 exec, exec, vcc
    s_waitcnt lgkmcnt(0)
    global_store_dwordx4 v5, v[16:19], s[10:11]{sc}
    s_mov_b64 exec, -1
    s_mul_i32 s12, s2, {OVS}
    s_add_u32 s12, s12, {WS_OVF}
    v_cmp_eq_u32 vcc, 831, v0
    v_mov_b32 v7, s12
    s_and_b64 exec, exec, vcc
    global_store_dword v7, v20, s[10:11]
    """)
    if DIAG: o("@ST 7\ns_waitcnt vmcnt(0)\n@ST 8\n@RT 5\ns_mov_b64 exec, -1\nv_lshrrev_b32 v1, 6, v0\ns_nop 1\nv_readfirstlane_b32 s3, v1")
    dump(o, 9, 0x4800000)
    o(f"""
    s_endpgm
K1_OVF:
    s_mul_i32 s12, s2, {OVS}
    s_add_u32 s12, s12, {WS_OVF+16}
    v_mov_b32 v7, {K1_HIST+1024}
    v_mov_b32 v45, 0x80000000
    """)
    for i in range(4):
        o(f"""
        s_mov_b64 exec, s[20:21]
        v_cmp_lt_u32 vcc, 23, v{28+i}
        s_andn2_b64 exec, exec, vcc
        """)
        put(i)
        o(f"""
        s_mov_b64 exec, vcc
        s_cbranch_execz K1_OVN{i}
        ds_add_rtn_u32 v36, v7, v6
        v_lshlrev_b32 v37, 7, v{20+i}
        """)
        for u in range(8): o(f"ds_or_b32 v37, v45 offset:{16*u+12}")
        o(f"""
        v_mov_b32 v46, v{32+i}
        v_lshlrev_b32 v47, 2, v{8+i}
        v_lshl_or_b32 v47, v{20+i}, 16, v47
        s_waitcnt lgkmcnt(0)
        v_lshl_add_u32 v36, v36, 3, s12
        global_store_dwordx2 v36, v[46:47], s[10:11]
K1_OVN{i}:
        """)
    o("s_branch K1_PUTDONE")
    if OPT["K1TLB"]:
        m = OPT["K1TLB"]
        o(f"""
K1_T:
        v_and_b32 v5, 63, v0
        s_barrier
        s_waitcnt lgkmcnt(0)
        """)
        if m & 8:
            o(f"""
            s_mul_i32 s12, s2, {CH*4}
            s_add_u32 s12, s12, {CH*4-4}
            v_mov_b32 v7, s12
            global_load_dword v44, v7, s[6:7]
            s_waitcnt vmcnt(0)
            """)
        if m & 2:
            o(f"""
            s_lshl_b32 s13, s2, 15
            v_lshlrev_b32 v7, 12, v5
            v_and_b32 v7, 0x7fff, v7
            v_add_u32 v7, s13, v7
            global_load_dword v45, v7, s[10:11]
            """)
        if m & 1:
            o(f"""
            s_lshr_b32 s13, s2, 3
            s_mul_i32 s13, s13, {50*4096}
            v_lshlrev_b32 v7, 12, v5
            v_add_u32 v7, s13, v7
            v_min_u32 v7, {N*128-4}, v7
            global_load_dword v44, v7, s[22:23]
            """)
        if m & 4:
            o(f"""
            s_mul_i32 s13, s2, {200*128}
            v_cmp_gt_u32 vcc, 50, v5
            v_lshl_add_u32 v7, v5, 7, s13
            s_mov_b64 exec, vcc
            """)
            for i in range(4):
                o(f"global_load_dword v44, v7, s[22:23]")
                if i < 3: o(f"v_add_u32 v7, {50*128}, v7")
        o("s_barrier\ns_endpgm")
    o(f"""
K1_W:
    s_cmp_ge_u32 s2, {P+5}
    s_cbranch_scc1 K1_END
    s_load_dwordx8 s[4:11], s[0:1], 32
    s_load_dwordx2 s[12:13], s[0:1], 64
    s_load_dwordx2 s[14:15], s[0:1], 88
    s_sub_u32 s3, s2, {P}
    v_bfe_u32 v1, v0, 2, 1
    v_lshlrev_b32 v1, 5, v1
    v_and_b32 v2, 3, v0
    v_add_u32 v1, v1, v2
    v_bfe_u32 v2, v0, 3, 2
    v_lshl_add_u32 v1, v2, 2, v1
    s_cmp_eq_u32 s3, 4
    s_cbranch_scc1 K1_WC
    v_cmp_gt_u32 vcc, 512, v0
    s_and_b64 exec, exec, vcc
    s_cbranch_execz K1_END
    v_bfe_u32 v2, v0, 8, 1
    v_lshl_add_u32 v1, v2, 4, v1
    v_lshlrev_b32 v1, 1, v1
    v_bfe_u32 v2, v0, 5, 1
    v_lshl_add_u32 v1, v2, 12, v1
    v_bfe_u32 v2, v0, 6, 2
    v_lshl_add_u32 v1, v2, 10, v1
    s_waitcnt lgkmcnt(0)
    s_mov_b32 s18, 1.0
    s_cmp_eq_u32 s3, 0
    s_cselect_b32 s16, s6, s12
    s_cselect_b32 s17, s7, s13
    s_cselect_b32 s18, {f32(NLOG2E)}, s18
    s_cmp_eq_u32 s3, 2
    s_cselect_b32 s16, s4, s16
    s_cselect_b32 s17, s5, s17
    s_cmp_eq_u32 s3, 3
    s_cselect_b32 s16, s10, s16
    s_cselect_b32 s17, s11, s17
    """)
    for j in range(8):
        o(f"global_load_ushort v{8+j}, v1, s[16:17] offset:{128*j}")
    o(f"""
    s_lshl_b32 s19, s3, 13
    s_add_u32 s19, s19, {WS_WF}
    v_lshlrev_b32 v2, 4, v0
    v_add_u32 v2, s19, v2
    s_waitcnt vmcnt(0)
    """)
    for j in range(8):
        o(f"v_lshlrev_b32 v{8+j}, 16, v{8+j}\nv_mul_f32 v{8+j}, s18, v{8+j}")
    for j in range(4):
        o(f"v_cvt_pk_bf16_f32 v{16+j}, v{8+2*j}, v{9+2*j}")
    o(f"""
    global_store_dwordx4 v2, v[16:19], s[14:15]
    s_endpgm
K1_WC:
    v_cmp_gt_u32 vcc, 128, v0
    s_and_b64 exec, exec, vcc
    s_cbranch_execz K1_END
    v_bfe_u32 v2, v0, 6, 1
    v_lshl_add_u32 v1, v2, 4, v1
    v_lshlrev_b32 v1, 1, v1
    s_waitcnt lgkmcnt(0)
    global_load_ushort v8, v1, s[8:9]
    v_lshlrev_b32 v2, 2, v0
    v_add_u32 v2, {WS_WF+32768}, v2
    v_and_b32 v3, 32, v0
    v_cmp_eq_u32 vcc, 0, v3
    v_mov_b32 v4, 0
    s_waitcnt vmcnt(0)
    v_lshlrev_b32 v8, 16, v8
    v_mul_f32 v8, {f32(NLOG2E)}, v8
    v_cvt_pk_bf16_f32 v9, v4, v8
    v_sub_f32 v10, v8, v9
    v_cvt_pk_bf16_f32 v10, v4, v10
    v_or_b32 v9, 0x7f7f, v9
    v_cndmask_b32 v9, v10, v9, vcc
    global_store_dword v2, v9, s[14:15]
K1_END:
    s_endpgm
    """)
    return o.text()

VT, XL, XA, CK, D0, LD, LE, EP, WC, X, WB, WV, AP, DEN, NUM = 0, 1, 2, 3, 4, 8, 9, 10, 12, 16, 32, 64, 96, 128, 160
G = (192, 224); V = (208, 240)
ENT, DLR, QK, RK, OF, QC, INF, WA = 128, 144, 156, 160, 176, 180, 192, 224
NS = 14
PM = 64

def mf(d, a, b, c):
    cs = "0" if c is None else vr(c, 16)
    return f"v_mfma_f32_32x32x16_bf16 {vr(d,16)}, {vr(a,4)}, {vr(b,4)}, {cs}"
def mfe(t):
    return f"v_mfma_f32_32x32x8_bf16 {vr(G[t],16)}, {vr(WC+2*t,2)}, {vr(EP,2)}, {vr(AP+16*t,16)}"
def mf_list(t):
    l = [mfe(t)]
    for s in range(4):
        l.append(mf(G[t], WB+16*t+4*s, X+4*s, G[t]))
        l.append(mf(V[t], WV+16*t+4*s, X+4*s, None if s == 0 else V[t]))
    return l
def dma(i):
    so = ("s28", "s29", "s30", "0")[i]
    off = f" offset:{BLK*i}" if i else ""
    return f"buffer_load_dwordx4 v{D0+i}, s[4:7], {so} offen{off} lds"
def mads():
    return [f"v_mad_u32_u16 v{D0+i}, v{D0+i}, s31, v{CK}" for i in range(4)]
def xread(s): return f"ds_read_b128 {vr(X+4*s,4)}, v{XA}" + (f" offset:{16*s}" if s else "")
ADV = ["s_add_u32 s42, s42, %d" % SLOT, "s_cmp_eq_u32 s42, s41", "s_cselect_b32 s42, s40, s42"]

def phase(o, t, mfs, slots, fill1, fill2, pk1=(), pk2=()):
    g, v, den, num = G[t], V[t], DEN+16*t, NUM+16*t
    e = [f"v_exp_f32 v{g+i}, v{g+i}" for i in range(16)]
    r = [f"v_rcp_f32 v{g+i}, v{g+i}" for i in range(16)]
    def M(i):
        o(mfs[i])
        for x in slots[i]: o(x)
    k = 0
    for i in range(5):
        M(i)
        n = 3 if i < 4 else 4
        for x in e[k:k+n]: o(x)
        k += n
    for x in fill1: o(x)
    pk1 = list(pk1)
    for i in range(8):
        o(f"v_pk_add_f32 {vr(g+2*i,2)}, {vr(g+2*i,2)}, s[34:35]")
        if pk1: o(pk1.pop(0))
    k = 0
    for i in range(5, 9):
        M(i)
        n = 3 if i < 8 else 7
        for x in r[k:k+n]: o(x)
        k += n
    for x in fill2: o(x)
    pk2 = list(pk2)
    for i in range(8):
        o(f"v_pk_add_f32 {vr(den+2*i,2)}, {vr(den+2*i,2)}, {vr(g+2*i,2)}")
        if pk2: o(pk2.pop(0))
        o(f"v_pk_fma_f32 {vr(num+2*i,2)}, {vr(g+2*i,2)}, {vr(v+2*i,2)}, {vr(num+2*i,2)}")
        if pk2: o(pk2.pop(0))

def k2():
    o = A()
    def pay(i): return ENT + 4*(i//3) + i % 3 if i < 12 else QK + 2*(i-12)
    def dl8(i): return DLR + i if i < 12 else QK + 2*(i-12) + 1
    def meta(q): return ENT + 4*q + 3
    def pm(i): return f"s[{PM+2*i}:{PM+2*i+1}]"
    def celladdr():
        o(f"""
        v_mbcnt_lo_u32_b32 v20, -1, 0
        v_mbcnt_hi_u32_b32 v20, -1, v20
        s_lshl_b32 s48, s3, 6
        v_add_u32 v21, s48, v20
        v_lshrrev_b32 v22, 3, v21
        v_and_b32 v23, 7, v20
        v_lshlrev_b32 v23, 4, v23
        s_lshl_b32 s49, s2, 7
        v_lshl_add_u32 v{OF}, v22, 15, s49
        v_add_u32 v{OF}, v{OF}, v23
        """)
        for q in range(1, 4):
            o(f"v_add_u32 v{OF+q}, {q*64*32768}, v{OF}")
    def cellissue():
        for q in range(4):
            o(f"buffer_load_dwordx4 {vr(ENT+4*q,4)}, v{OF+q}, s[8:11], 0 offen")
    o(f"""
main_kernel:
    s_cmp_ge_u32 s2, {NB}
    s_cbranch_scc1 K2_END
    s_load_dwordx2 s[8:9], s[0:1], 88
    s_load_dwordx2 s[4:5], s[0:1], 0
    s_load_dwordx2 s[20:21], s[0:1], 72
@RT 4
@ST 0
    v_lshrrev_b32 v1, 6, v0
    s_mov_b32 s10, {P*32768}
    s_mov_b32 s11, 0x20000
    v_readfirstlane_b32 s3, v1
    """)
    if OPT["XMAP"]:
        o("""
        s_and_b32 s48, s2, 7
        s_lshr_b32 s2, s2, 3
        s_lshl_b32 s48, s48, 5
        s_or_b32 s2, s2, s48
        """)
    celladdr()
    o("s_waitcnt lgkmcnt(0)")
    cellissue()
    o(f"""
    s_add_u32 s16, s8, {WS_WF}
    s_addc_u32 s17, s9, 0
    s_mov_b32 s18, {32768+1024}
    s_mov_b32 s19, 0x20000
    s_add_u32 s12, s8, {WS_OVF}
    s_addc_u32 s13, s9, 0
    s_mov_b32 s14, {P*OVS+128}
    s_mov_b32 s15, 0x20000
    s_mov_b32 s45, 0
    s_mov_b32 s46, 0
    s_mov_b32 s47, 0
    s_sub_u32 s4, s4, {3*BLK}
    s_subb_u32 s5, s5, 0
    s_mov_b32 s6, {N*128+3*BLK}
    s_mov_b32 s7, 0x20000
    s_mov_b32 s22, {N*128}
    s_mov_b32 s23, 0x20000
    s_add_u32 s24, s8, {WS_ACC}
    s_addc_u32 s25, s9, 0
    s_mov_b32 s26, {N*512}
    s_mov_b32 s27, 0x20000
K2_RESTART:
    v_lshlrev_b32 v28, 2, v20
    v_add_u32 v29, 32768, v28
    buffer_load_dword v{WC}, v29, s[16:19], 0 offen
    buffer_load_dword v{WC+2}, v29, s[16:19], 0 offen offset:256
    v_lshlrev_b32 v24, 4, v21
    v_mov_b32 v96, 0xffff
    v_mov_b32 v97, 0xffff
    v_mov_b32 v98, 0xffff
    v_mov_b32 v99, 0xffff
    v_mov_b32 v100, 0
    v_lshlrev_b32 v30, 2, v21
    v_cmp_gt_u32 vcc, {(L_RING-L_CNT)//4}, v21
    ds_write_b128 v24, v[96:99]
    ds_write_b128 v24, v[96:99] offset:8192
    ds_write_b128 v24, v[96:99] offset:16384
    ds_write_b128 v24, v[96:99] offset:24576
    s_and_b64 exec, exec, vcc
    ds_write_b32 v30, v100 offset:{L_CNT}
    s_mov_b64 exec, -1
    s_mov_b32 s28, {3*BLK}
    s_and_b32 s48, s3, 1
    s_lshl_b32 s48, s48, 6
    v_and_b32 v102, 0x30, v20
    v_or_b32 v102, s48, v102
    v_xor_b32 v102, v102, v24
    s_mul_i32 s51, s2, {R*128}
    v_add_u32 v184, s51, v102
    v_and_b32 v185, 0xfff, v24
    v_lshlrev_b32 v110, 4, v20
    s_and_b32 s50, s3, 3
    s_lshl_b32 s50, s50, 10
    s_waitcnt lgkmcnt(0)
    s_barrier
    """)
    NLATE = 2
    o(f"""
    ; constants
    s_mov_b32 s29, {2*BLK}
    s_mov_b32 s30, {BLK}
    s_mov_b32 s31, 128
    s_mov_b32 s32, {N}
    s_mov_b32 s34, 1.0
    s_mov_b32 s35, 1.0
    s_mov_b32 s36, {f32(1e-6)}
    s_mov_b32 s37, {f32(1e-6)}
    s_mov_b32 s38, {f32(NLOG2E)}
    s_mov_b32 s39, {f32(NLOG2E)}
    s_mul_i32 s40, s3, {RINGW}
    s_add_u32 s40, s40, {L_RING}
    s_add_u32 s41, s40, {RINGW}
    s_lshl_b32 s48, s3, 2
    s_lshr_b32 s44, 0x72106453, s48
    s_and_b32 s44, s44, 7
    v_mov_b32 v{WC+1}, 0
    v_mov_b32 v{WC+3}, 0
    v_mov_b32 v{EP+1}, 0
    v_mov_b32 v31, 1
    v_bfe_u32 v{CK}, v20, 4, 1
    v_lshlrev_b32 v{CK}, 6, v{CK}
    v_xor_b32 v{CK}, v{CK}, v23
    ; column c = l&31, h = l>>5; r = (c3 c2 c4); i = c&3
    v_bfe_u32 v102, v20, 2, 2
    v_bfe_u32 v103, v20, 4, 1
    v_lshl_or_b32 v102, v102, 1, v103
    v_and_b32 v103, 3, v20
    v_lshl_or_b32 v{LE}, v102, 2, v103
    v_lshlrev_b32 v{LE}, 2, v{LE}
    v_lshrrev_b32 v{LD}, 3, v20
    v_lshlrev_b32 v{LD}, 4, v{LD}
    s_cmp_ge_u32 s44, 3
    s_cselect_b32 s49, 0x7c, 0x3c
    s_cmp_eq_u32 s44, 0
    s_cselect_b32 s49, 0x1c, s49
    s_mul_i32 s48, s44, {GS}
    v_and_b32 v189, s49, v{LD}
    v_and_b32 v190, s49, v{LE}
    v_add_u32 v189, s48, v189
    v_add_u32 v190, s48, v190
    v_add_u32 v{LE}, s48, v{LE}
    v_add_u32 v{LD}, s48, v{LD}
    v_and_b32 v122, 32, v20
    v_lshlrev_b32 v122, 1, v122
    v_mul_u32_u24 v{XL}, {BLK}, v103
    v_lshl_add_u32 v{XL}, v102, 7, v{XL}
    v_bfe_u32 v103, v102, 1, 1
    v_lshrrev_b32 v102, 5, v20
    v_xor_b32 v103, v103, v102
    v_lshl_add_u32 v{XL}, v103, 6, v{XL}
    s_mul_i32 s48, s2, {R}
    s_sub_u32 s49, {N}, s48
    s_min_u32 s49, s49, {R}
    v_cmp_gt_u32 s[52:53], s49, v21
    v_add_u32 v109, s48, v21
    s_or_b32 s48, s45, s47
    s_cbranch_scc1 K2_SLOWLOAD
    s_mov_b64 {pm(12)}, 0
    s_mov_b64 {pm(13)}, 0
    """)
    def ext(i):
        o(f"v_lshlrev_b32_sdwa v{dl8(i)}, 2, v{meta(i//3)} dst_sel:DWORD dst_unused:UNUSED_PAD src0_sel:DWORD src1_sel:BYTE_{i%3}")
    def cnt(i):
        o(f"s_mov_b64 exec, {pm(i)}\nds_add_rtn_u32 v{RK+i}, v{dl8(i)}, v31 offset:{L_CNT-4}")
    for q in range(4):
        o(f"s_waitcnt vmcnt({3-q+NLATE})")
        if q == 0: o("@SA 1")
        for j in range(3): ext(3*q+j)
        for j in range(3): o(f"v_cmp_ne_u32 {pm(3*q+j)}, 0, v{dl8(3*q+j)}")
        for j in range(3): cnt(3*q+j)
        o("s_mov_b64 exec, -1")
    o(f"""
    v_or3_b32 v102, v{meta(0)}, v{meta(1)}, v{meta(2)}
    v_or_b32 v102, v102, v{meta(3)}
    v_cmp_gt_i32 vcc, 0, v102
    s_cbranch_vccnz K2_QUICK
K2_COUNTED:
    s_mov_b64 exec, -1
@SA 11
    s_cmp_ge_u32 s3, 4
    s_cbranch_scc1 K2_YOUNG
    v_cmp_gt_u32 vcc, 32, v21
    """)
    for i in range(7):
        o(f"s_add_u32 m0, s50, {L_OWN+4096*i}\ns_add_u32 s49, s28, {4096*i}")
        if i == 6: o("s_mov_b64 exec, vcc")
        o("buffer_load_dwordx4 v184, s[4:7], s49 offen lds")
    o(f"""
    s_mov_b64 exec, -1
    s_waitcnt lgkmcnt(0)
    s_barrier
@SA 2
    ds_read_b32 v111, v30 offset:{L_CNT}
    s_waitcnt lgkmcnt(0)
    v_min_u32 v112, 63, v111
    v_sub_u32 v112, 63, v112
    v_lshlrev_b32 v112, 2, v112
    s_mov_b64 exec, s[52:53]
    ds_add_rtn_u32 v113, v112, v31 offset:{L_HIST}
    s_mov_b64 exec, -1
    s_waitcnt lgkmcnt(0)
    s_barrier
    ds_read_b32 v114, v28 offset:{L_HIST}
    s_waitcnt lgkmcnt(0)
    v_mov_b32 v115, v114
    """)
    scan(o, 114)
    o(f"""
    v_sub_u32 v114, v114, v115
    ds_bpermute_b32 v114, v112, v114
    v_mov_b32 v118, 128
    s_movk_i32 s48, {GS}
    s_waitcnt lgkmcnt(0)
    v_add_u32 v114, v114, v113
    v_add_u32 v115, 56, v114
    v_lshrrev_b32 v116, 5, v115
    v_and_b32 v117, 31, v115
    v_add_u32 v115, 8, v114
    v_cmp_gt_u32 vcc, 40, v114
    v_cmp_gt_u32 s[54:55], 8, v114
    v_lshrrev_b32 v119, 4, v115
    v_and_b32 v120, 15, v115
    v_cndmask_b32 v116, v116, v119, vcc
    v_cndmask_b32 v117, v117, v120, vcc
    v_cndmask_b32 v118, v118, 64, vcc
    v_cndmask_b32 v117, v117, v114, s[54:55]
    v_cndmask_b32 v23, v118, 32, s[54:55]
    v_lshlrev_b32 v117, 2, v117
    v_mad_u32_u24 v22, v116, s48, v117
    v_mul_u32_u24 v24, v111, v23
    v_lshl_or_b32 v23, v23, 16, v22
    v_add_u32 v24, 127, v24
    v_lshrrev_b32 v24, 7, v24
    v_lshlrev_b32 v25, 2, v116
    s_mov_b64 exec, s[52:53]
    ds_write_b32 v30, v23 offset:{L_NODE}
    ds_write_b32 v22, v109
    ds_max_u32 v25, v24 offset:{L_LG}
    s_mov_b64 exec, -1
    s_waitcnt vmcnt(0) lgkmcnt(0)
    s_branch K2_B4
K2_YOUNG:
    s_waitcnt lgkmcnt(0)
    s_barrier
@SA 2
    s_barrier
    """)
    for i in (4, 5, 0, 1, 2, 3, 6, 7):
        o(f"s_add_u32 m0, s50, {L_WB+4096*i}\ns_movk_i32 s49, {4096*i}")
        o("buffer_load_dwordx4 v185, s[16:19], s49 offen lds")
    if OPT["OUTTLB"]:
        o(f"""
        v_lshlrev_b32 v186, 12, v20
        v_min_u32 v186, {R*128-4}, v186
        s_mov_b64 exec, 0xff
        buffer_load_dword v187, v186, s[20:23], s51 offen
        s_mov_b64 exec, -1
        """)
    o(f"""
K2_B4:
    s_mul_i32 s48, s2, {R}
    s_barrier
@ST 3
    ds_read_b32 v121, v190
    ds_read_b128 {vr(D0,4)}, v189
    ds_read_b32 v123, v28 offset:{L_LG}
    """)
    def inf(i):
        o(f"s_mov_b64 exec, {pm(i)}\nds_read_b32 v{INF+i}, v{dl8(i)} offset:{L_NODE-4}")
    for i in range(12): inf(i)
    o(f"""
    s_mov_b64 exec, -1
    s_waitcnt lgkmcnt(12)
@SB 1
    v_subrev_u32 v121, s48, v121
    v_min_u32 v121, {R-1}, v121
    v_lshlrev_b32 v124, 3, v121
    v_and_b32 v124, 0x70, v124
    v_xor_b32 v124, v124, v122
    v_lshl_add_u32 v124, v121, 7, v124
    v_xor_b32 v125, 16, v124
    v_xor_b32 v126, 32, v124
    v_xor_b32 v127, 48, v124
    v_cmp_lt_u32 vcc, {LCAP}, v123
    v_readlane_b32 s43, v123, s44
    """)
    inf(12); inf(13)
    o(f"""
    s_mov_b64 exec, -1
    s_min_u32 s43, s43, {LCAP}
    s_lshl_b32 s48, s43, 7
    v_add_u32 v121, s48, v{LD}
    s_and_b32 s47, vcc_lo, 0xff
    s_and_b32 s33, vcc_lo, 0x1ff
    s_cmp_lg_u32 s47, 0
    s_waitcnt lgkmcnt(0)
@SB 11
    s_cbranch_scc1 K2_SLOWSCAT
    """)
    for i in range(NS):
        o(f"v_mad_u16 v{RK+i}, v{RK+i}, v{INF+i}, v{INF+i} op_sel:[0,1,0,0]")
    for i in range(NS):
        o(f"s_mov_b64 exec, {pm(i)}\nds_write_b32 v{RK+i}, v{pay(i)} offset:128")
    T = G[0]
    o(f"""
K2_SCATDONE:
    s_mov_b64 exec, -1
    ds_write_b128 v121, {vr(D0,4)} offset:128
    """)
    for s_ in range(4): o(f"ds_read_b128 {vr(X+4*s_,4)}, v{124+s_} offset:{L_OWN}")
    o(f"""
    v_mov_b32 v{VT}, v110
    s_mov_b32 m0, s40
@SB 2
    s_waitcnt vmcnt(0) lgkmcnt(0)
    s_barrier
@ST 6
    {'s_mov_b32 s76, s43' if DIAG else ''}
    ds_read_b128 {vr(D0,4)}, v{LD} offset:128
    ds_read_b128 {vr(T,4)}, v{LD} offset:256
    ds_read_b128 {vr(T+4,4)}, v{LD} offset:384
    ds_read_b128 {vr(T+8,4)}, v{LD} offset:512
    ds_read_b32 v{EP}, v{LE} offset:128
    """)
    def frags(reg, off):
        for f in range(8): o(f"ds_read_b128 {vr(reg+4*f,4)}, v{VT} offset:{L_WB+off+1024*f}")
    def rowdma(n):
        if n: o(f"s_add_u32 m0, s40, {n*SLOT}")
        for i in range(4): o(f"v_mad_u32_u16 v{D0+i}, v{T+4*(n-1)+i if n else D0+i}, s31, v{CK}")
        for i in range(4): o(dma(i))
    def aprime():
        k = 0
        for s_ in range(4):
            for t in range(2):
                o(mf(AP+16*t, WA+16*t+4*s_, X+4*s_, None if s_ == 0 else AP+16*t))
                for i in range(8*k, 8*k+8): o(f"v_mov_b32 v{DEN+i}, 0")
                k += 1
    if OPT["YD"]:
        o("s_cmp_ge_u32 s3, 4\ns_cbranch_scc1 K2_YPRE")
    o("s_waitcnt lgkmcnt(4)")
    rowdma(0)
    frags(WA, 16384)
    o("s_waitcnt lgkmcnt(8)")
    rowdma(1)
    frags(WB, 0)
    rowdma(2)
    o("s_waitcnt lgkmcnt(8)")
    frags(WV, 8192)
    aprime()
    if OPT["YD"]:
        o("s_branch K2_PRE\nK2_YPRE:")
        frags(WA, 16384)
        frags(WB, 0)
        o("s_waitcnt lgkmcnt(8)")
        frags(WV, 8192)
        aprime()
        if OPT["YD"] > 1: o("s_waitcnt lgkmcnt(0)")
        rowdma(0); rowdma(1); rowdma(2)
        o("K2_PRE:")
    for i in range(4): o(f"v_mad_u32_u16 v{D0+i}, v{T+8+i}, s31, v{CK}")
    o(f"""
    v_pk_sub_u16 v{EP}, v{EP}, s32 clamp
    v_add_u32 v{XA}, s40, v{XL}
    v_add_u32 v{LD}, {5*128}, v{LD}
    v_add_u32 v{LE}, {2*128}, v{LE}
    s_cmp_lg_u32 s46, 0
    s_cbranch_scc1 K2_LOADACC
K2_ACCDONE:
    s_mov_b32 m0, s40
    s_add_u32 s42, s40, {SLOT}
    """)
    for i in range(16): o(f"v_pk_mul_f32 {vr(AP+2*i,2)}, {vr(AP+2*i,2)}, s[38:39]")
    o(f"""
    s_waitcnt vmcnt(8)
@ST 7
    """)
    for s_ in range(4): o(xread(s_))
    ml = mf_list(0)
    o(ml[0])
    o("s_waitcnt lgkmcnt(0)")
    for i in range(4): o(ml[1+2*i]); o(dma(i))
    for i in range(4): o(ml[2+2*i])
    o(f"""
    v_add_u32 v{XA}, {SLOT}, v{XA}
@ST 8
    s_sub_u32 s43, s43, 1
    s_cbranch_scc1 K2_LOOPEND
    .p2align 4
K2_LOOP:
    """)
    sl = [[] for _ in range(9)]
    sl[0] = [f"ds_read_b32 v{VT}, v{LE}"]
    sl[1] = ["s_waitcnt vmcnt(8)"]
    sl[2] = [xread(0)]
    sl[3] = [f"ds_read_b128 {vr(D0,4)}, v{LD}"]
    sl[4] = [xread(1)]
    sl[5] = ["s_mov_b32 m0, s42"]
    sl[6] = [xread(2)]
    sl[7] = ["s_waitcnt lgkmcnt(2)"]
    sl[8] = [xread(3)]
    phase(o, 0, mf_list(1), sl,
          [f"v_add_u32 v{LE}, 128, v{LE}", f"v_add_u32 v{LD}, 128, v{LD}"],
          [f"v_pk_sub_u16 v{EP}, v{VT}, s32 clamp"] + mads(),
          pk1=(), pk2=ADV + ["s_waitcnt lgkmcnt(0)"])
    sl = [[] for _ in range(9)]
    for i in range(4): sl[i] = [dma(i)]
    sl[8] = ["s_sub_u32 s43, s43, 1"]
    phase(o, 1, mf_list(0), sl, [f"v_add_u32 v{XA}, s42, v{XL}"], [])
    o(f"""
    s_cbranch_scc0 K2_LOOP
K2_LOOPEND:
@ST 9
    v_mbcnt_lo_u32_b32 v{D0}, -1, 0
    v_mbcnt_hi_u32_b32 v{D0}, -1, v{D0}
    v_lshlrev_b32 v{D0+1}, 4, v{D0}
    v_subrev_u32 v{LE}, 128, v{LE}
    ds_read_b32 v{VT}, v{LE}
    """)
    for f in range(8):
        o(f"ds_read_b128 {vr(WB+4*f,4)}, v{D0+1} offset:{L_WU+1024*f}")
    o(f"""
    s_mov_b32 s48, 0
    s_cmp_ge_u32 s44, 3
    s_cbranch_scc1 K2_NOCOMB
    s_mov_b32 s48, 8
    """)
    for i in range(64): o(f"v_add_f32_dpp v{DEN+i}, v{DEN+i}, v{DEN+i} row_ror:8 row_mask:0xf bank_mask:0xf")
    o(f"""
    s_cmp_lg_u32 s44, 0
    s_cbranch_scc1 K2_NOCOMB
    s_mov_b32 s48, 12
    """)
    for i in range(64): o(f"v_add_f32_dpp v{DEN+i}, v{DEN+i}, v{DEN+i} row_ror:4 row_mask:0xf bank_mask:0xf")
    o(f"""
K2_NOCOMB:
    v_and_b32 v{D0+2}, s48, v{D0}
    v_cmp_eq_u32 vcc, 0, v{D0+2}
    v_mov_b32 v{D0+3}, 0xffff
    v_lshrrev_b32 v{D0}, 5, v{D0}
    s_waitcnt lgkmcnt(0)
    v_cndmask_b32 v{D0+2}, v{D0+3}, v{VT}, vcc
    s_cmp_lg_u32 s33, 0
    s_cbranch_scc1 K2_STOREACC
    v_lshlrev_b32 v{D0}, 6, v{D0}
    v_lshl_add_u32 v{D0}, v{D0+2}, 7, v{D0}
    """)
    for i in range(16): o(f"v_pk_add_f32 {vr(DEN+2*i,2)}, {vr(DEN+2*i,2)}, s[36:37]")
    k = 0
    for s in range(4):
        for t in range(2):
            o(mf(G[t], WB+16*t+4*s, X+4*s, None if s == 0 else G[t]))
            n = 3 if (s, t) != (3, 1) else 11
            for i in range(k, k+n): o(f"v_rcp_f32 v{DEN+i}, v{DEN+i}")
            k += n
    o("s_mov_b32 s49, 0xffff0000\ns_nop 0")
    for t in range(2):
        for i in range(8):
            o(f"v_pk_fma_f32 {vr(G[t]+2*i,2)}, {vr(NUM+16*t+2*i,2)}, {vr(DEN+16*t+2*i,2)}, {vr(G[t]+2*i,2)}")
    for t in range(2):
        for i in range(8):
            o(f"v_lshlrev_b32 v{V[t]+2*i}, 16, v{X+8*t+i}")
            o(f"v_and_b32 v{V[t]+2*i+1}, s49, v{X+8*t+i}")
            o(f"v_max_f32 v{G[t]+2*i}, 0, v{G[t]+2*i}")
            o(f"v_max_f32 v{G[t]+2*i+1}, 0, v{G[t]+2*i+1}")
            o(f"v_pk_add_f32 {vr(G[t]+2*i,2)}, {vr(G[t]+2*i,2)}, {vr(V[t]+2*i,2)}")
            o(f"v_cvt_pk_bf16_f32 v{DEN+8*t+i}, v{G[t]+2*i}, v{G[t]+2*i+1}")
            if i % 4 == 3:
                j = 2*t + i//4
                o(f"buffer_store_dwordx4 {vr(DEN+4*j,4)}, v{D0}, s[20:23], 0 offen" + (f" offset:{16*j}" if j else ""))
    o("@ST 10\n@RT 5")
    if DIAG: o("s_getreg_b32 s77, hwreg(HW_REG_HW_ID)\ns_getreg_b32 s78, hwreg(HW_REG_XCC_ID)")
    dump(o, 12, 0x4000000, ("s76", "s77", "s78", "s44"))
    o(f"""
K2_END:
    s_endpgm
K2_SLOWSCAT:
    s_movk_i32 s48, {LCAP*128}
    """)
    for i in range(NS):
        o(f"""
        s_mov_b64 exec, {pm(i)}
        v_mul_u32_u24_sdwa v{RK+i}, v{RK+i}, v{INF+i} dst_sel:DWORD dst_unused:UNUSED_PAD src0_sel:DWORD src1_sel:WORD_1
        v_cmp_gt_u32 vcc, s48, v{RK+i}
        v_add_u32_sdwa v{RK+i}, v{RK+i}, v{INF+i} dst_sel:DWORD dst_unused:UNUSED_PAD src0_sel:DWORD src1_sel:WORD_0
        s_andn2_b64 {pm(i)}, {pm(i)}, vcc
        s_mov_b64 exec, vcc
        ds_write_b32 v{RK+i}, v{pay(i)} offset:128
        """)
    def more(v):
        o(f"""
        v_mov_b32 v107, {L_LG+32}
        v_mov_b32 v108, 64
        s_and_b64 exec, exec, vcc
        ds_write_b32 v107, v108
        """)
    o(f"""
    s_branch K2_SCATDONE
K2_QUICK:
    s_mov_b64 s[54:55], vcc
    v_mov_b32 v102, 192
    v_mov_b32 v103, 128
    v_cmp_gt_i32 vcc, 0, v{meta(2)}
    v_lshrrev_b32 v104, 31, v{meta(0)}
    v_lshrrev_b32 v105, 31, v{meta(1)}
    v_cndmask_b32 v102, v102, v103, vcc
    v_cmp_gt_i32 vcc, 0, v{meta(1)}
    v_add_u32 v104, v104, v105
    v_lshrrev_b32 v105, 31, v{meta(2)}
    v_cndmask_b32 v102, v102, 64, vcc
    v_cmp_gt_i32 vcc, 0, v{meta(0)}
    v_add_u32 v104, v104, v105
    v_lshrrev_b32 v105, 31, v{meta(3)}
    v_cndmask_b32 v102, v102, 0, vcc
    v_add_u32 v104, v104, v105
    v_add_u32 v102, v102, v22
    v_mul_u32_u24 v102, {OVS}, v102
    v_add_u32 v103, v102, v23
    s_mov_b64 exec, s[54:55]
    buffer_load_dword v{QC}, v102, s[12:15], 0 offen
    buffer_load_dwordx4 {vr(QK,4)}, v103, s[12:15], 0 offen offset:16
    v_lshrrev_b32 v105, 3, v23
    v_lshlrev_b32 v104, 4, v104
    s_waitcnt vmcnt(0)
    s_cmp_lg_u32 s47, 0
    s_cbranch_scc1 K2_QKEEP
    v_cmp_lt_u32 vcc, v105, v{QC}
    v_cmp_eq_u32_sdwa {pm(12)}, s2, v{QK+1} src0_sel:DWORD src1_sel:WORD_1
    v_add_u32 v105, 1, v105
    s_and_b64 {pm(12)}, {pm(12)}, vcc
    v_cmp_lt_u32 vcc, v105, v{QC}
    v_cmp_eq_u32_sdwa {pm(13)}, s2, v{QK+3} src0_sel:DWORD src1_sel:WORD_1
    s_and_b64 {pm(13)}, {pm(13)}, vcc
K2_QKEEP:
    v_and_b32 v{QK+1}, 0xffff, v{QK+1}
    v_and_b32 v{QK+3}, 0xffff, v{QK+3}
    v_max_u32 v104, v104, v{QC}
    v_cmp_lt_u32 vcc, 16, v104
    """)
    more(0)
    cnt(12); cnt(13)
    o(f"""
    s_branch K2_COUNTED
K2_SLOWLOAD:
    s_waitcnt vmcnt(0)
    s_cmp_lg_u32 s45, 0
    s_cbranch_scc1 K2_CHUNK
    """)
    for i in range(12): ext(i)
    for i in range(12): cnt(i)
    o(f"""
    s_mov_b64 exec, -1
    v_or3_b32 v102, v{meta(0)}, v{meta(1)}, v{meta(2)}
    v_or_b32 v102, v102, v{meta(3)}
    v_cmp_gt_i32 vcc, 0, v102
    s_cbranch_vccnz K2_QUICK
    s_branch K2_COUNTED
K2_CHUNK:
    s_sub_u32 s48, s45, 16
    s_lshl_b32 s49, s48, 3
    v_mul_u32_u24 v102, {OVS}, v22
    v_lshrrev_b32 v105, 3, v23
    v_add_u32 v105, s48, v105
    v_add_u32 v106, 1, v105
    s_cmp_eq_u32 s48, 0
    s_cselect_b64 s[54:55], 0, -1
    v_mov_b32 v104, 0
    """)
    for q in range(4):
        o(f"""
        s_mov_b64 exec, -1
        v_mov_b32 v{QC+q}, 0
        v_cmp_gt_i32 vcc, 0, v{meta(q)}
        v_add3_u32 v103, v102, v23, s49
        s_mov_b64 exec, vcc
        buffer_load_dword v{QC+q}, v102, s[12:15], 0 offen
        buffer_load_dwordx4 {vr(INF+4*q,4)}, v103, s[12:15], 0 offen offset:16
        s_waitcnt vmcnt(0)
        v_max_u32 v104, v104, v{QC+q}
        s_andn2_b64 exec, vcc, s[54:55]
        v_mov_b32 v{QC+q}, 0
        s_or_b64 s[54:55], s[54:55], vcc
        s_mov_b64 exec, -1
        v_add_u32 v102, {64*OVS}, v102
        """)
    o(f"""
    s_cmp_lg_u32 s47, 0
    s_cbranch_scc1 K2_CKEEP
    s_mov_b64 {pm(12)}, 0
    s_mov_b64 {pm(13)}, 0
    """)
    for q in range(4):
        o(f"s_mov_b64 {pm(3*q+2)}, 0")
        for k in range(2):
            o(f"""
            v_cmp_lt_u32 vcc, v{105+k}, v{QC+q}
            v_cmp_eq_u32_sdwa {pm(3*q+k)}, s2, v{INF+4*q+2*k+1} src0_sel:DWORD src1_sel:WORD_1
            s_and_b64 {pm(3*q+k)}, {pm(3*q+k)}, vcc
            """)
    o("K2_CKEEP:")
    for q in range(4):
        for k in range(2):
            o(f"v_mov_b32 v{pay(3*q+k)}, v{INF+4*q+2*k}\nv_and_b32 v{dl8(3*q+k)}, 0xffff, v{INF+4*q+2*k+1}")
    o(f"v_cmp_lt_u32 vcc, s45, v104")
    more(0)
    for q in range(4):
        for k in range(2): cnt(3*q+k)
    o(f"""
    s_branch K2_COUNTED
K2_LOADACC:
    s_lshl_b32 s48, s43, 7
    s_sub_u32 s48, s48, 128
    v_add_u32 v{G[0]}, s48, v{LE}
    ds_read_b32 v{G[0]}, v{G[0]}
    v_mbcnt_lo_u32_b32 v{G[0]+1}, -1, 0
    v_mbcnt_hi_u32_b32 v{G[0]+1}, -1, v{G[0]+1}
    s_cmp_ge_u32 s44, 3
    s_cselect_b32 s48, 0, 8
    s_cmp_eq_u32 s44, 0
    s_cselect_b32 s48, 12, s48
    v_and_b32 v{G[0]+2}, s48, v{G[0]+1}
    v_cmp_eq_u32 vcc, 0, v{G[0]+2}
    v_mov_b32 v{G[0]+3}, 0xffff
    v_lshrrev_b32 v{G[0]+1}, 5, v{G[0]+1}
    v_lshlrev_b32 v{G[0]+1}, 8, v{G[0]+1}
    s_waitcnt lgkmcnt(0)
    v_cndmask_b32 v{G[0]}, v{G[0]+3}, v{G[0]}, vcc
    v_lshl_add_u32 v{G[0]}, v{G[0]}, 9, v{G[0]+1}
    """)
    for j in range(16):
        o(f"buffer_load_dwordx4 {vr(DEN+4*j,4)}, v{G[0]}, s[24:27], 0 offen offset:{16*j}")
    o(f"""
    s_waitcnt vmcnt(0)
    s_branch K2_ACCDONE
K2_STOREACC:
    v_lshlrev_b32 v{D0}, 8, v{D0}
    v_lshl_add_u32 v{D0}, v{D0+2}, 9, v{D0}
    """)
    for j in range(16):
        o(f"buffer_store_dwordx4 {vr(DEN+4*j,4)}, v{D0}, s[24:27], 0 offen offset:{16*j}")
    o(f"""
    s_mov_b32 s46, 1
    s_cmp_lg_u32 s47, 0
    s_cselect_b32 s48, 0, 16
    s_add_u32 s45, s45, s48
    s_waitcnt vmcnt(0) lgkmcnt(0)
    s_barrier
    """)
    celladdr()
    cellissue()
    o("s_branch K2_RESTART")
    return o.text()

def desc(name, nv, ns):
    return f"""
.p2align 6
.amdhsa_kernel {name}
  .amdhsa_next_free_vgpr {nv}
  .amdhsa_next_free_sgpr {ns}
  .amdhsa_accum_offset {(nv+3)//4*4}
  .amdhsa_group_segment_fixed_size 0
  .amdhsa_kernarg_size 96
  .amdhsa_user_sgpr_count 2
  .amdhsa_user_sgpr_kernarg_segment_ptr 1
  .amdhsa_system_sgpr_workgroup_id_x 1
  .amdhsa_float_denorm_mode_32 3
.end_amdhsa_kernel
"""

def build():
    hdr = open(f"cdna_kernels/{NAME}.s.ref").read().split("; Override launch geometry")[0]
    s = hdr
    s += f"; @launch kernel=part_kernel grid=({P+5},1,1) block=({896 if OPT['K1TLB'] else 832},1,1) lds={LDS1}\n"
    s += f"; @launch kernel=main_kernel grid=({NB},1,1) block=(512,1,1) lds={LDS2}\n"
    s += '.amdgcn_target "amdgcn-amd-amdhsa--gfx950"\n.text\n'
    for nm, body in (("part_kernel", k1()), ("main_kernel", k2())):
        s += f".globl {nm}\n.p2align 8\n.type {nm},@function\n" + body
    s += '.section .rodata,"a"\n' + desc("part_kernel", 52, 102 if DIAG else 24) + desc("main_kernel", 256, 102 if DIAG else 96)
    return s

if __name__ == "__main__":
    if "--diag" in sys.argv:
        sys.argv.remove("--diag"); DIAG = True
    out = sys.argv[1] if len(sys.argv) > 1 else f"cdna_kernels/{NAME}.s"
    open(out, "w").write(build())
```

```python
import sys, struct
NAME = "gather_scatter__edge_featured_mpnn_gatedgcn__graph"
N, E, R, P, CH = 50000, 800000, 196, 250, 3200
NB = 256
WS_WF, WS_OVF, WS_ACC = 0x800000, 0x840000, 0x1000000
OVS = 25728
K1_HIST = 40960
LDS1 = K1_HIST + 832*4
LCAP = 26
GS = (LCAP + 2) * 128
L_LIST = 0
L_WB = 8 * GS
L_WU = L_WB + 24576
L_NODE = L_WB + 32768
L_CNT = L_NODE + 1024
L_HIST = L_CNT + 1024
L_LG = L_HIST + 256
L_RING = L_LG + 64
BLK, SLOT = 1040, 4160
RINGW = 3 * SLOT
L_OWN = L_RING
LDS2 = L_RING + 8 * RINGW
def f32(x): return "0x%08x" % struct.unpack("<I", struct.pack("<f", x))[0]
NLOG2E = -1.4426950408889634

DIAG = False
import os
OPT = dict(XMAP=1, K1PF=0, K1SC="sc1", OUTSC="", YD=1, STSET=0, K1TLB=0, OUTTLB=1, OWNE=0)
for kv in os.environ.get("GOPT", "").split(","):
    if kv:
        k_, v_ = kv.split("="); OPT[k_] = v_.replace("_", " ") if k_.endswith("SC") else int(v_)
ST_REGS = [56, 58, 60, 62, 96, 98, 64, 66, 68, 70, 72, 92]
def stamp(o, i, real=False):
    if DIAG:
        r = ST_REGS[i]
        o(f"s_mem{'real' if real else ''}time s[{r}:{r+1}]")
def dump(o, n, base, extra=()):
    if DIAG:
        o("s_load_dwordx2 s[100:101], s[0:1], 88\ns_waitcnt lgkmcnt(0)\ns_mov_b64 exec, -1")
        for i in range(n): o(f"v_writelane_b32 v1, s{ST_REGS[i]}, {i}")
        for j, x in enumerate(extra): o(f"v_writelane_b32 v1, {x}, {n+j}")
        o(f"""v_mbcnt_lo_u32_b32 v2, -1, 0
        v_mbcnt_hi_u32_b32 v2, -1, v2
        s_lshl_b32 s99, s2, 4
        s_add_u32 s99, s99, s3
        s_lshl_b32 s99, s99, 8
        s_add_u32 s99, s99, {base}
        v_lshl_add_u32 v2, v2, 2, s99
        global_store_dword v2, v1, s[100:101]""")

class A:
    def __init__(s): s.l = []
    def __call__(s, t):
        for x in t.strip("\n").split("\n"):
            x = x.strip()
            if x.startswith("@SA") or x.startswith("@SB"):
                if OPT["STSET"] == (0 if x[2] == "A" else 1): stamp(s, int(x.split()[1]))
                continue
            if x.startswith("@ST") or x.startswith("@RT"):
                stamp(s, int(x.split()[1]), x.startswith("@RT")); continue
            if x: s.l.append(x if x.endswith(":") else "    " + x)
    def text(s): return "\n".join(s.l) + "\n"

def vr(a, n): return f"v[{a}:{a+n-1}]"

def scan(o, v):
    for sh in (1, 2, 4, 8):
        o(f"s_nop 1\nv_add_u32_dpp v{v}, v{v}, v{v} row_shr:{sh} row_mask:0xf bank_mask:0xf")
    o(f"s_nop 1\nv_add_u32_dpp v{v}, v{v}, v{v} row_bcast:15 row_mask:0xa bank_mask:0xf")
    o(f"s_nop 1\nv_add_u32_dpp v{v}, v{v}, v{v} row_bcast:31 row_mask:0xc bank_mask:0xf")

def k1():
    o = A()
    o(f"""
part_kernel:
    s_cmp_ge_u32 s2, {P}
    s_cbranch_scc1 K1_W
@RT 4
@ST 0
    s_load_dwordx2 s[8:9], s[0:1], 24
    s_load_dwordx4 s[4:7], s[0:1], 8
    s_load_dwordx2 s[10:11], s[0:1], 88
    s_load_dwordx2 s[22:23], s[0:1], 0
    """)
    if OPT["K1TLB"]:
        o("v_readfirstlane_b32 s15, v0\ns_cmp_ge_u32 s15, 832\ns_cbranch_scc1 K1_T")
    o(f"""
    v_cmp_gt_u32 vcc, 800, v0
    s_mul_i32 s12, s2, {CH*4}
    v_lshlrev_b32 v1, 4, v0
    v_add_u32 v2, s12, v1
    v_lshrrev_b32 v3, 1, v2
    v_lshlrev_b32 v4, 2, v0
    v_mov_b32 v40, 0
    v_mov_b32 v41, 0
    v_mov_b32 v42, 0
    v_mov_b32 v43, 0
    v_mov_b32 v6, 1
    s_mov_b64 s[20:21], vcc
    s_mov_b64 exec, vcc
    s_waitcnt lgkmcnt(0)
@ST 1
    global_load_dwordx4 v[8:11], v2, s[8:9]
    global_load_dwordx4 v[12:15], v2, s[6:7]
    global_load_dwordx2 v[16:17], v3, s[4:5]
    """)
    npf = 0
    if OPT["K1PF"]:
        o(f"""
        s_mul_i32 s13, s2, {200*128}
        v_cmp_gt_u32 vcc, {200*OPT["K1PF"]}, v0
        v_lshlrev_b32 v5, {8-OPT["K1PF"]}, v0
        v_add_u32 v5, s13, v5
        v_min_u32 v5, {N*128-4}, v5
        s_or_b32 vcc_lo, vcc_lo, 1
        s_and_b64 exec, exec, vcc
        global_load_dword v44, v5, s[22:23]
        """)
        npf = 1
    o(f"""
    s_mov_b64 exec, -1
    ds_write_b32 v4, v40 offset:{K1_HIST}
    ds_write_b128 v1, v[40:43]
    ds_write_b128 v1, v[40:43] offset:13312
    ds_write_b128 v1, v[40:43] offset:26624
    s_movk_i32 s13, -{R}
    s_mov_b32 s14, 0xffff0000
    s_mov_b64 exec, s[20:21]
    s_waitcnt lgkmcnt(0)
    s_barrier
    s_waitcnt vmcnt({2+npf})
@ST 2
    """)
    for i in range(4):
        o(f"""
        v_mul_u32_u24 v{20+i}, 0x14e5f, v{8+i}
        v_lshrrev_b32 v{20+i}, 24, v{20+i}
        v_lshlrev_b32 v{24+i}, 2, v{20+i}
        ds_add_rtn_u32 v{28+i}, v{24+i}, v6 offset:{K1_HIST}
        """)
    for i in range(4):
        o(f"""
        v_mad_i32_i24 v{8+i}, v{20+i}, s13, v{8+i}
        v_add_u32 v{8+i}, 1, v{8+i}
        """)
    o(f"""
    s_waitcnt vmcnt({npf})
    v_lshl_or_b32 v32, v16, 16, v12
    v_and_or_b32 v33, v16, s14, v13
    v_lshl_or_b32 v34, v17, 16, v14
    v_and_or_b32 v35, v17, s14, v15
    s_waitcnt lgkmcnt(0)
@ST 3
    v_max3_u32 v36, v28, v29, v30
    v_max_u32 v36, v36, v31
    v_cmp_lt_u32 vcc, 23, v36
    s_cbranch_vccnz K1_OVF
    """)
    def put(i):
        o(f"""
        v_and_b32 v36, 7, v{28+i}
        v_lshl_add_u32 v36, v{24+i}, 1, v36
        v_lshrrev_b32 v37, 3, v{28+i}
        v_lshlrev_b32 v36, 4, v36
        v_lshl_add_u32 v38, v37, 2, v36
        v_add_u32 v39, v37, v36
        ds_write_b32 v38, v{32+i}
        ds_write_b8 v39, v{8+i} offset:12
        """)
    for i in range(4): put(i)
    sc = (" " + OPT["K1SC"]) if OPT["K1SC"] else ""
    o(f"""
K1_PUTDONE:
    s_mov_b64 exec, -1
    s_lshl_b32 s12, s2, 15
    v_add_u32 v2, s12, v1
    v_add_u32 v3, 13312, v2
    v_add_u32 v5, 26624, v2
    v_cmp_gt_u32 vcc, {2048-2*832}, v0
    v_mov_b32 v7, {K1_HIST+1024}
    s_waitcnt lgkmcnt(0)
    s_barrier
@ST 6
    ds_read_b128 v[8:11], v1
    ds_read_b128 v[12:15], v1 offset:13312
    ds_read_b128 v[16:19], v1 offset:26624
    ds_read_b32 v20, v7
    s_waitcnt lgkmcnt(3)
    global_store_dwordx4 v2, v[8:11], s[10:11]{sc}
    s_waitcnt lgkmcnt(2)
    global_store_dwordx4 v3, v[12:15], s[10:11]{sc}
    s_and_b64 exec, exec, vcc
    s_waitcnt lgkmcnt(0)
    global_store_dwordx4 v5, v[16:19], s[10:11]{sc}
    s_mov_b64 exec, -1
    s_mul_i32 s12, s2, {OVS}
    s_add_u32 s12, s12, {WS_OVF}
    v_cmp_eq_u32 vcc, 831, v0
    v_mov_b32 v7, s12
    s_and_b64 exec, exec, vcc
    global_store_dword v7, v20, s[10:11]
    """)
    if DIAG: o("@ST 7\ns_waitcnt vmcnt(0)\n@ST 8\n@RT 5\ns_mov_b64 exec, -1\nv_lshrrev_b32 v1, 6, v0\ns_nop 1\nv_readfirstlane_b32 s3, v1")
    dump(o, 9, 0x4800000)
    o(f"""
    s_endpgm
K1_OVF:
    s_mul_i32 s12, s2, {OVS}
    s_add_u32 s12, s12, {WS_OVF+16}
    v_mov_b32 v7, {K1_HIST+1024}
    v_mov_b32 v45, 0x80000000
    """)
    for i in range(4):
        o(f"""
        s_mov_b64 exec, s[20:21]
        v_cmp_lt_u32 vcc, 23, v{28+i}
        s_andn2_b64 exec, exec, vcc
        """)
        put(i)
        o(f"""
        s_mov_b64 exec, vcc
        s_cbranch_execz K1_OVN{i}
        ds_add_rtn_u32 v36, v7, v6
        v_lshlrev_b32 v37, 7, v{20+i}
        """)
        for u in range(8): o(f"ds_or_b32 v37, v45 offset:{16*u+12}")
        o(f"""
        v_mov_b32 v46, v{32+i}
        v_lshlrev_b32 v47, 2, v{8+i}
        v_lshl_or_b32 v47, v{20+i}, 16, v47
        s_waitcnt lgkmcnt(0)
        v_lshl_add_u32 v36, v36, 3, s12
        global_store_dwordx2 v36, v[46:47], s[10:11]
K1_OVN{i}:
        """)
    o("s_branch K1_PUTDONE")
    if OPT["K1TLB"]:
        m = OPT["K1TLB"]
        o(f"""
K1_T:
        v_and_b32 v5, 63, v0
        s_barrier
        s_waitcnt lgkmcnt(0)
        """)
        if m & 8:
            o(f"""
            s_mul_i32 s12, s2, {CH*4}
            s_add_u32 s12, s12, {CH*4-4}
            v_mov_b32 v7, s12
            global_load_dword v44, v7, s[6:7]
            s_waitcnt vmcnt(0)
            """)
        if m & 2:
            o(f"""
            s_lshl_b32 s13, s2, 15
            v_lshlrev_b32 v7, 12, v5
            v_and_b32 v7, 0x7fff, v7
            v_add_u32 v7, s13, v7
            global_load_dword v45, v7, s[10:11]
            """)
        if m & 1:
            o(f"""
            s_lshr_b32 s13, s2, 3
            s_mul_i32 s13, s13, {50*4096}
            v_lshlrev_b32 v7, 12, v5
            v_add_u32 v7, s13, v7
            v_min_u32 v7, {N*128-4}, v7
            global_load_dword v44, v7, s[22:23]
            """)
        if m & 4:
            o(f"""
            s_mul_i32 s13, s2, {200*128}
            v_cmp_gt_u32 vcc, 50, v5
            v_lshl_add_u32 v7, v5, 7, s13
            s_mov_b64 exec, vcc
            """)
            for i in range(4):
                o(f"global_load_dword v44, v7, s[22:23]")
                if i < 3: o(f"v_add_u32 v7, {50*128}, v7")
        o("s_barrier\ns_endpgm")
    o(f"""
K1_W:
    s_cmp_ge_u32 s2, {P+5}
    s_cbranch_scc1 K1_END
    s_load_dwordx8 s[4:11], s[0:1], 32
    s_load_dwordx2 s[12:13], s[0:1], 64
    s_load_dwordx2 s[14:15], s[0:1], 88
    s_sub_u32 s3, s2, {P}
    v_bfe_u32 v1, v0, 2, 1
    v_lshlrev_b32 v1, 5, v1
    v_and_b32 v2, 3, v0
    v_add_u32 v1, v1, v2
    v_bfe_u32 v2, v0, 3, 2
    v_lshl_add_u32 v1, v2, 2, v1
    s_cmp_eq_u32 s3, 4
    s_cbranch_scc1 K1_WC
    v_cmp_gt_u32 vcc, 512, v0
    s_and_b64 exec, exec, vcc
    s_cbranch_execz K1_END
    v_bfe_u32 v2, v0, 8, 1
    v_lshl_add_u32 v1, v2, 4, v1
    v_lshlrev_b32 v1, 1, v1
    v_bfe_u32 v2, v0, 5, 1
    v_lshl_add_u32 v1, v2, 12, v1
    v_bfe_u32 v2, v0, 6, 2
    v_lshl_add_u32 v1, v2, 10, v1
    s_waitcnt lgkmcnt(0)
    s_mov_b32 s18, 1.0
    s_cmp_eq_u32 s3, 0
    s_cselect_b32 s16, s6, s12
    s_cselect_b32 s17, s7, s13
    s_cselect_b32 s18, {f32(NLOG2E)}, s18
    s_cmp_eq_u32 s3, 2
    s_cselect_b32 s16, s4, s16
    s_cselect_b32 s17, s5, s17
    s_cmp_eq_u32 s3, 3
    s_cselect_b32 s16, s10, s16
    s_cselect_b32 s17, s11, s17
    """)
    for j in range(8):
        o(f"global_load_ushort v{8+j}, v1, s[16:17] offset:{128*j}")
    o(f"""
    s_lshl_b32 s19, s3, 13
    s_add_u32 s19, s19, {WS_WF}
    v_lshlrev_b32 v2, 4, v0
    v_add_u32 v2, s19, v2
    s_waitcnt vmcnt(0)
    """)
    for j in range(8):
        o(f"v_lshlrev_b32 v{8+j}, 16, v{8+j}\nv_mul_f32 v{8+j}, s18, v{8+j}")
    for j in range(4):
        o(f"v_cvt_pk_bf16_f32 v{16+j}, v{8+2*j}, v{9+2*j}")
    o(f"""
    global_store_dwordx4 v2, v[16:19], s[14:15]
    s_endpgm
K1_WC:
    v_cmp_gt_u32 vcc, 128, v0
    s_and_b64 exec, exec, vcc
    s_cbranch_execz K1_END
    v_bfe_u32 v2, v0, 6, 1
    v_lshl_add_u32 v1, v2, 4, v1
    v_lshlrev_b32 v1, 1, v1
    s_waitcnt lgkmcnt(0)
    global_load_ushort v8, v1, s[8:9]
    v_lshlrev_b32 v2, 2, v0
    v_add_u32 v2, {WS_WF+32768}, v2
    v_and_b32 v3, 32, v0
    v_cmp_eq_u32 vcc, 0, v3
    v_mov_b32 v4, 0
    s_waitcnt vmcnt(0)
    v_lshlrev_b32 v8, 16, v8
    v_mul_f32 v8, {f32(NLOG2E)}, v8
    v_cvt_pk_bf16_f32 v9, v4, v8
    v_sub_f32 v10, v8, v9
    v_cvt_pk_bf16_f32 v10, v4, v10
    v_or_b32 v9, 0x7f7f, v9
    v_cndmask_b32 v9, v10, v9, vcc
    global_store_dword v2, v9, s[14:15]
K1_END:
    s_endpgm
    """)
    return o.text()

VT, XL, XA, CK, D0, LD, LE, EP, WC, X, WB, WV, AP, DEN, NUM = 0, 1, 2, 3, 4, 8, 9, 10, 12, 16, 32, 64, 96, 128, 160
G = (192, 224); V = (208, 240)
ENT, DLR, QK, RK, OF, QC, INF, WA = 128, 144, 156, 160, 176, 180, 192, 224
NS = 14
PM = 64

def mf(d, a, b, c):
    cs = "0" if c is None else vr(c, 16)
    return f"v_mfma_f32_32x32x16_bf16 {vr(d,16)}, {vr(a,4)}, {vr(b,4)}, {cs}"
def mfe(t):
    return f"v_mfma_f32_32x32x8_bf16 {vr(G[t],16)}, {vr(WC+2*t,2)}, {vr(EP,2)}, {vr(AP+16*t,16)}"
def mf_list(t):
    l = [mfe(t)]
    for s in range(4):
        l.append(mf(G[t], WB+16*t+4*s, X+4*s, G[t]))
        l.append(mf(V[t], WV+16*t+4*s, X+4*s, None if s == 0 else V[t]))
    return l
def dma(i):
    so = ("s28", "s29", "s30", "0")[i]
    off = f" offset:{BLK*i}" if i else ""
    return f"buffer_load_dwordx4 v{D0+i}, s[4:7], {so} offen{off} lds"
def mads():
    return [f"v_mad_u32_u16 v{D0+i}, v{D0+i}, s31, v{CK}" for i in range(4)]
def xread(s): return f"ds_read_b128 {vr(X+4*s,4)}, v{XA}" + (f" offset:{16*s}" if s else "")
ADV = ["s_add_u32 s42, s42, %d" % SLOT, "s_cmp_eq_u32 s42, s41", "s_cselect_b32 s42, s40, s42"]

def phase(o, t, mfs, slots, fill1, fill2, pk1=(), pk2=()):
    g, v, den, num = G[t], V[t], DEN+16*t, NUM+16*t
    e = [f"v_exp_f32 v{g+i}, v{g+i}" for i in range(16)]
    r = [f"v_rcp_f32 v{g+i}, v{g+i}" for i in range(16)]
    def M(i):
        o(mfs[i])
        for x in slots[i]: o(x)
    k = 0
    for i in range(5):
        M(i)
        n = 3 if i < 4 else 4
        for x in e[k:k+n]: o(x)
        k += n
    for x in fill1: o(x)
    pk1 = list(pk1)
    for i in range(8):
        o(f"v_pk_add_f32 {vr(g+2*i,2)}, {vr(g+2*i,2)}, s[34:35]")
        if pk1: o(pk1.pop(0))
    k = 0
    for i in range(5, 9):
        M(i)
        n = 3 if i < 8 else 7
        for x in r[k:k+n]: o(x)
        k += n
    for x in fill2: o(x)
    pk2 = list(pk2)
    for i in range(8):
        o(f"v_pk_add_f32 {vr(den+2*i,2)}, {vr(den+2*i,2)}, {vr(g+2*i,2)}")
        if pk2: o(pk2.pop(0))
        o(f"v_pk_fma_f32 {vr(num+2*i,2)}, {vr(g+2*i,2)}, {vr(v+2*i,2)}, {vr(num+2*i,2)}")
        if pk2: o(pk2.pop(0))

def k2():
    o = A()
    def pay(i): return ENT + 4*(i//3) + i % 3 if i < 12 else QK + 2*(i-12)
    def dl8(i): return DLR + i if i < 12 else QK + 2*(i-12) + 1
    def meta(q): return ENT + 4*q + 3
    def pm(i): return f"s[{PM+2*i}:{PM+2*i+1}]"
    def celladdr():
        o(f"""
        v_mbcnt_lo_u32_b32 v20, -1, 0
        v_mbcnt_hi_u32_b32 v20, -1, v20
        s_lshl_b32 s48, s3, 6
        v_add_u32 v21, s48, v20
        v_lshrrev_b32 v22, 3, v21
        v_and_b32 v23, 7, v20
        v_lshlrev_b32 v23, 4, v23
        s_lshl_b32 s49, s2, 7
        v_lshl_add_u32 v{OF}, v22, 15, s49
        v_add_u32 v{OF}, v{OF}, v23
        """)
        for q in range(1, 4):
            o(f"v_add_u32 v{OF+q}, {q*64*32768}, v{OF}")
    def cellissue():
        for q in range(4):
            o(f"buffer_load_dwordx4 {vr(ENT+4*q,4)}, v{OF+q}, s[8:11], 0 offen")
    o(f"""
main_kernel:
    s_cmp_ge_u32 s2, {NB}
    s_cbranch_scc1 K2_END
    s_load_dwordx2 s[8:9], s[0:1], 88
    s_load_dwordx2 s[4:5], s[0:1], 0
    s_load_dwordx2 s[20:21], s[0:1], 72
@RT 4
@ST 0
    v_lshrrev_b32 v1, 6, v0
    s_mov_b32 s10, {P*32768}
    s_mov_b32 s11, 0x20000
    v_readfirstlane_b32 s3, v1
    """)
    if OPT["XMAP"]:
        o("""
        s_and_b32 s48, s2, 7
        s_lshr_b32 s2, s2, 3
        s_lshl_b32 s48, s48, 5
        s_or_b32 s2, s2, s48
        """)
    celladdr()
    o("s_waitcnt lgkmcnt(0)")
    cellissue()
    o(f"""
    s_add_u32 s16, s8, {WS_WF}
    s_addc_u32 s17, s9, 0
    s_mov_b32 s18, {32768+1024}
    s_mov_b32 s19, 0x20000
    s_add_u32 s12, s8, {WS_OVF}
    s_addc_u32 s13, s9, 0
    s_mov_b32 s14, {P*OVS+128}
    s_mov_b32 s15, 0x20000
    s_mov_b32 s45, 0
    s_mov_b32 s46, 0
    s_mov_b32 s47, 0
    s_sub_u32 s4, s4, {3*BLK}
    s_subb_u32 s5, s5, 0
    s_mov_b32 s6, {N*128+3*BLK}
    s_mov_b32 s7, 0x20000
    s_mov_b32 s22, {N*128}
    s_mov_b32 s23, 0x20000
    s_add_u32 s24, s8, {WS_ACC}
    s_addc_u32 s25, s9, 0
    s_mov_b32 s26, {N*512}
    s_mov_b32 s27, 0x20000
K2_RESTART:
    v_lshlrev_b32 v28, 2, v20
    v_add_u32 v29, 32768, v28
    buffer_load_dword v{WC}, v29, s[16:19], 0 offen
    buffer_load_dword v{WC+2}, v29, s[16:19], 0 offen offset:256
    v_lshlrev_b32 v24, 4, v21
    v_mov_b32 v96, 0xffff
    v_mov_b32 v97, 0xffff
    v_mov_b32 v98, 0xffff
    v_mov_b32 v99, 0xffff
    v_mov_b32 v100, 0
    v_lshlrev_b32 v30, 2, v21
    v_cmp_gt_u32 vcc, {(L_RING-L_CNT)//4}, v21
    ds_write_b128 v24, v[96:99]
    ds_write_b128 v24, v[96:99] offset:8192
    ds_write_b128 v24, v[96:99] offset:16384
    ds_write_b128 v24, v[96:99] offset:24576
    s_and_b64 exec, exec, vcc
    ds_write_b32 v30, v100 offset:{L_CNT}
    s_mov_b64 exec, -1
    s_mov_b32 s28, {3*BLK}
    s_and_b32 s48, s3, 1
    s_lshl_b32 s48, s48, 6
    v_and_b32 v102, 0x30, v20
    v_or_b32 v102, s48, v102
    v_xor_b32 v102, v102, v24
    s_mul_i32 s51, s2, {R*128}
    v_add_u32 v184, s51, v102
    v_and_b32 v185, 0xfff, v24
    v_lshlrev_b32 v110, 4, v20
    s_and_b32 s50, s3, 3
    s_lshl_b32 s50, s50, 10
    s_waitcnt lgkmcnt(0)
    s_barrier
    """)
    NLATE = 2
    if OPT["OWNE"]:
        o(f"""
        v_cmp_gt_u32 vcc, 32, v21
        s_lshl_b32 s48, s3, 10
        s_or_b32 vcc_lo, vcc_lo, 1
        """)
        for i in range(4):
            o(f"s_add_u32 m0, s48, {L_OWN+8192*i}\ns_add_u32 s49, s28, {8192*i}")
            if i == 3: o("s_mov_b64 exec, vcc")
            o("buffer_load_dwordx4 v184, s[4:7], s49 offen lds")
        o("s_mov_b64 exec, -1")
        NLATE = 6
    o(f"""
    ; constants
    s_mov_b32 s29, {2*BLK}
    s_mov_b32 s30, {BLK}
    s_mov_b32 s31, 128
    s_mov_b32 s32, {N}
    s_mov_b32 s34, 1.0
    s_mov_b32 s35, 1.0
    s_mov_b32 s36, {f32(1e-6)}
    s_mov_b32 s37, {f32(1e-6)}
    s_mov_b32 s38, {f32(NLOG2E)}
    s_mov_b32 s39, {f32(NLOG2E)}
    s_mul_i32 s40, s3, {RINGW}
    s_add_u32 s40, s40, {L_RING}
    s_add_u32 s41, s40, {RINGW}
    s_lshl_b32 s48, s3, 2
    s_lshr_b32 s44, 0x72106453, s48
    s_and_b32 s44, s44, 7
    v_mov_b32 v{WC+1}, 0
    v_mov_b32 v{WC+3}, 0
    v_mov_b32 v{EP+1}, 0
    v_mov_b32 v31, 1
    v_bfe_u32 v{CK}, v20, 4, 1
    v_lshlrev_b32 v{CK}, 6, v{CK}
    v_xor_b32 v{CK}, v{CK}, v23
    ; column c = l&31, h = l>>5; r = (c3 c2 c4); i = c&3
    v_bfe_u32 v102, v20, 2, 2
    v_bfe_u32 v103, v20, 4, 1
    v_lshl_or_b32 v102, v102, 1, v103
    v_and_b32 v103, 3, v20
    v_lshl_or_b32 v{LE}, v102, 2, v103
    v_lshlrev_b32 v{LE}, 2, v{LE}
    v_lshrrev_b32 v{LD}, 3, v20
    v_lshlrev_b32 v{LD}, 4, v{LD}
    s_cmp_ge_u32 s44, 3
    s_cselect_b32 s49, 0x7c, 0x3c
    s_cmp_eq_u32 s44, 0
    s_cselect_b32 s49, 0x1c, s49
    s_mul_i32 s48, s44, {GS}
    v_and_b32 v189, s49, v{LD}
    v_and_b32 v190, s49, v{LE}
    v_add_u32 v189, s48, v189
    v_add_u32 v190, s48, v190
    v_add_u32 v{LE}, s48, v{LE}
    v_add_u32 v{LD}, s48, v{LD}
    v_and_b32 v122, 32, v20
    v_lshlrev_b32 v122, 1, v122
    v_mul_u32_u24 v{XL}, {BLK}, v103
    v_lshl_add_u32 v{XL}, v102, 7, v{XL}
    v_bfe_u32 v103, v102, 1, 1
    v_lshrrev_b32 v102, 5, v20
    v_xor_b32 v103, v103, v102
    v_lshl_add_u32 v{XL}, v103, 6, v{XL}
    s_mul_i32 s48, s2, {R}
    s_sub_u32 s49, {N}, s48
    s_min_u32 s49, s49, {R}
    v_cmp_gt_u32 s[52:53], s49, v21
    v_add_u32 v109, s48, v21
    s_or_b32 s48, s45, s47
    s_cbranch_scc1 K2_SLOWLOAD
    s_mov_b64 {pm(12)}, 0
    s_mov_b64 {pm(13)}, 0
    """)
    def ext(i):
        o(f"v_lshlrev_b32_sdwa v{dl8(i)}, 2, v{meta(i//3)} dst_sel:DWORD dst_unused:UNUSED_PAD src0_sel:DWORD src1_sel:BYTE_{i%3}")
    def cnt(i):
        o(f"s_mov_b64 exec, {pm(i)}\nds_add_rtn_u32 v{RK+i}, v{dl8(i)}, v31 offset:{L_CNT-4}")
    for q in range(4):
        o(f"s_waitcnt vmcnt({3-q+NLATE})")
        if q == 0: o("@SA 1")
        for j in range(3): ext(3*q+j)
        for j in range(3): o(f"v_cmp_ne_u32 {pm(3*q+j)}, 0, v{dl8(3*q+j)}")
        for j in range(3): cnt(3*q+j)
        o("s_mov_b64 exec, -1")
    o(f"""
    v_or3_b32 v102, v{meta(0)}, v{meta(1)}, v{meta(2)}
    v_or_b32 v102, v102, v{meta(3)}
    v_cmp_gt_i32 vcc, 0, v102
    s_cbranch_vccnz K2_QUICK
K2_COUNTED:
    s_mov_b64 exec, -1
@SA 11
    s_cmp_ge_u32 s3, 4
    s_cbranch_scc1 K2_YOUNG
    v_cmp_gt_u32 vcc, 32, v21
    """)
    for i in range(0 if OPT["OWNE"] else 7):
        o(f"s_add_u32 m0, s50, {L_OWN+4096*i}\ns_add_u32 s49, s28, {4096*i}")
        if i == 6: o("s_mov_b64 exec, vcc")
        o("buffer_load_dwordx4 v184, s[4:7], s49 offen lds")
    o(f"""
    s_mov_b64 exec, -1
    s_waitcnt lgkmcnt(0)
    s_barrier
@SA 2
    ds_read_b32 v111, v30 offset:{L_CNT}
    s_waitcnt lgkmcnt(0)
    v_min_u32 v112, 63, v111
    v_sub_u32 v112, 63, v112
    v_lshlrev_b32 v112, 2, v112
    s_mov_b64 exec, s[52:53]
    ds_add_rtn_u32 v113, v112, v31 offset:{L_HIST}
    s_mov_b64 exec, -1
    s_waitcnt lgkmcnt(0)
    s_barrier
    ds_read_b32 v114, v28 offset:{L_HIST}
    s_waitcnt lgkmcnt(0)
    v_mov_b32 v115, v114
    """)
    scan(o, 114)
    o(f"""
    v_sub_u32 v114, v114, v115
    ds_bpermute_b32 v114, v112, v114
    v_mov_b32 v118, 128
    s_movk_i32 s48, {GS}
    s_waitcnt lgkmcnt(0)
    v_add_u32 v114, v114, v113
    v_add_u32 v115, 56, v114
    v_lshrrev_b32 v116, 5, v115
    v_and_b32 v117, 31, v115
    v_add_u32 v115, 8, v114
    v_cmp_gt_u32 vcc, 40, v114
    v_cmp_gt_u32 s[54:55], 8, v114
    v_lshrrev_b32 v119, 4, v115
    v_and_b32 v120, 15, v115
    v_cndmask_b32 v116, v116, v119, vcc
    v_cndmask_b32 v117, v117, v120, vcc
    v_cndmask_b32 v118, v118, 64, vcc
    v_cndmask_b32 v117, v117, v114, s[54:55]
    v_cndmask_b32 v23, v118, 32, s[54:55]
    v_lshlrev_b32 v117, 2, v117
    v_mad_u32_u24 v22, v116, s48, v117
    v_mul_u32_u24 v24, v111, v23
    v_lshl_or_b32 v23, v23, 16, v22
    v_add_u32 v24, 127, v24
    v_lshrrev_b32 v24, 7, v24
    v_lshlrev_b32 v25, 2, v116
    s_mov_b64 exec, s[52:53]
    ds_write_b32 v30, v23 offset:{L_NODE}
    ds_write_b32 v22, v109
    ds_max_u32 v25, v24 offset:{L_LG}
    s_mov_b64 exec, -1
    s_waitcnt vmcnt(0) lgkmcnt(0)
    s_branch K2_B4
K2_YOUNG:
    s_waitcnt lgkmcnt(0)
    s_barrier
@SA 2
    s_barrier
    """)
    for i in (4, 5, 0, 1, 2, 3, 6, 7):
        o(f"s_add_u32 m0, s50, {L_WB+4096*i}\ns_movk_i32 s49, {4096*i}")
        o("buffer_load_dwordx4 v185, s[16:19], s49 offen lds")
    if OPT["OWNE"]: o("s_waitcnt vmcnt(8)")
    if OPT["OUTTLB"]:
        o(f"""
        v_lshlrev_b32 v186, 12, v20
        v_min_u32 v186, {R*128-4}, v186
        s_mov_b64 exec, 0xff
        buffer_load_dword v187, v186, s[20:23], s51 offen
        s_mov_b64 exec, -1
        """)
    o(f"""
K2_B4:
    s_mul_i32 s48, s2, {R}
    s_barrier
@ST 3
    ds_read_b32 v121, v190
    ds_read_b128 {vr(D0,4)}, v189
    ds_read_b32 v123, v28 offset:{L_LG}
    """)
    def inf(i):
        o(f"s_mov_b64 exec, {pm(i)}\nds_read_b32 v{INF+i}, v{dl8(i)} offset:{L_NODE-4}")
    for i in range(12): inf(i)
    o(f"""
    s_mov_b64 exec, -1
    s_waitcnt lgkmcnt(12)
@SB 1
    v_subrev_u32 v121, s48, v121
    v_min_u32 v121, {R-1}, v121
    v_lshlrev_b32 v124, 3, v121
    v_and_b32 v124, 0x70, v124
    v_xor_b32 v124, v124, v122
    v_lshl_add_u32 v124, v121, 7, v124
    v_xor_b32 v125, 16, v124
    v_xor_b32 v126, 32, v124
    v_xor_b32 v127, 48, v124
    v_cmp_lt_u32 vcc, {LCAP}, v123
    v_readlane_b32 s43, v123, s44
    """)
    inf(12); inf(13)
    o(f"""
    s_mov_b64 exec, -1
    s_min_u32 s43, s43, {LCAP}
    s_lshl_b32 s48, s43, 7
    v_add_u32 v121, s48, v{LD}
    s_and_b32 s47, vcc_lo, 0xff
    s_and_b32 s33, vcc_lo, 0x1ff
    s_cmp_lg_u32 s47, 0
    s_waitcnt lgkmcnt(0)
@SB 11
    s_cbranch_scc1 K2_SLOWSCAT
    """)
    for i in range(NS):
        o(f"v_mad_u16 v{RK+i}, v{RK+i}, v{INF+i}, v{INF+i} op_sel:[0,1,0,0]")
    for i in range(NS):
        o(f"s_mov_b64 exec, {pm(i)}\nds_write_b32 v{RK+i}, v{pay(i)} offset:128")
    T = G[0]
    o(f"""
K2_SCATDONE:
    s_mov_b64 exec, -1
    ds_write_b128 v121, {vr(D0,4)} offset:128
    """)
    for s_ in range(4): o(f"ds_read_b128 {vr(X+4*s_,4)}, v{124+s_} offset:{L_OWN}")
    o(f"""
    v_mov_b32 v{VT}, v110
    s_mov_b32 m0, s40
@SB 2
    s_waitcnt vmcnt(0) lgkmcnt(0)
    s_barrier
@ST 6
    {'s_mov_b32 s76, s43' if DIAG else ''}
    ds_read_b128 {vr(D0,4)}, v{LD} offset:128
    ds_read_b128 {vr(T,4)}, v{LD} offset:256
    ds_read_b128 {vr(T+4,4)}, v{LD} offset:384
    ds_read_b128 {vr(T+8,4)}, v{LD} offset:512
    ds_read_b32 v{EP}, v{LE} offset:128
    """)
    def frags(reg, off):
        for f in range(8): o(f"ds_read_b128 {vr(reg+4*f,4)}, v{VT} offset:{L_WB+off+1024*f}")
    def rowdma(n):
        if n: o(f"s_add_u32 m0, s40, {n*SLOT}")
        for i in range(4): o(f"v_mad_u32_u16 v{D0+i}, v{T+4*(n-1)+i if n else D0+i}, s31, v{CK}")
        for i in range(4): o(dma(i))
    def aprime():
        k = 0
        for s_ in range(4):
            for t in range(2):
                o(mf(AP+16*t, WA+16*t+4*s_, X+4*s_, None if s_ == 0 else AP+16*t))
                for i in range(8*k, 8*k+8): o(f"v_mov_b32 v{DEN+i}, 0")
                k += 1
    if OPT["YD"]:
        o("s_cmp_ge_u32 s3, 4\ns_cbranch_scc1 K2_YPRE")
    o("s_waitcnt lgkmcnt(4)")
    rowdma(0)
    frags(WA, 16384)
    o("s_waitcnt lgkmcnt(8)")
    rowdma(1)
    frags(WB, 0)
    rowdma(2)
    o("s_waitcnt lgkmcnt(8)")
    frags(WV, 8192)
    aprime()
    if OPT["YD"]:
        o("s_branch K2_PRE\nK2_YPRE:")
        frags(WA, 16384)
        frags(WB, 0)
        o("s_waitcnt lgkmcnt(8)")
        frags(WV, 8192)
        aprime()
        if OPT["YD"] > 1: o("s_waitcnt lgkmcnt(0)")
        rowdma(0); rowdma(1); rowdma(2)
        o("K2_PRE:")
    for i in range(4): o(f"v_mad_u32_u16 v{D0+i}, v{T+8+i}, s31, v{CK}")
    o(f"""
    v_pk_sub_u16 v{EP}, v{EP}, s32 clamp
    v_add_u32 v{XA}, s40, v{XL}
    v_add_u32 v{LD}, {5*128}, v{LD}
    v_add_u32 v{LE}, {2*128}, v{LE}
    s_cmp_lg_u32 s46, 0
    s_cbranch_scc1 K2_LOADACC
K2_ACCDONE:
    s_mov_b32 m0, s40
    s_add_u32 s42, s40, {SLOT}
    """)
    for i in range(16): o(f"v_pk_mul_f32 {vr(AP+2*i,2)}, {vr(AP+2*i,2)}, s[38:39]")
    o(f"""
    s_waitcnt vmcnt(8)
@ST 7
    """)
    for s_ in range(4): o(xread(s_))
    ml = mf_list(0)
    o(ml[0])
    o("s_waitcnt lgkmcnt(0)")
    for i in range(4): o(ml[1+2*i]); o(dma(i))
    for i in range(4): o(ml[2+2*i])
    o(f"""
    v_add_u32 v{XA}, {SLOT}, v{XA}
@ST 8
    s_sub_u32 s43, s43, 1
    s_cbranch_scc1 K2_LOOPEND
    .p2align 4
K2_LOOP:
    """)
    sl = [[] for _ in range(9)]
    sl[0] = [f"ds_read_b32 v{VT}, v{LE}"]
    sl[1] = ["s_waitcnt vmcnt(8)"]
    sl[2] = [xread(0)]
    sl[3] = [f"ds_read_b128 {vr(D0,4)}, v{LD}"]
    sl[4] = [xread(1)]
    sl[5] = ["s_mov_b32 m0, s42"]
    sl[6] = [xread(2)]
    sl[7] = ["s_waitcnt lgkmcnt(2)"]
    sl[8] = [xread(3)]
    phase(o, 0, mf_list(1), sl,
          [f"v_add_u32 v{LE}, 128, v{LE}", f"v_add_u32 v{LD}, 128, v{LD}"],
          [f"v_pk_sub_u16 v{EP}, v{VT}, s32 clamp"] + mads(),
          pk1=(), pk2=ADV + ["s_waitcnt lgkmcnt(0)"])
    sl = [[] for _ in range(9)]
    for i in range(4): sl[i] = [dma(i)]
    sl[8] = ["s_sub_u32 s43, s43, 1"]
    phase(o, 1, mf_list(0), sl, [f"v_add_u32 v{XA}, s42, v{XL}"], [])
    o(f"""
    s_cbranch_scc0 K2_LOOP
K2_LOOPEND:
@ST 9
    v_mbcnt_lo_u32_b32 v{D0}, -1, 0
    v_mbcnt_hi_u32_b32 v{D0}, -1, v{D0}
    v_lshlrev_b32 v{D0+1}, 4, v{D0}
    v_subrev_u32 v{LE}, 128, v{LE}
    ds_read_b32 v{VT}, v{LE}
    """)
    for f in range(8):
        o(f"ds_read_b128 {vr(WB+4*f,4)}, v{D0+1} offset:{L_WU+1024*f}")
    o(f"""
    s_mov_b32 s48, 0
    s_cmp_ge_u32 s44, 3
    s_cbranch_scc1 K2_NOCOMB
    s_mov_b32 s48, 8
    """)
    for i in range(64): o(f"v_add_f32_dpp v{DEN+i}, v{DEN+i}, v{DEN+i} row_ror:8 row_mask:0xf bank_mask:0xf")
    o(f"""
    s_cmp_lg_u32 s44, 0
    s_cbranch_scc1 K2_NOCOMB
    s_mov_b32 s48, 12
    """)
    for i in range(64): o(f"v_add_f32_dpp v{DEN+i}, v{DEN+i}, v{DEN+i} row_ror:4 row_mask:0xf bank_mask:0xf")
    o(f"""
K2_NOCOMB:
    v_and_b32 v{D0+2}, s48, v{D0}
    v_cmp_eq_u32 vcc, 0, v{D0+2}
    v_mov_b32 v{D0+3}, 0xffff
    v_lshrrev_b32 v{D0}, 5, v{D0}
    s_waitcnt lgkmcnt(0)
    v_cndmask_b32 v{D0+2}, v{D0+3}, v{VT}, vcc
    s_cmp_lg_u32 s33, 0
    s_cbranch_scc1 K2_STOREACC
    v_lshlrev_b32 v{D0}, 6, v{D0}
    v_lshl_add_u32 v{D0}, v{D0+2}, 7, v{D0}
    """)
    for i in range(16): o(f"v_pk_add_f32 {vr(DEN+2*i,2)}, {vr(DEN+2*i,2)}, s[36:37]")
    k = 0
    for s in range(4):
        for t in range(2):
            o(mf(G[t], WB+16*t+4*s, X+4*s, None if s == 0 else G[t]))
            n = 3 if (s, t) != (3, 1) else 11
            for i in range(k, k+n): o(f"v_rcp_f32 v{DEN+i}, v{DEN+i}")
            k += n
    o("s_mov_b32 s49, 0xffff0000\ns_nop 0")
    for t in range(2):
        for i in range(8):
            o(f"v_pk_fma_f32 {vr(G[t]+2*i,2)}, {vr(NUM+16*t+2*i,2)}, {vr(DEN+16*t+2*i,2)}, {vr(G[t]+2*i,2)}")
    for t in range(2):
        for i in range(8):
            o(f"v_lshlrev_b32 v{V[t]+2*i}, 16, v{X+8*t+i}")
            o(f"v_and_b32 v{V[t]+2*i+1}, s49, v{X+8*t+i}")
            o(f"v_max_f32 v{G[t]+2*i}, 0, v{G[t]+2*i}")
            o(f"v_max_f32 v{G[t]+2*i+1}, 0, v{G[t]+2*i+1}")
            o(f"v_pk_add_f32 {vr(G[t]+2*i,2)}, {vr(G[t]+2*i,2)}, {vr(V[t]+2*i,2)}")
            o(f"v_cvt_pk_bf16_f32 v{DEN+8*t+i}, v{G[t]+2*i}, v{G[t]+2*i+1}")
            if i % 4 == 3:
                j = 2*t + i//4
                o(f"buffer_store_dwordx4 {vr(DEN+4*j,4)}, v{D0}, s[20:23], 0 offen" + (f" offset:{16*j}" if j else "") + (" " + OPT["OUTSC"] if OPT["OUTSC"] else ""))
    o("@ST 10\n@RT 5")
    if DIAG: o("s_getreg_b32 s77, hwreg(HW_REG_HW_ID)\ns_getreg_b32 s78, hwreg(HW_REG_XCC_ID)")
    dump(o, 12, 0x4000000, ("s76", "s77", "s78", "s44"))
    o(f"""
K2_END:
    s_endpgm
K2_SLOWSCAT:
    s_movk_i32 s48, {LCAP*128}
    """)
    for i in range(NS):
        o(f"""
        s_mov_b64 exec, {pm(i)}
        v_mul_u32_u24_sdwa v{RK+i}, v{RK+i}, v{INF+i} dst_sel:DWORD dst_unused:UNUSED_PAD src0_sel:DWORD src1_sel:WORD_1
        v_cmp_gt_u32 vcc, s48, v{RK+i}
        v_add_u32_sdwa v{RK+i}, v{RK+i}, v{INF+i} dst_sel:DWORD dst_unused:UNUSED_PAD src0_sel:DWORD src1_sel:WORD_0
        s_andn2_b64 {pm(i)}, {pm(i)}, vcc
        s_mov_b64 exec, vcc
        ds_write_b32 v{RK+i}, v{pay(i)} offset:128
        """)
    def more(v):
        o(f"""
        v_mov_b32 v107, {L_LG+32}
        v_mov_b32 v108, 64
        s_and_b64 exec, exec, vcc
        ds_write_b32 v107, v108
        """)
    o(f"""
    s_branch K2_SCATDONE
K2_QUICK:
    s_mov_b64 s[54:55], vcc
    v_mov_b32 v102, 192
    v_mov_b32 v103, 128
    v_cmp_gt_i32 vcc, 0, v{meta(2)}
    v_lshrrev_b32 v104, 31, v{meta(0)}
    v_lshrrev_b32 v105, 31, v{meta(1)}
    v_cndmask_b32 v102, v102, v103, vcc
    v_cmp_gt_i32 vcc, 0, v{meta(1)}
    v_add_u32 v104, v104, v105
    v_lshrrev_b32 v105, 31, v{meta(2)}
    v_cndmask_b32 v102, v102, 64, vcc
    v_cmp_gt_i32 vcc, 0, v{meta(0)}
    v_add_u32 v104, v104, v105
    v_lshrrev_b32 v105, 31, v{meta(3)}
    v_cndmask_b32 v102, v102, 0, vcc
    v_add_u32 v104, v104, v105
    v_add_u32 v102, v102, v22
    v_mul_u32_u24 v102, {OVS}, v102
    v_add_u32 v103, v102, v23
    s_mov_b64 exec, s[54:55]
    buffer_load_dword v{QC}, v102, s[12:15], 0 offen
    buffer_load_dwordx4 {vr(QK,4)}, v103, s[12:15], 0 offen offset:16
    v_lshrrev_b32 v105, 3, v23
    v_lshlrev_b32 v104, 4, v104
    s_waitcnt vmcnt(0)
    s_cmp_lg_u32 s47, 0
    s_cbranch_scc1 K2_QKEEP
    v_cmp_lt_u32 vcc, v105, v{QC}
    v_cmp_eq_u32_sdwa {pm(12)}, s2, v{QK+1} src0_sel:DWORD src1_sel:WORD_1
    v_add_u32 v105, 1, v105
    s_and_b64 {pm(12)}, {pm(12)}, vcc
    v_cmp_lt_u32 vcc, v105, v{QC}
    v_cmp_eq_u32_sdwa {pm(13)}, s2, v{QK+3} src0_sel:DWORD src1_sel:WORD_1
    s_and_b64 {pm(13)}, {pm(13)}, vcc
K2_QKEEP:
    v_and_b32 v{QK+1}, 0xffff, v{QK+1}
    v_and_b32 v{QK+3}, 0xffff, v{QK+3}
    v_max_u32 v104, v104, v{QC}
    v_cmp_lt_u32 vcc, 16, v104
    """)
    more(0)
    cnt(12); cnt(13)
    o(f"""
    s_branch K2_COUNTED
K2_SLOWLOAD:
    s_waitcnt vmcnt(0)
    s_cmp_lg_u32 s45, 0
    s_cbranch_scc1 K2_CHUNK
    """)
    for i in range(12): ext(i)
    for i in range(12): cnt(i)
    o(f"""
    s_mov_b64 exec, -1
    v_or3_b32 v102, v{meta(0)}, v{meta(1)}, v{meta(2)}
    v_or_b32 v102, v102, v{meta(3)}
    v_cmp_gt_i32 vcc, 0, v102
    s_cbranch_vccnz K2_QUICK
    s_branch K2_COUNTED
K2_CHUNK:
    s_sub_u32 s48, s45, 16
    s_lshl_b32 s49, s48, 3
    v_mul_u32_u24 v102, {OVS}, v22
    v_lshrrev_b32 v105, 3, v23
    v_add_u32 v105, s48, v105
    v_add_u32 v106, 1, v105
    s_cmp_eq_u32 s48, 0
    s_cselect_b64 s[54:55], 0, -1
    v_mov_b32 v104, 0
    """)
    for q in range(4):
        o(f"""
        s_mov_b64 exec, -1
        v_mov_b32 v{QC+q}, 0
        v_cmp_gt_i32 vcc, 0, v{meta(q)}
        v_add3_u32 v103, v102, v23, s49
        s_mov_b64 exec, vcc
        buffer_load_dword v{QC+q}, v102, s[12:15], 0 offen
        buffer_load_dwordx4 {vr(INF+4*q,4)}, v103, s[12:15], 0 offen offset:16
        s_waitcnt vmcnt(0)
        v_max_u32 v104, v104, v{QC+q}
        s_andn2_b64 exec, vcc, s[54:55]
        v_mov_b32 v{QC+q}, 0
        s_or_b64 s[54:55], s[54:55], vcc
        s_mov_b64 exec, -1
        v_add_u32 v102, {64*OVS}, v102
        """)
    o(f"""
    s_cmp_lg_u32 s47, 0
    s_cbranch_scc1 K2_CKEEP
    s_mov_b64 {pm(12)}, 0
    s_mov_b64 {pm(13)}, 0
    """)
    for q in range(4):
        o(f"s_mov_b64 {pm(3*q+2)}, 0")
        for k in range(2):
            o(f"""
            v_cmp_lt_u32 vcc, v{105+k}, v{QC+q}
            v_cmp_eq_u32_sdwa {pm(3*q+k)}, s2, v{INF+4*q+2*k+1} src0_sel:DWORD src1_sel:WORD_1
            s_and_b64 {pm(3*q+k)}, {pm(3*q+k)}, vcc
            """)
    o("K2_CKEEP:")
    for q in range(4):
        for k in range(2):
            o(f"v_mov_b32 v{pay(3*q+k)}, v{INF+4*q+2*k}\nv_and_b32 v{dl8(3*q+k)}, 0xffff, v{INF+4*q+2*k+1}")
    o(f"v_cmp_lt_u32 vcc, s45, v104")
    more(0)
    for q in range(4):
        for k in range(2): cnt(3*q+k)
    o(f"""
    s_branch K2_COUNTED
K2_LOADACC:
    s_lshl_b32 s48, s43, 7
    s_sub_u32 s48, s48, 128
    v_add_u32 v{G[0]}, s48, v{LE}
    ds_read_b32 v{G[0]}, v{G[0]}
    v_mbcnt_lo_u32_b32 v{G[0]+1}, -1, 0
    v_mbcnt_hi_u32_b32 v{G[0]+1}, -1, v{G[0]+1}
    s_cmp_ge_u32 s44, 3
    s_cselect_b32 s48, 0, 8
    s_cmp_eq_u32 s44, 0
    s_cselect_b32 s48, 12, s48
    v_and_b32 v{G[0]+2}, s48, v{G[0]+1}
    v_cmp_eq_u32 vcc, 0, v{G[0]+2}
    v_mov_b32 v{G[0]+3}, 0xffff
    v_lshrrev_b32 v{G[0]+1}, 5, v{G[0]+1}
    v_lshlrev_b32 v{G[0]+1}, 8, v{G[0]+1}
    s_waitcnt lgkmcnt(0)
    v_cndmask_b32 v{G[0]}, v{G[0]+3}, v{G[0]}, vcc
    v_lshl_add_u32 v{G[0]}, v{G[0]}, 9, v{G[0]+1}
    """)
    for j in range(16):
        o(f"buffer_load_dwordx4 {vr(DEN+4*j,4)}, v{G[0]}, s[24:27], 0 offen offset:{16*j}")
    o(f"""
    s_waitcnt vmcnt(0)
    s_branch K2_ACCDONE
K2_STOREACC:
    v_lshlrev_b32 v{D0}, 8, v{D0}
    v_lshl_add_u32 v{D0}, v{D0+2}, 9, v{D0}
    """)
    for j in range(16):
        o(f"buffer_store_dwordx4 {vr(DEN+4*j,4)}, v{D0}, s[24:27], 0 offen offset:{16*j}")
    o(f"""
    s_mov_b32 s46, 1
    s_cmp_lg_u32 s47, 0
    s_cselect_b32 s48, 0, 16
    s_add_u32 s45, s45, s48
    s_waitcnt vmcnt(0) lgkmcnt(0)
    s_barrier
    """)
    celladdr()
    cellissue()
    o("s_branch K2_RESTART")
    return o.text()

def desc(name, nv, ns):
    return f"""
.p2align 6
.amdhsa_kernel {name}
  .amdhsa_next_free_vgpr {nv}
  .amdhsa_next_free_sgpr {ns}
  .amdhsa_accum_offset {(nv+3)//4*4}
  .amdhsa_group_segment_fixed_size 0
  .amdhsa_kernarg_size 96
  .amdhsa_user_sgpr_count 2
  .amdhsa_user_sgpr_kernarg_segment_ptr 1
  .amdhsa_system_sgpr_workgroup_id_x 1
  .amdhsa_float_denorm_mode_32 3
.end_amdhsa_kernel
"""

def build():
    hdr = open(f"cdna_kernels/{NAME}.s.ref").read().split("; Override launch geometry")[0]
    s = hdr
    s += f"; @launch kernel=part_kernel grid=({P+5},1,1) block=({896 if OPT['K1TLB'] else 832},1,1) lds={LDS1}\n"
    s += f"; @launch kernel=main_kernel grid=({NB},1,1) block=(512,1,1) lds={LDS2}\n"
    s += '.amdgcn_target "amdgcn-amd-amdhsa--gfx950"\n.text\n'
    for nm, body in (("part_kernel", k1()), ("main_kernel", k2())):
        s += f".globl {nm}\n.p2align 8\n.type {nm},@function\n" + body
    s += '.section .rodata,"a"\n' + desc("part_kernel", 52, 102 if DIAG else 24) + desc("main_kernel", 256, 102 if DIAG else 96)
    return s

if __name__ == "__main__":
    if "--diag" in sys.argv:
        sys.argv.remove("--diag"); DIAG = True
    out = sys.argv[1] if len(sys.argv) > 1 else f"cdna_kernels/{NAME}.s"
    open(out, "w").write(build())
```

```python
import sys, struct
NAME = "gather_scatter__edge_featured_mpnn_gatedgcn__graph"
N, E, R, P, CH = 50000, 800000, 196, 250, 3200
NB = 256
WS_WF, WS_OVF, WS_ACC = 0x800000, 0x840000, 0x1000000
OVS = 25728
K1_HIST = 40960
LDS1 = K1_HIST + 832*4
LCAP = 24
NMS = 208
GS = (LCAP + 2) * 128
L_LIST = 0
L_WB = 8 * GS
L_WU = L_WB + 24576
L_CNT = L_WB + 32768
L_HIST = L_CNT + 1024
L_LG = L_HIST + 256
L_RING = L_LG + 64
BLK, SLOT = 1040, 4160
RINGW = 3 * SLOT
L_OWN = L_RING
L_NM = L_RING + 25600
LDS2 = L_RING + 8 * RINGW
def f32(x): return "0x%08x" % struct.unpack("<I", struct.pack("<f", x))[0]
NLOG2E = -1.4426950408889634

DIAG = False
import os
OPT = dict(XMAP=1, K1PF=0, K1SC="sc1", OUTSC="", YD=1, STSET=0, K1TLB=0, OUTTLB=1, OWNE=0, PRIO=0, PK=0)
for kv in os.environ.get("GOPT", "").split(","):
    if kv:
        k_, v_ = kv.split("="); OPT[k_] = v_.replace("_", " ") if k_.endswith("SC") else int(v_)
ST_REGS = [56, 58, 60, 62, 96, 98, 64, 66, 68, 70, 72, 92]
def stamp(o, i, real=False):
    if DIAG:
        r = ST_REGS[i]
        o(f"s_mem{'real' if real else ''}time s[{r}:{r+1}]")
def dump(o, n, base, extra=()):
    if DIAG:
        o("s_load_dwordx2 s[100:101], s[0:1], 88\ns_waitcnt lgkmcnt(0)\ns_mov_b64 exec, -1")
        for i in range(n): o(f"v_writelane_b32 v1, s{ST_REGS[i]}, {i}")
        for j, x in enumerate(extra): o(f"v_writelane_b32 v1, {x}, {n+j}")
        o(f"""v_mbcnt_lo_u32_b32 v2, -1, 0
        v_mbcnt_hi_u32_b32 v2, -1, v2
        s_lshl_b32 s99, s2, 4
        s_add_u32 s99, s99, s3
        s_lshl_b32 s99, s99, 8
        s_add_u32 s99, s99, {base}
        v_lshl_add_u32 v2, v2, 2, s99
        global_store_dword v2, v1, s[100:101]""")

class A:
    def __init__(s): s.l = []
    def __call__(s, t):
        for x in t.strip("\n").split("\n"):
            x = x.strip()
            if x.startswith("@SA") or x.startswith("@SB"):
                if OPT["STSET"] == (0 if x[2] == "A" else 1): stamp(s, int(x.split()[1]))
                continue
            if x.startswith("@ST") or x.startswith("@RT"):
                stamp(s, int(x.split()[1]), x.startswith("@RT")); continue
            if x: s.l.append(x if x.endswith(":") else "    " + x)
    def text(s): return "\n".join(s.l) + "\n"

def vr(a, n): return f"v[{a}:{a+n-1}]"

def scan(o, v):
    for sh in (1, 2, 4, 8):
        o(f"s_nop 1\nv_add_u32_dpp v{v}, v{v}, v{v} row_shr:{sh} row_mask:0xf bank_mask:0xf")
    o(f"s_nop 1\nv_add_u32_dpp v{v}, v{v}, v{v} row_bcast:15 row_mask:0xa bank_mask:0xf")
    o(f"s_nop 1\nv_add_u32_dpp v{v}, v{v}, v{v} row_bcast:31 row_mask:0xc bank_mask:0xf")

def k1():
    o = A()
    o(f"""
part_kernel:
    s_cmp_ge_u32 s2, {P}
    s_cbranch_scc1 K1_W
@RT 4
@ST 0
    s_load_dwordx2 s[8:9], s[0:1], 24
    s_load_dwordx4 s[4:7], s[0:1], 8
    s_load_dwordx2 s[10:11], s[0:1], 88
    s_load_dwordx2 s[22:23], s[0:1], 0
    """)
    if OPT["K1TLB"]:
        o("v_readfirstlane_b32 s15, v0\ns_cmp_ge_u32 s15, 832\ns_cbranch_scc1 K1_T")
    o(f"""
    v_cmp_gt_u32 vcc, 800, v0
    s_mul_i32 s12, s2, {CH*4}
    v_lshlrev_b32 v1, 4, v0
    v_add_u32 v2, s12, v1
    v_lshrrev_b32 v3, 1, v2
    v_lshlrev_b32 v4, 2, v0
    v_mov_b32 v40, 0
    v_mov_b32 v41, 0
    v_mov_b32 v42, 0
    v_mov_b32 v43, 0
    v_mov_b32 v6, 1
    s_mov_b64 s[20:21], vcc
    s_mov_b64 exec, vcc
    s_waitcnt lgkmcnt(0)
@ST 1
    global_load_dwordx4 v[8:11], v2, s[8:9]
    global_load_dwordx4 v[12:15], v2, s[6:7]
    global_load_dwordx2 v[16:17], v3, s[4:5]
    """)
    npf = 0
    if OPT["K1PF"]:
        o(f"""
        s_mul_i32 s13, s2, {200*128}
        v_cmp_gt_u32 vcc, {200*OPT["K1PF"]}, v0
        v_lshlrev_b32 v5, {8-OPT["K1PF"]}, v0
        v_add_u32 v5, s13, v5
        v_min_u32 v5, {N*128-4}, v5
        s_or_b32 vcc_lo, vcc_lo, 1
        s_and_b64 exec, exec, vcc
        global_load_dword v44, v5, s[22:23]
        """)
        npf = 1
    o(f"""
    s_mov_b64 exec, -1
    ds_write_b32 v4, v40 offset:{K1_HIST}
    ds_write_b128 v1, v[40:43]
    ds_write_b128 v1, v[40:43] offset:13312
    ds_write_b128 v1, v[40:43] offset:26624
    s_movk_i32 s13, -{R}
    s_mov_b32 s14, 0xffff0000
    s_mov_b64 exec, s[20:21]
    s_waitcnt lgkmcnt(0)
    s_barrier
    s_waitcnt vmcnt({2+npf})
@ST 2
    """)
    for i in range(4):
        o(f"""
        v_mul_u32_u24 v{20+i}, 0x14e5f, v{8+i}
        v_lshrrev_b32 v{20+i}, 24, v{20+i}
        v_lshlrev_b32 v{24+i}, 2, v{20+i}
        ds_add_rtn_u32 v{28+i}, v{24+i}, v6 offset:{K1_HIST}
        """)
    for i in range(4):
        o(f"""
        v_mad_i32_i24 v{8+i}, v{20+i}, s13, v{8+i}
        v_add_u32 v{8+i}, 1, v{8+i}
        """)
    o(f"""
    s_waitcnt vmcnt({npf})
    v_lshl_or_b32 v32, v16, 16, v12
    v_and_or_b32 v33, v16, s14, v13
    v_lshl_or_b32 v34, v17, 16, v14
    v_and_or_b32 v35, v17, s14, v15
    s_waitcnt lgkmcnt(0)
@ST 3
    v_max3_u32 v36, v28, v29, v30
    v_max_u32 v36, v36, v31
    v_cmp_lt_u32 vcc, 23, v36
    s_cbranch_vccnz K1_OVF
    """)
    def put(i):
        o(f"""
        v_and_b32 v36, 7, v{28+i}
        v_lshl_add_u32 v36, v{24+i}, 1, v36
        v_lshrrev_b32 v37, 3, v{28+i}
        v_lshlrev_b32 v36, 4, v36
        v_lshl_add_u32 v38, v37, 2, v36
        v_add_u32 v39, v37, v36
        ds_write_b32 v38, v{32+i}
        ds_write_b8 v39, v{8+i} offset:12
        """)
    for i in range(4): put(i)
    sc = (" " + OPT["K1SC"]) if OPT["K1SC"] else ""
    o(f"""
K1_PUTDONE:
    s_mov_b64 exec, -1
    s_lshl_b32 s12, s2, 15
    v_add_u32 v2, s12, v1
    v_add_u32 v3, 13312, v2
    v_add_u32 v5, 26624, v2
    v_cmp_gt_u32 vcc, {2048-2*832}, v0
    v_mov_b32 v7, {K1_HIST+1024}
    s_waitcnt lgkmcnt(0)
    s_barrier
@ST 6
    ds_read_b128 v[8:11], v1
    ds_read_b128 v[12:15], v1 offset:13312
    ds_read_b128 v[16:19], v1 offset:26624
    ds_read_b32 v20, v7
    s_waitcnt lgkmcnt(3)
    global_store_dwordx4 v2, v[8:11], s[10:11]{sc}
    s_waitcnt lgkmcnt(2)
    global_store_dwordx4 v3, v[12:15], s[10:11]{sc}
    s_and_b64 exec, exec, vcc
    s_waitcnt lgkmcnt(0)
    global_store_dwordx4 v5, v[16:19], s[10:11]{sc}
    s_mov_b64 exec, -1
    s_mul_i32 s12, s2, {OVS}
    s_add_u32 s12, s12, {WS_OVF}
    v_cmp_eq_u32 vcc, 831, v0
    v_mov_b32 v7, s12
    s_and_b64 exec, exec, vcc
    global_store_dword v7, v20, s[10:11]
    """)
    if DIAG: o("@ST 7\ns_waitcnt vmcnt(0)\n@ST 8\n@RT 5\ns_mov_b64 exec, -1\nv_lshrrev_b32 v1, 6, v0\ns_nop 1\nv_readfirstlane_b32 s3, v1")
    dump(o, 9, 0x4800000)
    o(f"""
    s_endpgm
K1_OVF:
    s_mul_i32 s12, s2, {OVS}
    s_add_u32 s12, s12, {WS_OVF+16}
    v_mov_b32 v7, {K1_HIST+1024}
    v_mov_b32 v45, 0x80000000
    """)
    for i in range(4):
        o(f"""
        s_mov_b64 exec, s[20:21]
        v_cmp_lt_u32 vcc, 23, v{28+i}
        s_andn2_b64 exec, exec, vcc
        """)
        put(i)
        o(f"""
        s_mov_b64 exec, vcc
        s_cbranch_execz K1_OVN{i}
        ds_add_rtn_u32 v36, v7, v6
        v_lshlrev_b32 v37, 7, v{20+i}
        """)
        for u in range(8): o(f"ds_or_b32 v37, v45 offset:{16*u+12}")
        o(f"""
        v_mov_b32 v46, v{32+i}
        v_lshlrev_b32 v47, 2, v{8+i}
        v_lshl_or_b32 v47, v{20+i}, 16, v47
        s_waitcnt lgkmcnt(0)
        v_lshl_add_u32 v36, v36, 3, s12
        global_store_dwordx2 v36, v[46:47], s[10:11]
K1_OVN{i}:
        """)
    o("s_branch K1_PUTDONE")
    if OPT["K1TLB"]:
        m = OPT["K1TLB"]
        o(f"""
K1_T:
        v_and_b32 v5, 63, v0
        s_barrier
        s_waitcnt lgkmcnt(0)
        """)
        if m & 8:
            o(f"""
            s_mul_i32 s12, s2, {CH*4}
            s_add_u32 s12, s12, {CH*4-4}
            v_mov_b32 v7, s12
            global_load_dword v44, v7, s[6:7]
            s_waitcnt vmcnt(0)
            """)
        if m & 2:
            o(f"""
            s_lshl_b32 s13, s2, 15
            v_lshlrev_b32 v7, 12, v5
            v_and_b32 v7, 0x7fff, v7
            v_add_u32 v7, s13, v7
            global_load_dword v45, v7, s[10:11]
            """)
        if m & 1:
            o(f"""
            s_lshr_b32 s13, s2, 3
            s_mul_i32 s13, s13, {50*4096}
            v_lshlrev_b32 v7, 12, v5
            v_add_u32 v7, s13, v7
            v_min_u32 v7, {N*128-4}, v7
            global_load_dword v44, v7, s[22:23]
            """)
        if m & 4:
            o(f"""
            s_mul_i32 s13, s2, {200*128}
            v_cmp_gt_u32 vcc, 50, v5
            v_lshl_add_u32 v7, v5, 7, s13
            s_mov_b64 exec, vcc
            """)
            for i in range(4):
                o(f"global_load_dword v44, v7, s[22:23]")
                if i < 3: o(f"v_add_u32 v7, {50*128}, v7")
        o("s_barrier\ns_endpgm")
    o(f"""
K1_W:
    s_cmp_ge_u32 s2, {P+5}
    s_cbranch_scc1 K1_END
    s_load_dwordx8 s[4:11], s[0:1], 32
    s_load_dwordx2 s[12:13], s[0:1], 64
    s_load_dwordx2 s[14:15], s[0:1], 88
    s_sub_u32 s3, s2, {P}
    v_bfe_u32 v1, v0, 2, 1
    v_lshlrev_b32 v1, 5, v1
    v_and_b32 v2, 3, v0
    v_add_u32 v1, v1, v2
    v_bfe_u32 v2, v0, 3, 2
    v_lshl_add_u32 v1, v2, 2, v1
    s_cmp_eq_u32 s3, 4
    s_cbranch_scc1 K1_WC
    v_cmp_gt_u32 vcc, 512, v0
    s_and_b64 exec, exec, vcc
    s_cbranch_execz K1_END
    v_bfe_u32 v2, v0, 8, 1
    v_lshl_add_u32 v1, v2, 4, v1
    v_lshlrev_b32 v1, 1, v1
    v_bfe_u32 v2, v0, 5, 1
    v_lshl_add_u32 v1, v2, 12, v1
    v_bfe_u32 v2, v0, 6, 2
    v_lshl_add_u32 v1, v2, 10, v1
    s_waitcnt lgkmcnt(0)
    s_mov_b32 s18, 1.0
    s_cmp_eq_u32 s3, 0
    s_cselect_b32 s16, s6, s12
    s_cselect_b32 s17, s7, s13
    s_cselect_b32 s18, {f32(NLOG2E)}, s18
    s_cmp_eq_u32 s3, 2
    s_cselect_b32 s16, s4, s16
    s_cselect_b32 s17, s5, s17
    s_cmp_eq_u32 s3, 3
    s_cselect_b32 s16, s10, s16
    s_cselect_b32 s17, s11, s17
    """)
    for j in range(8):
        o(f"global_load_ushort v{8+j}, v1, s[16:17] offset:{128*j}")
    o(f"""
    s_lshl_b32 s19, s3, 13
    s_add_u32 s19, s19, {WS_WF}
    v_lshlrev_b32 v2, 4, v0
    v_add_u32 v2, s19, v2
    s_waitcnt vmcnt(0)
    """)
    for j in range(8):
        o(f"v_lshlrev_b32 v{8+j}, 16, v{8+j}\nv_mul_f32 v{8+j}, s18, v{8+j}")
    for j in range(4):
        o(f"v_cvt_pk_bf16_f32 v{16+j}, v{8+2*j}, v{9+2*j}")
    o(f"""
    global_store_dwordx4 v2, v[16:19], s[14:15]
    s_endpgm
K1_WC:
    v_cmp_gt_u32 vcc, 128, v0
    s_and_b64 exec, exec, vcc
    s_cbranch_execz K1_END
    v_bfe_u32 v2, v0, 6, 1
    v_lshl_add_u32 v1, v2, 4, v1
    v_lshlrev_b32 v1, 1, v1
    s_waitcnt lgkmcnt(0)
    global_load_ushort v8, v1, s[8:9]
    v_lshlrev_b32 v2, 2, v0
    v_add_u32 v2, {WS_WF+32768}, v2
    v_and_b32 v3, 32, v0
    v_cmp_eq_u32 vcc, 0, v3
    v_mov_b32 v4, 0
    s_waitcnt vmcnt(0)
    v_lshlrev_b32 v8, 16, v8
    v_mul_f32 v8, {f32(NLOG2E)}, v8
    v_cvt_pk_bf16_f32 v9, v4, v8
    v_sub_f32 v10, v8, v9
    v_cvt_pk_bf16_f32 v10, v4, v10
    v_or_b32 v9, 0x7f7f, v9
    v_cndmask_b32 v9, v10, v9, vcc
    global_store_dword v2, v9, s[14:15]
K1_END:
    s_endpgm
    """)
    return o.text()

VT, XL, XA, CK, D0, LD, LE, EP, WC, X, WB, WV, AP, DEN, NUM = 0, 1, 2, 3, 4, 8, 9, 10, 12, 16, 32, 64, 96, 128, 160
G = (192, 224); V = (208, 240)
ENT, DLR, QK, RK, OF, QC, INF, WA = 128, 144, 156, 160, 176, 180, 192, 224
NS = 14
PM = 64

def mf(d, a, b, c):
    cs = "0" if c is None else vr(c, 16)
    return f"v_mfma_f32_32x32x16_bf16 {vr(d,16)}, {vr(a,4)}, {vr(b,4)}, {cs}"
def mfe(t):
    return f"v_mfma_f32_32x32x8_bf16 {vr(G[t],16)}, {vr(WC+2*t,2)}, {vr(EP,2)}, {vr(AP+16*t,16)}"
def mf_list(t):
    l = [mfe(t)]
    for s in range(4):
        l.append(mf(G[t], WB+16*t+4*s, X+4*s, G[t]))
        l.append(mf(V[t], WV+16*t+4*s, X+4*s, None if s == 0 else V[t]))
    return l
def dma(i):
    so = ("s28", "s29", "s30", "0")[i]
    off = f" offset:{BLK*i}" if i else ""
    return f"buffer_load_dwordx4 v{D0+i}, s[4:7], {so} offen{off} lds"
def mads():
    return [f"v_mad_u32_u16 v{D0+i}, v{D0+i}, s31, v{CK}" for i in range(4)]
def xread(s): return f"ds_read_b128 {vr(X+4*s,4)}, v{XA}" + (f" offset:{16*s}" if s else "")
ADV = ["s_add_u32 s42, s42, %d" % SLOT, "s_cmp_eq_u32 s42, s41", "s_cselect_b32 s42, s40, s42"]

def phase(o, t, mfs, slots, fill1, fill2, pk1=(), pk2=()):
    g, v, den, num = G[t], V[t], DEN+16*t, NUM+16*t
    e = [f"v_exp_f32 v{g+i}, v{g+i}" for i in range(16)]
    r = [f"v_rcp_f32 v{g+i}, v{g+i}" for i in range(16)]
    def M(i):
        o(mfs[i])
        for x in slots[i]: o(x)
    k = 0
    for i in range(5):
        M(i)
        n = 3 if i < 4 else 4
        for x in e[k:k+n]: o(x)
        k += n
    for x in fill1: o(x)
    pk1 = list(pk1)
    for i in range(8):
        o(f"v_pk_add_f32 {vr(g+2*i,2)}, {vr(g+2*i,2)}, s[34:35]")
        if pk1: o(pk1.pop(0))
    k = 0
    for i in range(5, 9):
        M(i)
        n = 3 if i < 8 else 7
        for x in r[k:k+n]: o(x)
        k += n
    for x in fill2: o(x)
    pk2 = list(pk2)
    for i in range(8):
        o(f"v_pk_add_f32 {vr(den+2*i,2)}, {vr(den+2*i,2)}, {vr(g+2*i,2)}")
        if pk2: o(pk2.pop(0))
        o(f"v_pk_fma_f32 {vr(num+2*i,2)}, {vr(g+2*i,2)}, {vr(v+2*i,2)}, {vr(num+2*i,2)}")
        if pk2: o(pk2.pop(0))

def k2():
    o = A()
    def pay(i): return ENT + 4*(i//3) + i % 3 if i < 12 else QK + 2*(i-12)
    def dl8(i): return DLR + i if i < 12 else QK + 2*(i-12) + 1
    def meta(q): return ENT + 4*q + 3
    def pm(i): return f"s[{PM+2*i}:{PM+2*i+1}]"
    T, T2 = G[0], V[0]
    def celladdr():
        o(f"""
        v_mbcnt_lo_u32_b32 v20, -1, 0
        v_mbcnt_hi_u32_b32 v20, -1, v20
        s_lshl_b32 s48, s3, 6
        v_add_u32 v21, s48, v20
        v_lshrrev_b32 v22, 3, v21
        v_and_b32 v23, 7, v20
        v_lshlrev_b32 v23, 4, v23
        s_lshl_b32 s49, s2, 7
        v_lshl_add_u32 v{OF}, v22, 15, s49
        v_add_u32 v{OF}, v{OF}, v23
        """)
        for q in range(1, 4):
            o(f"v_add_u32 v{OF+q}, {q*64*32768}, v{OF}")
    def cellissue():
        for q in range(4):
            o(f"buffer_load_dwordx4 {vr(ENT+4*q,4)}, v{OF+q}, s[8:11], 0 offen")
    o(f"""
main_kernel:
    s_cmp_ge_u32 s2, {NB}
    s_cbranch_scc1 K2_END
    s_load_dwordx2 s[8:9], s[0:1], 88
    s_load_dwordx2 s[4:5], s[0:1], 0
    s_load_dwordx2 s[20:21], s[0:1], 72
@RT 4
@ST 0
    v_lshrrev_b32 v1, 6, v0
    s_mov_b32 s10, {P*32768}
    s_mov_b32 s11, 0x20000
    v_readfirstlane_b32 s3, v1
    """)
    if OPT["XMAP"]:
        o("""
        s_and_b32 s48, s2, 7
        s_lshr_b32 s2, s2, 3
        s_lshl_b32 s48, s48, 5
        s_or_b32 s2, s2, s48
        """)
    celladdr()
    o("s_waitcnt lgkmcnt(0)")
    cellissue()
    o(f"""
    s_add_u32 s16, s8, {WS_WF}
    s_addc_u32 s17, s9, 0
    s_mov_b32 s18, {32768+1024}
    s_mov_b32 s19, 0x20000
    s_add_u32 s12, s8, {WS_OVF}
    s_addc_u32 s13, s9, 0
    s_mov_b32 s14, {P*OVS+128}
    s_mov_b32 s15, 0x20000
    s_mov_b32 s45, 0
    s_mov_b32 s46, 0
    s_mov_b32 s47, 0
    s_mov_b32 s94, 48
    s_sub_u32 s4, s4, {3*BLK}
    s_subb_u32 s5, s5, 0
    s_mov_b32 s6, {N*128+3*BLK}
    s_mov_b32 s7, 0x20000
    s_mov_b32 s22, {N*128}
    s_mov_b32 s23, 0x20000
    s_add_u32 s24, s8, {WS_ACC}
    s_addc_u32 s25, s9, 0
    s_mov_b32 s26, {N*512}
    s_mov_b32 s27, 0x20000
K2_RESTART:
    v_lshlrev_b32 v28, 2, v20
    v_add_u32 v29, 32768, v28
    buffer_load_dword v{WC}, v29, s[16:19], 0 offen
    buffer_load_dword v{WC+2}, v29, s[16:19], 0 offen offset:256
    v_lshlrev_b32 v24, 4, v21
    v_mov_b32 v96, 0xffff
    v_mov_b32 v97, 0xffff
    v_mov_b32 v98, 0xffff
    v_mov_b32 v99, 0xffff
    v_add_u32 v25, {L_NM}, v24
    v_mov_b32 v100, 0
    v_lshlrev_b32 v30, 2, v21
    v_cmp_gt_u32 vcc, {(L_RING-L_CNT)//4}, v21
    ds_write_b128 v25, v[96:99]
    ds_write_b128 v25, v[96:99] offset:8192
    ds_write_b128 v25, v[96:99] offset:16384
    ds_write_b128 v25, v[96:99] offset:24576
    ds_write_b128 v25, v[96:99] offset:32768
    s_mul_i32 s48, s3, {GS}
    v_add_u32 v26, s48, v28
    ds_write_b32 v26, v96
    s_and_b64 exec, exec, vcc
    ds_write_b32 v30, v100 offset:{L_CNT}
    s_mov_b64 exec, -1
    s_mov_b32 s28, {3*BLK}
    s_and_b32 s48, s3, 1
    s_lshl_b32 s48, s48, 6
    v_and_b32 v102, 0x30, v20
    v_or_b32 v102, s48, v102
    v_xor_b32 v102, v102, v24
    s_mul_i32 s51, s2, {R*128}
    v_add_u32 v184, s51, v102
    v_and_b32 v185, 0xfff, v24
    v_lshlrev_b32 v110, 4, v20
    s_and_b32 s50, s3, 3
    s_lshl_b32 s50, s50, 10
    s_waitcnt lgkmcnt(0)
    s_barrier
    """)
    NLATE = 2
    if OPT["OWNE"]:
        o(f"""
        v_cmp_gt_u32 vcc, 32, v21
        s_lshl_b32 s48, s3, 10
        s_or_b32 vcc_lo, vcc_lo, 1
        """)
        for i in range(4):
            o(f"s_add_u32 m0, s48, {L_OWN+8192*i}\ns_add_u32 s49, s28, {8192*i}")
            if i == 3: o("s_mov_b64 exec, vcc")
            o("buffer_load_dwordx4 v184, s[4:7], s49 offen lds")
        o("s_mov_b64 exec, -1")
        NLATE = 6
    o(f"""
    ; constants
    s_mov_b32 s29, {2*BLK}
    s_mov_b32 s30, {BLK}
    s_mov_b32 s31, 128
    s_mov_b32 s32, {N}
    s_mov_b32 s34, 1.0
    s_mov_b32 s35, 1.0
    s_mov_b32 s36, {f32(1e-6)}
    s_mov_b32 s37, {f32(1e-6)}
    s_mov_b32 s38, {f32(NLOG2E)}
    s_mov_b32 s39, {f32(NLOG2E)}
    s_mul_i32 s40, s3, {RINGW}
    s_add_u32 s40, s40, {L_RING}
    s_add_u32 s41, s40, {RINGW}
    s_lshl_b32 s48, s3, 2
    s_lshr_b32 s44, 0x72106453, s48
    s_and_b32 s44, s44, 7
    v_mov_b32 v{WC+1}, 0
    v_mov_b32 v{WC+3}, 0
    v_mov_b32 v{EP+1}, 0
    v_mov_b32 v31, 1
    v_bfe_u32 v{CK}, v20, 4, 1
    v_lshlrev_b32 v{CK}, 6, v{CK}
    v_xor_b32 v{CK}, v{CK}, v23
    ; column c = l&31, h = l>>5; r = (c3 c2 c4); i = c&3
    v_bfe_u32 v102, v20, 2, 2
    v_bfe_u32 v103, v20, 4, 1
    v_lshl_or_b32 v102, v102, 1, v103
    v_and_b32 v103, 3, v20
    v_lshl_or_b32 v{LE}, v102, 2, v103
    v_lshlrev_b32 v{LE}, 2, v{LE}
    v_lshrrev_b32 v{LD}, 3, v20
    v_lshlrev_b32 v{LD}, 4, v{LD}
    s_cmp_ge_u32 s44, 3
    s_cselect_b32 s49, 0x7c, 0x3c
    s_cmp_eq_u32 s44, 0
    s_cselect_b32 s49, 0x1c, s49
    s_mul_i32 s48, s44, {GS}
    v_and_b32 v189, s49, v{LD}
    v_and_b32 v190, s49, v{LE}
    v_add_u32 v189, s48, v189
    v_add_u32 v190, s48, v190
    v_add_u32 v{LE}, s48, v{LE}
    v_add_u32 v{LD}, s48, v{LD}
    v_and_b32 v122, 32, v20
    v_lshlrev_b32 v122, 1, v122
    s_add_u32 s49, s49, 4
    s_ff1_i32_b32 s54, s49
    s_sub_u32 s54, s54, 2
    s_lshr_b32 s95, 1024, s54
    v_lshrrev_b32 v188, s54, v20
    v_bfe_u32 v191, v20, 0, s54
    v_lshl_add_u32 v191, v191, 2, s48
    s_lshl_b32 s55, s49, 2
    v_mad_u32_u24 v{OF}, v188, s55, v191
    v_add_u32 v{OF+1}, s49, v{OF}
    v_add_u32 v{OF+2}, s49, v{OF+1}
    v_add_u32 v{OF+3}, s49, v{OF+2}
    v_lshlrev_b32 v188, 4, v188
    v_add_u32 v188, {L_NM}, v188
    s_mov_b32 s33, {L_NM-NMS}
    v_mul_u32_u24 v{XL}, {BLK}, v103
    v_lshl_add_u32 v{XL}, v102, 7, v{XL}
    v_bfe_u32 v103, v102, 1, 1
    v_lshrrev_b32 v102, 5, v20
    v_xor_b32 v103, v103, v102
    v_lshl_add_u32 v{XL}, v103, 6, v{XL}
    s_mul_i32 s48, s2, {R}
    s_sub_u32 s49, {N}, s48
    s_min_u32 s49, s49, {R}
    v_cmp_gt_u32 s[52:53], s49, v21
    v_add_u32 v109, s48, v21
    s_or_b32 s48, s45, s47
    s_cbranch_scc1 K2_SLOWLOAD
    s_mov_b64 {pm(12)}, 0
    s_mov_b64 {pm(13)}, 0
    """)
    def ext(i):
        o(f"v_lshlrev_b32_sdwa v{dl8(i)}, 2, v{meta(i//3)} dst_sel:DWORD dst_unused:UNUSED_PAD src0_sel:DWORD src1_sel:BYTE_{i%3}")
    def cnt(i):
        o(f"s_mov_b64 exec, {pm(i)}\nds_add_rtn_u32 v{RK+i}, v{dl8(i)}, v31 offset:{L_CNT-4}")
    def nmput(sl):
        for i in sl: o(f"v_mad_u32_u24 v{INF+i}, v{dl8(i)}, {NMS//4}, s33")
        o("s_waitcnt lgkmcnt(0)")
        for i in sl: o(f"v_min_u32 v{RK+i}, s94, v{RK+i}\nv_lshl_add_u32 v{INF+i}, v{RK+i}, 2, v{INF+i}")
        for i in sl: o(f"s_mov_b64 exec, {pm(i)}\nds_write_b32 v{INF+i}, v{pay(i)}")
    for q in range(4):
        o(f"s_waitcnt vmcnt({3-q+NLATE})")
        if q == 0: o("@SA 1")
        for j in range(3): ext(3*q+j)
        for j in range(3): o(f"v_cmp_ne_u32 {pm(3*q+j)}, 0, v{dl8(3*q+j)}")
        for j in range(3): cnt(3*q+j)
        o("s_mov_b64 exec, -1")
    o(f"""
    v_or3_b32 v102, v{meta(0)}, v{meta(1)}, v{meta(2)}
    v_or_b32 v102, v102, v{meta(3)}
    v_cmp_gt_i32 vcc, 0, v102
    s_cbranch_vccnz K2_QUICK
K2_COUNTED:
    s_mov_b64 exec, -1
    """)
    nmput(range(12))
    o(f"""
    s_mov_b64 exec, -1
@SA 11
    s_cmp_ge_u32 s3, 4
    s_cbranch_scc1 K2_YOUNG
    v_cmp_gt_u32 vcc, 32, v21
    """)
    for i in range(0 if OPT["OWNE"] else 7):
        o(f"s_add_u32 m0, s50, {L_OWN+4096*i}\ns_add_u32 s49, s28, {4096*i}")
        if i == 6: o("s_mov_b64 exec, vcc")
        o("buffer_load_dwordx4 v184, s[4:7], s49 offen lds")
    o(f"""
    s_mov_b64 exec, -1
    s_waitcnt lgkmcnt(0)
    s_barrier
@SA 2
    ds_read_b32 v111, v30 offset:{L_CNT}
    s_waitcnt lgkmcnt(0)
    v_cmp_lt_u32 vcc, s94, v111
    v_min_u32 v111, s94, v111
    v_sub_u32 v112, 63, v111
    v_lshlrev_b32 v112, 2, v112
    s_mov_b64 exec, s[52:53]
    ds_add_rtn_u32 v113, v112, v31 offset:{L_HIST}
    v_mov_b32 v107, {L_LG+36}
    s_and_b64 exec, exec, vcc
    ds_write_b32 v107, v107
    s_mov_b64 exec, -1
    s_waitcnt lgkmcnt(0)
    s_barrier
    ds_read_b32 v114, v28 offset:{L_HIST}
    s_waitcnt lgkmcnt(0)
    v_mov_b32 v115, v114
    """)
    scan(o, 114)
    o(f"""
    v_sub_u32 v114, v114, v115
    ds_bpermute_b32 v114, v112, v114
    v_mov_b32 v118, 128
    s_movk_i32 s48, {GS}
    s_waitcnt lgkmcnt(0)
    v_add_u32 v114, v114, v113
    v_add_u32 v115, 56, v114
    v_lshrrev_b32 v116, 5, v115
    v_and_b32 v117, 31, v115
    v_add_u32 v115, 8, v114
    v_cmp_gt_u32 vcc, 40, v114
    v_cmp_gt_u32 s[54:55], 8, v114
    v_lshrrev_b32 v119, 4, v115
    v_and_b32 v120, 15, v115
    v_cndmask_b32 v116, v116, v119, vcc
    v_cndmask_b32 v117, v117, v120, vcc
    v_cndmask_b32 v118, v118, 64, vcc
    v_cndmask_b32 v117, v117, v114, s[54:55]
    v_cndmask_b32 v23, v118, 32, s[54:55]
    v_lshlrev_b32 v117, 2, v117
    v_mad_u32_u24 v22, v116, s48, v117
    v_mul_u32_u24 v24, v111, v23
    v_add_u32 v24, 127, v24
    v_lshrrev_b32 v24, 7, v24
    v_lshlrev_b32 v25, 2, v116
    s_mov_b64 exec, s[52:53]
    ds_write_b32 v22, v109
    ds_max_u32 v25, v24 offset:{L_LG}
    s_mov_b64 exec, -1
    s_waitcnt vmcnt(0) lgkmcnt(0)
    s_branch K2_B4
K2_YOUNG:
    s_waitcnt lgkmcnt(0)
    s_barrier
@SA 2
    s_barrier
    """)
    for i in (4, 5, 0, 1, 2, 3, 6, 7):
        o(f"s_add_u32 m0, s50, {L_WB+4096*i}\ns_movk_i32 s49, {4096*i}")
        o("buffer_load_dwordx4 v185, s[16:19], s49 offen lds")
    if OPT["OWNE"]: o("s_waitcnt vmcnt(8)")
    if OPT["OUTTLB"]:
        o(f"""
        v_lshlrev_b32 v186, 12, v20
        v_min_u32 v186, {R*128-4}, v186
        s_mov_b32 m0, {L_CNT}
        s_mov_b64 exec, 0xff
        buffer_load_dword v186, s[20:23], s51 offen lds
        s_mov_b64 exec, -1
        """)
    o(f"""
K2_B4:
    s_mul_i32 s48, s2, {R}
    s_movk_i32 s49, {NMS}
    s_barrier
@ST 3
    ds_read_b32 v120, v191
    ds_read_b32 v121, v190
    ds_read_b32 v123, v28 offset:{L_LG}
    ds_read_b128 {vr(D0,4)}, v189
    s_waitcnt lgkmcnt(1)
@SB 1
    v_subrev_u32 v120, s48, v120
    v_min_u32 v120, {R}, v120
    v_mad_u32_u24 v120, v120, s49, v188
    v_add_u32 v119, s95, v120
    v_add_u32 v118, s95, v119
    v_cmp_lt_u32 vcc, {LCAP}, v123
    ds_read_b128 {vr(T2,4)}, v120
    ds_read_b128 {vr(T2+4,4)}, v119
    ds_read_b128 {vr(T2+8,4)}, v118
    v_subrev_u32 v121, s48, v121
    v_min_u32 v121, {R-1}, v121
    v_lshlrev_b32 v124, 3, v121
    v_and_b32 v124, 0x70, v124
    v_xor_b32 v124, v124, v122
    v_lshl_add_u32 v124, v121, 7, v124
    v_xor_b32 v125, 16, v124
    v_xor_b32 v126, 32, v124
    v_xor_b32 v127, 48, v124
    v_readlane_b32 s43, v123, s44
    """)
    for s_ in range(4): o(f"ds_read_b128 {vr(X+4*s_,4)}, v{124+s_} offset:{L_OWN}")
    o(f"""
    s_mov_b32 s47, 0
    s_and_b32 s33, vcc_lo, 0x3ff
    s_cbranch_scc1 K2_FLAGS
K2_FLAGSDONE:
    s_lshl_b32 s48, s43, 7
    v_add_u32 v121, s48, v{LD}
    v_mov_b32 v{VT}, v110
    s_mov_b32 m0, s40
    {'s_mov_b32 s76, s43' if DIAG else ''}
    """)
    def build_list():
        for k in range(3):
            for e in range(4):
                o(f"ds_write_b32 v{OF+e}, v{T2+4*k+e} offset:{128+1024*k}")
        o(f"""
        ds_write_b128 v121, {vr(D0,4)} offset:128
        ds_read_b128 {vr(D0,4)}, v{LD} offset:128
        ds_read_b128 {vr(T,4)}, v{LD} offset:256
        ds_read_b128 {vr(T+4,4)}, v{LD} offset:384
        ds_read_b128 {vr(T+8,4)}, v{LD} offset:512
        ds_read_b32 v{EP}, v{LE} offset:128
        """)
    def frags(reg, off):
        for f in range(8): o(f"ds_read_b128 {vr(reg+4*f,4)}, v{VT} offset:{L_WB+off+1024*f}")
    def rowdma(n):
        if n: o(f"s_add_u32 m0, s40, {n*SLOT}")
        for i in range(4): o(f"v_mad_u32_u16 v{D0+i}, v{T+4*(n-1)+i if n else D0+i}, s31, v{CK}")
        for i in range(4): o(dma(i))
    def aprime():
        k = 0
        for s_ in range(4):
            for t in range(2):
                o(mf(AP+16*t, WA+16*t+4*s_, X+4*s_, None if s_ == 0 else AP+16*t))
                for i in range(8*k, 8*k+8): o(f"v_mov_b32 v{DEN+i}, 0")
                k += 1
    o("s_cmp_ge_u32 s3, 4\ns_cbranch_scc1 K2_YPRE")
    o("s_waitcnt lgkmcnt(4)\n@SB 11")
    build_list()
    o("s_waitcnt lgkmcnt(4)\n@SB 2\ns_barrier\n@ST 6")
    rowdma(0)
    frags(WA, 16384)
    o("s_waitcnt lgkmcnt(8)")
    rowdma(1)
    frags(WB, 0)
    rowdma(2)
    o("s_waitcnt lgkmcnt(8)")
    frags(WV, 8192)
    aprime()
    if OPT["PRIO"]: o(f"s_setprio 2\ns_mov_b32 s50, {OPT['PK']}")
    o("s_branch K2_PRE\nK2_YPRE:")
    if OPT["PRIO"]: o(f"s_setprio 1\ns_mov_b32 s50, -5")
    o(f"s_waitcnt vmcnt({OPT['OUTTLB']}) lgkmcnt(0)\n@SB 11\n@SB 2\ns_barrier\n@ST 6")
    build_list()
    frags(WA, 16384)
    frags(WB, 0)
    o("s_waitcnt lgkmcnt(8)")
    frags(WV, 8192)
    aprime()
    if OPT["YD"] > 1: o("s_waitcnt lgkmcnt(0)")
    rowdma(0); rowdma(1); rowdma(2)
    o("K2_PRE:")
    for i in range(4): o(f"v_mad_u32_u16 v{D0+i}, v{T+8+i}, s31, v{CK}")
    o(f"""
    v_pk_sub_u16 v{EP}, v{EP}, s32 clamp
    v_add_u32 v{XA}, s40, v{XL}
    v_add_u32 v{LD}, {5*128}, v{LD}
    v_add_u32 v{LE}, {2*128}, v{LE}
    s_cmp_lg_u32 s46, 0
    s_cbranch_scc1 K2_LOADACC
K2_ACCDONE:
    s_mov_b32 m0, s40
    s_add_u32 s42, s40, {SLOT}
    """)
    for i in range(16): o(f"v_pk_mul_f32 {vr(AP+2*i,2)}, {vr(AP+2*i,2)}, s[38:39]")
    o(f"""
    s_waitcnt vmcnt(8)
@ST 7
    """)
    for s_ in range(4): o(xread(s_))
    ml = mf_list(0)
    o(ml[0])
    o("s_waitcnt lgkmcnt(0)")
    for i in range(4): o(ml[1+2*i]); o(dma(i))
    for i in range(4): o(ml[2+2*i])
    o(f"""
    v_add_u32 v{XA}, {SLOT}, v{XA}
@ST 8
    """)
    o(f"""
    s_sub_u32 s43, s43, 1
    s_cbranch_scc1 K2_LOOPEND
    .p2align 4
K2_LOOP:
    """)
    sl = [[] for _ in range(9)]
    sl[0] = [f"ds_read_b32 v{VT}, v{LE}"]
    sl[1] = ["s_waitcnt vmcnt(8)"]
    sl[2] = [xread(0)]
    sl[3] = [f"ds_read_b128 {vr(D0,4)}, v{LD}"]
    sl[4] = [xread(1)]
    sl[5] = ["s_mov_b32 m0, s42"]
    sl[6] = [xread(2)]
    sl[7] = ["s_waitcnt lgkmcnt(2)"]
    sl[8] = [xread(3)]
    phase(o, 0, mf_list(1), sl,
          [f"v_add_u32 v{LE}, 128, v{LE}", f"v_add_u32 v{LD}, 128, v{LD}"],
          [f"v_pk_sub_u16 v{EP}, v{VT}, s32 clamp"] + mads(),
          pk1=(), pk2=ADV + ["s_waitcnt lgkmcnt(0)"])
    sl = [[] for _ in range(9)]
    for i in range(4): sl[i] = [dma(i)]
    if OPT["PRIO"]:
        sl[5] = ["s_cmp_lg_u32 s43, s50"]
        sl[6] = ["s_cbranch_scc1 K2_NOP", "s_setprio 0", "K2_NOP:"]
    sl[8] = ["s_sub_u32 s43, s43, 1"]
    phase(o, 1, mf_list(0), sl, [f"v_add_u32 v{XA}, s42, v{XL}"], [])
    o(f"""
    s_cbranch_scc0 K2_LOOP
K2_LOOPEND:
@ST 9
    v_mbcnt_lo_u32_b32 v{D0}, -1, 0
    v_mbcnt_hi_u32_b32 v{D0}, -1, v{D0}
    v_lshlrev_b32 v{D0+1}, 4, v{D0}
    v_subrev_u32 v{LE}, 128, v{LE}
    ds_read_b32 v{VT}, v{LE}
    """)
    for f in range(8):
        o(f"ds_read_b128 {vr(WB+4*f,4)}, v{D0+1} offset:{L_WU+1024*f}")
    o(f"""
    s_mov_b32 s48, 0
    s_cmp_ge_u32 s44, 3
    s_cbranch_scc1 K2_NOCOMB
    s_mov_b32 s48, 8
    """)
    for i in range(64): o(f"v_add_f32_dpp v{DEN+i}, v{DEN+i}, v{DEN+i} row_ror:8 row_mask:0xf bank_mask:0xf")
    o(f"""
    s_cmp_lg_u32 s44, 0
    s_cbranch_scc1 K2_NOCOMB
    s_mov_b32 s48, 12
    """)
    for i in range(64): o(f"v_add_f32_dpp v{DEN+i}, v{DEN+i}, v{DEN+i} row_ror:4 row_mask:0xf bank_mask:0xf")
    o(f"""
K2_NOCOMB:
    v_and_b32 v{D0+2}, s48, v{D0}
    v_cmp_eq_u32 vcc, 0, v{D0+2}
    v_mov_b32 v{D0+3}, 0xffff
    v_lshrrev_b32 v{D0}, 5, v{D0}
    s_waitcnt lgkmcnt(0)
    v_cndmask_b32 v{D0+2}, v{D0+3}, v{VT}, vcc
    s_cmp_lg_u32 s33, 0
    s_cbranch_scc1 K2_STOREACC
    v_lshlrev_b32 v{D0}, 6, v{D0}
    v_lshl_add_u32 v{D0}, v{D0+2}, 7, v{D0}
    """)
    for i in range(16): o(f"v_pk_add_f32 {vr(DEN+2*i,2)}, {vr(DEN+2*i,2)}, s[36:37]")
    k = 0
    for s in range(4):
        for t in range(2):
            o(mf(G[t], WB+16*t+4*s, X+4*s, None if s == 0 else G[t]))
            n = 3 if (s, t) != (3, 1) else 11
            for i in range(k, k+n): o(f"v_rcp_f32 v{DEN+i}, v{DEN+i}")
            k += n
    o("s_mov_b32 s49, 0xffff0000\ns_nop 0")
    for t in range(2):
        for i in range(8):
            o(f"v_pk_fma_f32 {vr(G[t]+2*i,2)}, {vr(NUM+16*t+2*i,2)}, {vr(DEN+16*t+2*i,2)}, {vr(G[t]+2*i,2)}")
    for t in range(2):
        for i in range(8):
            o(f"v_lshlrev_b32 v{V[t]+2*i}, 16, v{X+8*t+i}")
            o(f"v_and_b32 v{V[t]+2*i+1}, s49, v{X+8*t+i}")
            o(f"v_max_f32 v{G[t]+2*i}, 0, v{G[t]+2*i}")
            o(f"v_max_f32 v{G[t]+2*i+1}, 0, v{G[t]+2*i+1}")
            o(f"v_pk_add_f32 {vr(G[t]+2*i,2)}, {vr(G[t]+2*i,2)}, {vr(V[t]+2*i,2)}")
            o(f"v_cvt_pk_bf16_f32 v{DEN+8*t+i}, v{G[t]+2*i}, v{G[t]+2*i+1}")
            if i % 4 == 3:
                j = 2*t + i//4
                o(f"buffer_store_dwordx4 {vr(DEN+4*j,4)}, v{D0}, s[20:23], 0 offen" + (f" offset:{16*j}" if j else "") + (" " + OPT["OUTSC"] if OPT["OUTSC"] else ""))
    o("@ST 10\n@RT 5")
    if DIAG: o("s_getreg_b32 s77, hwreg(HW_REG_HW_ID)\ns_getreg_b32 s78, hwreg(HW_REG_XCC_ID)")
    dump(o, 12, 0x4000000, ("s76", "s77", "s78", "s44"))
    o(f"""
K2_END:
    s_endpgm
K2_FLAGS:
    s_and_b32 s48, s33, 0xff
    s_cbranch_scc0 K2_PEND
    s_mov_b32 s94, {LCAP}
    s_mov_b32 s47, 1
    s_branch K2_AGAIN
K2_PEND:
    s_and_b32 s47, s33, 0x200
    s_cbranch_scc0 K2_FLAGSDONE
    """)
    for i in range(NS):
        o(f"v_cmp_le_u32 vcc, s94, v{RK+i}\ns_and_b64 {pm(i)}, {pm(i)}, vcc")
    def more(v):
        o(f"""
        v_mov_b32 v107, {L_LG+32}
        v_mov_b32 v108, 64
        s_and_b64 exec, exec, vcc
        ds_write_b32 v107, v108
        """)
    o(f"""
    s_branch K2_FLAGSDONE
K2_QUICK:
    s_mov_b64 s[54:55], vcc
    v_mov_b32 v102, 192
    v_mov_b32 v103, 128
    v_cmp_gt_i32 vcc, 0, v{meta(2)}
    v_lshrrev_b32 v104, 31, v{meta(0)}
    v_lshrrev_b32 v105, 31, v{meta(1)}
    v_cndmask_b32 v102, v102, v103, vcc
    v_cmp_gt_i32 vcc, 0, v{meta(1)}
    v_add_u32 v104, v104, v105
    v_lshrrev_b32 v105, 31, v{meta(2)}
    v_cndmask_b32 v102, v102, 64, vcc
    v_cmp_gt_i32 vcc, 0, v{meta(0)}
    v_add_u32 v104, v104, v105
    v_lshrrev_b32 v105, 31, v{meta(3)}
    v_cndmask_b32 v102, v102, 0, vcc
    v_add_u32 v104, v104, v105
    v_add_u32 v102, v102, v22
    v_mul_u32_u24 v102, {OVS}, v102
    v_add_u32 v103, v102, v23
    s_mov_b64 exec, s[54:55]
    buffer_load_dword v{QC}, v102, s[12:15], 0 offen
    buffer_load_dwordx4 {vr(QK,4)}, v103, s[12:15], 0 offen offset:16
    v_lshrrev_b32 v105, 3, v23
    v_lshlrev_b32 v104, 4, v104
    s_waitcnt vmcnt(0)
    s_cmp_lg_u32 s47, 0
    s_cbranch_scc1 K2_QKEEP
    v_cmp_lt_u32 vcc, v105, v{QC}
    v_cmp_eq_u32_sdwa {pm(12)}, s2, v{QK+1} src0_sel:DWORD src1_sel:WORD_1
    v_add_u32 v105, 1, v105
    s_and_b64 {pm(12)}, {pm(12)}, vcc
    v_cmp_lt_u32 vcc, v105, v{QC}
    v_cmp_eq_u32_sdwa {pm(13)}, s2, v{QK+3} src0_sel:DWORD src1_sel:WORD_1
    s_and_b64 {pm(13)}, {pm(13)}, vcc
K2_QKEEP:
    v_and_b32 v{QK+1}, 0xffff, v{QK+1}
    v_and_b32 v{QK+3}, 0xffff, v{QK+3}
    v_max_u32 v104, v104, v{QC}
    v_cmp_lt_u32 vcc, 16, v104
    """)
    more(0)
    cnt(12); cnt(13)
    o('s_mov_b64 exec, -1')
    nmput((12, 13))
    o(f"""
    s_branch K2_COUNTED
K2_SLOWLOAD:
    s_waitcnt vmcnt(0)
    s_cmp_lg_u32 s45, 0
    s_cbranch_scc1 K2_CHUNK
    """)
    for i in range(12): ext(i)
    for i in range(12): cnt(i)
    o(f"""
    s_mov_b64 exec, -1
    v_or3_b32 v102, v{meta(0)}, v{meta(1)}, v{meta(2)}
    v_or_b32 v102, v102, v{meta(3)}
    v_cmp_gt_i32 vcc, 0, v102
    s_cbranch_vccnz K2_QUICK
    s_branch K2_COUNTED
K2_CHUNK:
    s_sub_u32 s48, s45, 16
    s_lshl_b32 s49, s48, 3
    v_mul_u32_u24 v102, {OVS}, v22
    v_lshrrev_b32 v105, 3, v23
    v_add_u32 v105, s48, v105
    v_add_u32 v106, 1, v105
    s_cmp_eq_u32 s48, 0
    s_cselect_b64 s[54:55], 0, -1
    v_mov_b32 v104, 0
    """)
    for q in range(4):
        o(f"""
        s_mov_b64 exec, -1
        v_mov_b32 v{QC+q}, 0
        v_cmp_gt_i32 vcc, 0, v{meta(q)}
        v_add3_u32 v103, v102, v23, s49
        s_mov_b64 exec, vcc
        buffer_load_dword v{QC+q}, v102, s[12:15], 0 offen
        buffer_load_dwordx4 {vr(INF+4*q,4)}, v103, s[12:15], 0 offen offset:16
        s_waitcnt vmcnt(0)
        v_max_u32 v104, v104, v{QC+q}
        s_andn2_b64 exec, vcc, s[54:55]
        v_mov_b32 v{QC+q}, 0
        s_or_b64 s[54:55], s[54:55], vcc
        s_mov_b64 exec, -1
        v_add_u32 v102, {64*OVS}, v102
        """)
    o(f"""
    s_cmp_lg_u32 s47, 0
    s_cbranch_scc1 K2_CKEEP
    s_mov_b64 {pm(12)}, 0
    s_mov_b64 {pm(13)}, 0
    """)
    for q in range(4):
        o(f"s_mov_b64 {pm(3*q+2)}, 0")
        for k in range(2):
            o(f"""
            v_cmp_lt_u32 vcc, v{105+k}, v{QC+q}
            v_cmp_eq_u32_sdwa {pm(3*q+k)}, s2, v{INF+4*q+2*k+1} src0_sel:DWORD src1_sel:WORD_1
            s_and_b64 {pm(3*q+k)}, {pm(3*q+k)}, vcc
            """)
    o("K2_CKEEP:")
    for q in range(4):
        for k in range(2):
            o(f"v_mov_b32 v{pay(3*q+k)}, v{INF+4*q+2*k}\nv_and_b32 v{dl8(3*q+k)}, 0xffff, v{INF+4*q+2*k+1}")
    o(f"v_cmp_lt_u32 vcc, s45, v104")
    more(0)
    for q in range(4):
        for k in range(2): cnt(3*q+k)
    o(f"""
    s_branch K2_COUNTED
K2_LOADACC:
    s_lshl_b32 s48, s43, 7
    s_sub_u32 s48, s48, 128
    v_add_u32 v{G[0]}, s48, v{LE}
    ds_read_b32 v{G[0]}, v{G[0]}
    v_mbcnt_lo_u32_b32 v{G[0]+1}, -1, 0
    v_mbcnt_hi_u32_b32 v{G[0]+1}, -1, v{G[0]+1}
    s_cmp_ge_u32 s44, 3
    s_cselect_b32 s48, 0, 8
    s_cmp_eq_u32 s44, 0
    s_cselect_b32 s48, 12, s48
    v_and_b32 v{G[0]+2}, s48, v{G[0]+1}
    v_cmp_eq_u32 vcc, 0, v{G[0]+2}
    v_mov_b32 v{G[0]+3}, 0xffff
    v_lshrrev_b32 v{G[0]+1}, 5, v{G[0]+1}
    v_lshlrev_b32 v{G[0]+1}, 8, v{G[0]+1}
    s_waitcnt lgkmcnt(0)
    v_cndmask_b32 v{G[0]}, v{G[0]+3}, v{G[0]}, vcc
    v_lshl_add_u32 v{G[0]}, v{G[0]}, 9, v{G[0]+1}
    """)
    for j in range(16):
        o(f"buffer_load_dwordx4 {vr(DEN+4*j,4)}, v{G[0]}, s[24:27], 0 offen offset:{16*j}")
    o(f"""
    s_waitcnt vmcnt(0)
    s_branch K2_ACCDONE
K2_STOREACC:
    v_lshlrev_b32 v{D0}, 8, v{D0}
    v_lshl_add_u32 v{D0}, v{D0+2}, 9, v{D0}
    """)
    for j in range(16):
        o(f"buffer_store_dwordx4 {vr(DEN+4*j,4)}, v{D0}, s[24:27], 0 offen offset:{16*j}")
    o(f"""
    s_mov_b32 s46, 1
    s_cmp_lg_u32 s47, 0
    s_cselect_b32 s48, 0, 16
    s_add_u32 s45, s45, s48
K2_AGAIN:
    s_waitcnt vmcnt(0) lgkmcnt(0)
    s_barrier
    """)
    celladdr()
    cellissue()
    o("s_branch K2_RESTART")
    return o.text()

def desc(name, nv, ns):
    return f"""
.p2align 6
.amdhsa_kernel {name}
  .amdhsa_next_free_vgpr {nv}
  .amdhsa_next_free_sgpr {ns}
  .amdhsa_accum_offset {(nv+3)//4*4}
  .amdhsa_group_segment_fixed_size 0
  .amdhsa_kernarg_size 96
  .amdhsa_user_sgpr_count 2
  .amdhsa_user_sgpr_kernarg_segment_ptr 1
  .amdhsa_system_sgpr_workgroup_id_x 1
  .amdhsa_float_denorm_mode_32 3
.end_amdhsa_kernel
"""

def build():
    hdr = open(f"cdna_kernels/{NAME}.s.ref").read().split("; Override launch geometry")[0]
    s = hdr
    s += f"; @launch kernel=part_kernel grid=({P+5},1,1) block=({896 if OPT['K1TLB'] else 832},1,1) lds={LDS1}\n"
    s += f"; @launch kernel=main_kernel grid=({NB},1,1) block=(512,1,1) lds={LDS2}\n"
    s += '.amdgcn_target "amdgcn-amd-amdhsa--gfx950"\n.text\n'
    for nm, body in (("part_kernel", k1()), ("main_kernel", k2())):
        s += f".globl {nm}\n.p2align 8\n.type {nm},@function\n" + body
    s += '.section .rodata,"a"\n' + desc("part_kernel", 52, 102 if DIAG else 24) + desc("main_kernel", 256, 102 if DIAG else 96)
    return s

if __name__ == "__main__":
    if "--diag" in sys.argv:
        sys.argv.remove("--diag"); DIAG = True
    out = sys.argv[1] if len(sys.argv) > 1 else f"cdna_kernels/{NAME}.s"
    open(out, "w").write(build())
```

```python
import sys, struct
NAME = "gather_scatter__edge_featured_mpnn_gatedgcn__graph"
N, E, R, P, CH = 50000, 800000, 196, 250, 3200
NB = 256
WS_WF, WS_OVF, WS_ACC = 0x800000, 0x840000, 0x1000000
OVS = 25728
K1_HIST = 40960
LDS1 = K1_HIST + 832*4
LCAP = 24
NMS = 208
GS = (LCAP + 2) * 128
L_LIST = 0
L_WB = 8 * GS
L_WU = L_WB + 24576
L_CNT = L_WB + 32768
L_HIST = L_CNT + 1024
L_LG = L_HIST + 256
L_RING = L_LG + 64
BLK, SLOT = 1040, 4160
RINGW = 3 * SLOT
L_OWN = L_RING
L_NM = L_RING + 25600
LDS2 = L_RING + 8 * RINGW
def f32(x): return "0x%08x" % struct.unpack("<I", struct.pack("<f", x))[0]
NLOG2E = -1.4426950408889634

DIAG = False
import os
OPT = dict(XMAP=1, K1PF=0, K1SC="sc1", OUTSC="", YD=1, STSET=0, K1TLB=0, OUTTLB=1, OWNE=0, PRIO=0, PK=0, K1T2=0, OUTT=1)
for kv in os.environ.get("GOPT", "").split(","):
    if kv:
        k_, v_ = kv.split("="); OPT[k_] = v_.replace("_", " ") if k_.endswith("SC") else int(v_)
ST_REGS = [56, 58, 60, 62, 96, 98, 64, 66, 68, 70, 72, 92]
def stamp(o, i, real=False):
    if DIAG:
        r = ST_REGS[i]
        o(f"s_mem{'real' if real else ''}time s[{r}:{r+1}]")
def dump(o, n, base, extra=()):
    if DIAG:
        o("s_load_dwordx2 s[100:101], s[0:1], 88\ns_waitcnt lgkmcnt(0)\ns_mov_b64 exec, -1")
        for i in range(n): o(f"v_writelane_b32 v1, s{ST_REGS[i]}, {i}")
        for j, x in enumerate(extra): o(f"v_writelane_b32 v1, {x}, {n+j}")
        o(f"""v_mbcnt_lo_u32_b32 v2, -1, 0
        v_mbcnt_hi_u32_b32 v2, -1, v2
        s_lshl_b32 s99, s2, 4
        s_add_u32 s99, s99, s3
        s_lshl_b32 s99, s99, 8
        s_add_u32 s99, s99, {base}
        v_lshl_add_u32 v2, v2, 2, s99
        global_store_dword v2, v1, s[100:101]""")

class A:
    def __init__(s): s.l = []
    def __call__(s, t):
        for x in t.strip("\n").split("\n"):
            x = x.strip()
            if x.startswith("@SA") or x.startswith("@SB"):
                if OPT["STSET"] == (0 if x[2] == "A" else 1): stamp(s, int(x.split()[1]))
                continue
            if x.startswith("@ST") or x.startswith("@RT"):
                stamp(s, int(x.split()[1]), x.startswith("@RT")); continue
            if x: s.l.append(x if x.endswith(":") else "    " + x)
    def text(s): return "\n".join(s.l) + "\n"

def vr(a, n): return f"v[{a}:{a+n-1}]"

def scan(o, v):
    for sh in (1, 2, 4, 8):
        o(f"s_nop 1\nv_add_u32_dpp v{v}, v{v}, v{v} row_shr:{sh} row_mask:0xf bank_mask:0xf")
    o(f"s_nop 1\nv_add_u32_dpp v{v}, v{v}, v{v} row_bcast:15 row_mask:0xa bank_mask:0xf")
    o(f"s_nop 1\nv_add_u32_dpp v{v}, v{v}, v{v} row_bcast:31 row_mask:0xc bank_mask:0xf")

def k1():
    o = A()
    o(f"""
part_kernel:
    s_cmp_ge_u32 s2, {P}
    s_cbranch_scc1 K1_W
@RT 4
@ST 0
    s_load_dwordx2 s[8:9], s[0:1], 24
    s_load_dwordx4 s[4:7], s[0:1], 8
    s_load_dwordx2 s[10:11], s[0:1], 88
    s_load_dwordx2 s[22:23], s[0:1], 0
    """)
    if OPT["K1TLB"]:
        o("v_readfirstlane_b32 s15, v0\ns_cmp_ge_u32 s15, 832\ns_cbranch_scc1 K1_T")
    o(f"""
    v_cmp_gt_u32 vcc, 800, v0
    s_mul_i32 s12, s2, {CH*4}
    v_lshlrev_b32 v1, 4, v0
    v_add_u32 v2, s12, v1
    v_lshrrev_b32 v3, 1, v2
    v_lshlrev_b32 v4, 2, v0
    v_mov_b32 v40, 0
    v_mov_b32 v41, 0
    v_mov_b32 v42, 0
    v_mov_b32 v43, 0
    v_mov_b32 v6, 1
    s_mov_b64 s[20:21], vcc
    s_mov_b64 exec, vcc
    s_waitcnt lgkmcnt(0)
@ST 1
    global_load_dwordx4 v[8:11], v2, s[8:9]
    global_load_dwordx4 v[12:15], v2, s[6:7]
    global_load_dwordx2 v[16:17], v3, s[4:5]
    """)
    npf = 0
    if OPT["K1PF"]:
        o(f"""
        s_mul_i32 s13, s2, {200*128}
        v_cmp_gt_u32 vcc, {200*OPT["K1PF"]}, v0
        v_lshlrev_b32 v5, {8-OPT["K1PF"]}, v0
        v_add_u32 v5, s13, v5
        v_min_u32 v5, {N*128-4}, v5
        s_or_b32 vcc_lo, vcc_lo, 1
        s_and_b64 exec, exec, vcc
        global_load_dword v44, v5, s[22:23]
        """)
        npf = 1
    o(f"""
    s_mov_b64 exec, -1
    ds_write_b32 v4, v40 offset:{K1_HIST}
    ds_write_b128 v1, v[40:43]
    ds_write_b128 v1, v[40:43] offset:13312
    ds_write_b128 v1, v[40:43] offset:26624
    s_movk_i32 s13, -{R}
    s_mov_b32 s14, 0xffff0000
    s_mov_b64 exec, s[20:21]
    s_waitcnt lgkmcnt(0)
    s_barrier
    s_waitcnt vmcnt({2+npf})
@ST 2
    """)
    for i in range(4):
        o(f"""
        v_mul_u32_u24 v{20+i}, 0x14e5f, v{8+i}
        v_lshrrev_b32 v{20+i}, 24, v{20+i}
        v_lshlrev_b32 v{24+i}, 2, v{20+i}
        ds_add_rtn_u32 v{28+i}, v{24+i}, v6 offset:{K1_HIST}
        """)
    for i in range(4):
        o(f"""
        v_mad_i32_i24 v{8+i}, v{20+i}, s13, v{8+i}
        v_add_u32 v{8+i}, 1, v{8+i}
        """)
    o(f"""
    s_waitcnt vmcnt({npf})
    v_lshl_or_b32 v32, v16, 16, v12
    v_and_or_b32 v33, v16, s14, v13
    v_lshl_or_b32 v34, v17, 16, v14
    v_and_or_b32 v35, v17, s14, v15
    """)
    if OPT["K1T2"]:
        o(f"""
        s_andn2_b64 exec, -1, s[20:21]
        s_cbranch_execz K1_NOT2
        s_load_dwordx2 s[16:17], s[0:1], 72
        s_lshr_b32 s15, s2, 3
        s_mul_i32 s15, s15, 6144
        v_and_b32 v5, 31, v0
        v_mul_u32_u24 v5, 200000, v5
        v_add_u32 v5, s15, v5
        v_mov_b32 v7, {WS_WF}
        """)
        if OPT["K1T2"] & 1: o("global_load_dword v44, v5, s[22:23]")
        if OPT["K1T2"] & 4: o("global_load_dword v45, v7, s[10:11]")
        if OPT["K1T2"] & 2: o("s_waitcnt lgkmcnt(0)\nglobal_load_dword v46, v5, s[16:17]")
        o("K1_NOT2:\ns_mov_b64 exec, s[20:21]")
    o(f"""
    s_waitcnt lgkmcnt(0)
@ST 3
    v_max3_u32 v36, v28, v29, v30
    v_max_u32 v36, v36, v31
    v_cmp_lt_u32 vcc, 23, v36
    s_cbranch_vccnz K1_OVF
    """)
    def put(i):
        o(f"""
        v_and_b32 v36, 7, v{28+i}
        v_lshl_add_u32 v36, v{24+i}, 1, v36
        v_lshrrev_b32 v37, 3, v{28+i}
        v_lshlrev_b32 v36, 4, v36
        v_lshl_add_u32 v38, v37, 2, v36
        v_add_u32 v39, v37, v36
        ds_write_b32 v38, v{32+i}
        ds_write_b8 v39, v{8+i} offset:12
        """)
    for i in range(4): put(i)
    sc = (" " + OPT["K1SC"]) if OPT["K1SC"] else ""
    o(f"""
K1_PUTDONE:
    s_mov_b64 exec, -1
    s_lshl_b32 s12, s2, 15
    v_add_u32 v2, s12, v1
    v_add_u32 v3, 13312, v2
    v_add_u32 v5, 26624, v2
    v_cmp_gt_u32 vcc, {2048-2*832}, v0
    v_mov_b32 v7, {K1_HIST+1024}
    s_waitcnt lgkmcnt(0)
    s_barrier
@ST 6
    ds_read_b128 v[8:11], v1
    ds_read_b128 v[12:15], v1 offset:13312
    ds_read_b128 v[16:19], v1 offset:26624
    ds_read_b32 v20, v7
    s_waitcnt lgkmcnt(3)
    global_store_dwordx4 v2, v[8:11], s[10:11]{sc}
    s_waitcnt lgkmcnt(2)
    global_store_dwordx4 v3, v[12:15], s[10:11]{sc}
    s_and_b64 exec, exec, vcc
    s_waitcnt lgkmcnt(0)
    global_store_dwordx4 v5, v[16:19], s[10:11]{sc}
    s_mov_b64 exec, -1
    s_mul_i32 s12, s2, {OVS}
    s_add_u32 s12, s12, {WS_OVF}
    v_cmp_eq_u32 vcc, 831, v0
    v_mov_b32 v7, s12
    s_and_b64 exec, exec, vcc
    global_store_dword v7, v20, s[10:11]
    """)
    if DIAG: o("@ST 7\ns_waitcnt vmcnt(0)\n@ST 8\n@RT 5\ns_mov_b64 exec, -1\nv_lshrrev_b32 v1, 6, v0\ns_nop 1\nv_readfirstlane_b32 s3, v1")
    dump(o, 9, 0x4800000)
    o(f"""
    s_endpgm
K1_OVF:
    s_mul_i32 s12, s2, {OVS}
    s_add_u32 s12, s12, {WS_OVF+16}
    v_mov_b32 v7, {K1_HIST+1024}
    v_mov_b32 v45, 0x80000000
    """)
    for i in range(4):
        o(f"""
        s_mov_b64 exec, s[20:21]
        v_cmp_lt_u32 vcc, 23, v{28+i}
        s_andn2_b64 exec, exec, vcc
        """)
        put(i)
        o(f"""
        s_mov_b64 exec, vcc
        s_cbranch_execz K1_OVN{i}
        ds_add_rtn_u32 v36, v7, v6
        v_lshlrev_b32 v37, 7, v{20+i}
        """)
        for u in range(8): o(f"ds_or_b32 v37, v45 offset:{16*u+12}")
        o(f"""
        v_mov_b32 v46, v{32+i}
        v_lshlrev_b32 v47, 2, v{8+i}
        v_lshl_or_b32 v47, v{20+i}, 16, v47
        s_waitcnt lgkmcnt(0)
        v_lshl_add_u32 v36, v36, 3, s12
        global_store_dwordx2 v36, v[46:47], s[10:11]
K1_OVN{i}:
        """)
    o("s_branch K1_PUTDONE")
    if OPT["K1TLB"]:
        m = OPT["K1TLB"]
        o(f"""
K1_T:
        v_and_b32 v5, 63, v0
        s_barrier
        s_waitcnt lgkmcnt(0)
        """)
        if m & 8:
            o(f"""
            s_mul_i32 s12, s2, {CH*4}
            s_add_u32 s12, s12, {CH*4-4}
            v_mov_b32 v7, s12
            global_load_dword v44, v7, s[6:7]
            s_waitcnt vmcnt(0)
            """)
        if m & 2:
            o(f"""
            s_lshl_b32 s13, s2, 15
            v_lshlrev_b32 v7, 12, v5
            v_and_b32 v7, 0x7fff, v7
            v_add_u32 v7, s13, v7
            global_load_dword v45, v7, s[10:11]
            """)
        if m & 1:
            o(f"""
            s_lshr_b32 s13, s2, 3
            s_mul_i32 s13, s13, {50*4096}
            v_lshlrev_b32 v7, 12, v5
            v_add_u32 v7, s13, v7
            v_min_u32 v7, {N*128-4}, v7
            global_load_dword v44, v7, s[22:23]
            """)
        if m & 4:
            o(f"""
            s_mul_i32 s13, s2, {200*128}
            v_cmp_gt_u32 vcc, 50, v5
            v_lshl_add_u32 v7, v5, 7, s13
            s_mov_b64 exec, vcc
            """)
            for i in range(4):
                o(f"global_load_dword v44, v7, s[22:23]")
                if i < 3: o(f"v_add_u32 v7, {50*128}, v7")
        o("s_barrier\ns_endpgm")
    o(f"""
K1_W:
    s_cmp_ge_u32 s2, {P+5}
    s_cbranch_scc1 K1_END
    s_load_dwordx8 s[4:11], s[0:1], 32
    s_load_dwordx2 s[12:13], s[0:1], 64
    s_load_dwordx2 s[14:15], s[0:1], 88
    s_sub_u32 s3, s2, {P}
    v_bfe_u32 v1, v0, 2, 1
    v_lshlrev_b32 v1, 5, v1
    v_and_b32 v2, 3, v0
    v_add_u32 v1, v1, v2
    v_bfe_u32 v2, v0, 3, 2
    v_lshl_add_u32 v1, v2, 2, v1
    s_cmp_eq_u32 s3, 4
    s_cbranch_scc1 K1_WC
    v_cmp_gt_u32 vcc, 512, v0
    s_and_b64 exec, exec, vcc
    s_cbranch_execz K1_END
    v_bfe_u32 v2, v0, 8, 1
    v_lshl_add_u32 v1, v2, 4, v1
    v_lshlrev_b32 v1, 1, v1
    v_bfe_u32 v2, v0, 5, 1
    v_lshl_add_u32 v1, v2, 12, v1
    v_bfe_u32 v2, v0, 6, 2
    v_lshl_add_u32 v1, v2, 10, v1
    s_waitcnt lgkmcnt(0)
    s_mov_b32 s18, 1.0
    s_cmp_eq_u32 s3, 0
    s_cselect_b32 s16, s6, s12
    s_cselect_b32 s17, s7, s13
    s_cselect_b32 s18, {f32(NLOG2E)}, s18
    s_cmp_eq_u32 s3, 2
    s_cselect_b32 s16, s4, s16
    s_cselect_b32 s17, s5, s17
    s_cmp_eq_u32 s3, 3
    s_cselect_b32 s16, s10, s16
    s_cselect_b32 s17, s11, s17
    """)
    for j in range(8):
        o(f"global_load_ushort v{8+j}, v1, s[16:17] offset:{128*j}")
    o(f"""
    s_lshl_b32 s19, s3, 13
    s_add_u32 s19, s19, {WS_WF}
    v_lshlrev_b32 v2, 4, v0
    v_add_u32 v2, s19, v2
    s_waitcnt vmcnt(0)
    """)
    for j in range(8):
        o(f"v_lshlrev_b32 v{8+j}, 16, v{8+j}\nv_mul_f32 v{8+j}, s18, v{8+j}")
    for j in range(4):
        o(f"v_cvt_pk_bf16_f32 v{16+j}, v{8+2*j}, v{9+2*j}")
    o(f"""
    global_store_dwordx4 v2, v[16:19], s[14:15]
    s_endpgm
K1_WC:
    v_cmp_gt_u32 vcc, 128, v0
    s_and_b64 exec, exec, vcc
    s_cbranch_execz K1_END
    v_bfe_u32 v2, v0, 6, 1
    v_lshl_add_u32 v1, v2, 4, v1
    v_lshlrev_b32 v1, 1, v1
    s_waitcnt lgkmcnt(0)
    global_load_ushort v8, v1, s[8:9]
    v_lshlrev_b32 v2, 2, v0
    v_add_u32 v2, {WS_WF+32768}, v2
    v_and_b32 v3, 32, v0
    v_cmp_eq_u32 vcc, 0, v3
    v_mov_b32 v4, 0
    s_waitcnt vmcnt(0)
    v_lshlrev_b32 v8, 16, v8
    v_mul_f32 v8, {f32(NLOG2E)}, v8
    v_cvt_pk_bf16_f32 v9, v4, v8
    v_sub_f32 v10, v8, v9
    v_cvt_pk_bf16_f32 v10, v4, v10
    v_or_b32 v9, 0x7f7f, v9
    v_cndmask_b32 v9, v10, v9, vcc
    global_store_dword v2, v9, s[14:15]
K1_END:
    s_endpgm
    """)
    return o.text()

VT, XL, XA, CK, D0, LD, LE, EP, WC, X, WB, WV, AP, DEN, NUM = 0, 1, 2, 3, 4, 8, 9, 10, 12, 16, 32, 64, 96, 128, 160
G = (192, 224); V = (208, 240)
ENT, DLR, QK, RK, OF, QC, INF, WA = 128, 144, 156, 160, 176, 180, 192, 224
NS = 14
PM = 64

def mf(d, a, b, c):
    cs = "0" if c is None else vr(c, 16)
    return f"v_mfma_f32_32x32x16_bf16 {vr(d,16)}, {vr(a,4)}, {vr(b,4)}, {cs}"
def mfe(t):
    return f"v_mfma_f32_32x32x8_bf16 {vr(G[t],16)}, {vr(WC+2*t,2)}, {vr(EP,2)}, {vr(AP+16*t,16)}"
def mf_list(t):
    l = [mfe(t)]
    for s in range(4):
        l.append(mf(G[t], WB+16*t+4*s, X+4*s, G[t]))
        l.append(mf(V[t], WV+16*t+4*s, X+4*s, None if s == 0 else V[t]))
    return l
def dma(i):
    so = ("s28", "s29", "s30", "0")[i]
    off = f" offset:{BLK*i}" if i else ""
    return f"buffer_load_dwordx4 v{D0+i}, s[4:7], {so} offen{off} lds"
def mads():
    return [f"v_mad_u32_u16 v{D0+i}, v{D0+i}, s31, v{CK}" for i in range(4)]
def xread(s): return f"ds_read_b128 {vr(X+4*s,4)}, v{XA}" + (f" offset:{16*s}" if s else "")
ADV = ["s_add_u32 s42, s42, %d" % SLOT, "s_cmp_eq_u32 s42, s41", "s_cselect_b32 s42, s40, s42"]

def phase(o, t, mfs, slots, fill1, fill2, pk1=(), pk2=()):
    g, v, den, num = G[t], V[t], DEN+16*t, NUM+16*t
    e = [f"v_exp_f32 v{g+i}, v{g+i}" for i in range(16)]
    r = [f"v_rcp_f32 v{g+i}, v{g+i}" for i in range(16)]
    def M(i):
        o(mfs[i])
        for x in slots[i]: o(x)
    k = 0
    for i in range(5):
        M(i)
        n = 3 if i < 4 else 4
        for x in e[k:k+n]: o(x)
        k += n
    for x in fill1: o(x)
    pk1 = list(pk1)
    for i in range(8):
        o(f"v_pk_add_f32 {vr(g+2*i,2)}, {vr(g+2*i,2)}, s[34:35]")
        if pk1: o(pk1.pop(0))
    k = 0
    for i in range(5, 9):
        M(i)
        n = 3 if i < 8 else 7
        for x in r[k:k+n]: o(x)
        k += n
    for x in fill2: o(x)
    pk2 = list(pk2)
    for i in range(8):
        o(f"v_pk_add_f32 {vr(den+2*i,2)}, {vr(den+2*i,2)}, {vr(g+2*i,2)}")
        if pk2: o(pk2.pop(0))
        o(f"v_pk_fma_f32 {vr(num+2*i,2)}, {vr(g+2*i,2)}, {vr(v+2*i,2)}, {vr(num+2*i,2)}")
        if pk2: o(pk2.pop(0))

def k2():
    o = A()
    def pay(i): return ENT + 4*(i//3) + i % 3 if i < 12 else QK + 2*(i-12)
    def dl8(i): return DLR + i if i < 12 else QK + 2*(i-12) + 1
    def meta(q): return ENT + 4*q + 3
    def pm(i): return f"s[{PM+2*i}:{PM+2*i+1}]"
    T, T2 = G[0], V[0]
    def celladdr():
        o(f"""
        v_mbcnt_lo_u32_b32 v20, -1, 0
        v_mbcnt_hi_u32_b32 v20, -1, v20
        s_lshl_b32 s48, s3, 6
        v_add_u32 v21, s48, v20
        v_lshrrev_b32 v22, 3, v21
        v_and_b32 v23, 7, v20
        v_lshlrev_b32 v23, 4, v23
        s_lshl_b32 s49, s2, 7
        v_lshl_add_u32 v{OF}, v22, 15, s49
        v_add_u32 v{OF}, v{OF}, v23
        """)
        for q in range(1, 4):
            o(f"v_add_u32 v{OF+q}, {q*64*32768}, v{OF}")
    def cellissue():
        for q in range(4):
            o(f"buffer_load_dwordx4 {vr(ENT+4*q,4)}, v{OF+q}, s[8:11], 0 offen")
    o(f"""
main_kernel:
    s_cmp_ge_u32 s2, {NB}
    s_cbranch_scc1 K2_END
    s_load_dwordx2 s[8:9], s[0:1], 88
    s_load_dwordx2 s[4:5], s[0:1], 0
    s_load_dwordx2 s[20:21], s[0:1], 72
@RT 4
@ST 0
    v_lshrrev_b32 v1, 6, v0
    s_mov_b32 s10, {P*32768}
    s_mov_b32 s11, 0x20000
    v_readfirstlane_b32 s3, v1
    """)
    if OPT["XMAP"]:
        o("""
        s_and_b32 s48, s2, 7
        s_lshr_b32 s2, s2, 3
        s_lshl_b32 s48, s48, 5
        s_or_b32 s2, s2, s48
        """)
    celladdr()
    o("s_waitcnt lgkmcnt(0)")
    cellissue()
    o(f"""
    s_add_u32 s16, s8, {WS_WF}
    s_addc_u32 s17, s9, 0
    s_mov_b32 s18, {32768+1024}
    s_mov_b32 s19, 0x20000
    s_add_u32 s12, s8, {WS_OVF}
    s_addc_u32 s13, s9, 0
    s_mov_b32 s14, {P*OVS+128}
    s_mov_b32 s15, 0x20000
    s_mov_b32 s45, 0
    s_mov_b32 s46, 0
    s_mov_b32 s47, 0
    s_mov_b32 s94, 48
    s_sub_u32 s4, s4, {3*BLK}
    s_subb_u32 s5, s5, 0
    s_mov_b32 s6, {N*128+3*BLK}
    s_mov_b32 s7, 0x20000
    s_mov_b32 s22, {N*128}
    s_mov_b32 s23, 0x20000
    s_add_u32 s24, s8, {WS_ACC}
    s_addc_u32 s25, s9, 0
    s_mov_b32 s26, {N*512}
    s_mov_b32 s27, 0x20000
K2_RESTART:
    v_lshlrev_b32 v28, 2, v20
    v_add_u32 v29, 32768, v28
    buffer_load_dword v{WC}, v29, s[16:19], 0 offen
    buffer_load_dword v{WC+2}, v29, s[16:19], 0 offen offset:256
    v_lshlrev_b32 v24, 4, v21
    v_mov_b32 v96, 0xffff
    v_mov_b32 v97, 0xffff
    v_mov_b32 v98, 0xffff
    v_mov_b32 v99, 0xffff
    v_add_u32 v25, {L_NM}, v24
    v_mov_b32 v100, 0
    v_lshlrev_b32 v30, 2, v21
    v_cmp_gt_u32 vcc, {(L_RING-L_CNT)//4}, v21
    ds_write_b128 v25, v[96:99]
    ds_write_b128 v25, v[96:99] offset:8192
    ds_write_b128 v25, v[96:99] offset:16384
    ds_write_b128 v25, v[96:99] offset:24576
    ds_write_b128 v25, v[96:99] offset:32768
    s_mul_i32 s48, s3, {GS}
    v_add_u32 v26, s48, v28
    ds_write_b32 v26, v96
    s_and_b64 exec, exec, vcc
    ds_write_b32 v30, v100 offset:{L_CNT}
    s_mov_b64 exec, -1
    s_mov_b32 s28, {3*BLK}
    s_and_b32 s48, s3, 1
    s_lshl_b32 s48, s48, 6
    v_and_b32 v102, 0x30, v20
    v_or_b32 v102, s48, v102
    v_xor_b32 v102, v102, v24
    s_mul_i32 s51, s2, {R*128}
    v_add_u32 v184, s51, v102
    v_and_b32 v185, 0xfff, v24
    v_lshlrev_b32 v110, 4, v20
    s_and_b32 s50, s3, 3
    s_lshl_b32 s50, s50, 10
    s_waitcnt lgkmcnt(0)
    s_barrier
    """)
    NLATE = 2
    if OPT["OWNE"]:
        o(f"""
        v_cmp_gt_u32 vcc, 32, v21
        s_lshl_b32 s48, s3, 10
        s_or_b32 vcc_lo, vcc_lo, 1
        """)
        for i in range(4):
            o(f"s_add_u32 m0, s48, {L_OWN+8192*i}\ns_add_u32 s49, s28, {8192*i}")
            if i == 3: o("s_mov_b64 exec, vcc")
            o("buffer_load_dwordx4 v184, s[4:7], s49 offen lds")
        o("s_mov_b64 exec, -1")
        NLATE = 6
    o(f"""
    ; constants
    s_mov_b32 s29, {2*BLK}
    s_mov_b32 s30, {BLK}
    s_mov_b32 s31, 128
    s_mov_b32 s32, {N}
    s_mov_b32 s34, 1.0
    s_mov_b32 s35, 1.0
    s_mov_b32 s36, {f32(1e-6)}
    s_mov_b32 s37, {f32(1e-6)}
    s_mov_b32 s38, {f32(NLOG2E)}
    s_mov_b32 s39, {f32(NLOG2E)}
    s_mul_i32 s40, s3, {RINGW}
    s_add_u32 s40, s40, {L_RING}
    s_add_u32 s41, s40, {RINGW}
    s_lshl_b32 s48, s3, 2
    s_lshr_b32 s44, 0x72106453, s48
    s_and_b32 s44, s44, 7
    v_mov_b32 v{WC+1}, 0
    v_mov_b32 v{WC+3}, 0
    v_mov_b32 v{EP+1}, 0
    v_mov_b32 v31, 1
    v_bfe_u32 v{CK}, v20, 4, 1
    v_lshlrev_b32 v{CK}, 6, v{CK}
    v_xor_b32 v{CK}, v{CK}, v23
    ; column c = l&31, h = l>>5; r = (c3 c2 c4); i = c&3
    v_bfe_u32 v102, v20, 2, 2
    v_bfe_u32 v103, v20, 4, 1
    v_lshl_or_b32 v102, v102, 1, v103
    v_and_b32 v103, 3, v20
    v_lshl_or_b32 v{LE}, v102, 2, v103
    v_lshlrev_b32 v{LE}, 2, v{LE}
    v_lshrrev_b32 v{LD}, 3, v20
    v_lshlrev_b32 v{LD}, 4, v{LD}
    s_cmp_ge_u32 s44, 3
    s_cselect_b32 s49, 0x7c, 0x3c
    s_cmp_eq_u32 s44, 0
    s_cselect_b32 s49, 0x1c, s49
    s_mul_i32 s48, s44, {GS}
    v_and_b32 v189, s49, v{LD}
    v_and_b32 v190, s49, v{LE}
    v_add_u32 v189, s48, v189
    v_add_u32 v190, s48, v190
    v_add_u32 v{LE}, s48, v{LE}
    v_add_u32 v{LD}, s48, v{LD}
    v_and_b32 v122, 32, v20
    v_lshlrev_b32 v122, 1, v122
    s_add_u32 s49, s49, 4
    s_ff1_i32_b32 s54, s49
    s_sub_u32 s54, s54, 2
    s_lshr_b32 s95, 1024, s54
    v_lshrrev_b32 v188, s54, v20
    v_bfe_u32 v191, v20, 0, s54
    v_lshl_add_u32 v191, v191, 2, s48
    s_lshl_b32 s55, s49, 2
    v_mad_u32_u24 v{OF}, v188, s55, v191
    v_add_u32 v{OF+1}, s49, v{OF}
    v_add_u32 v{OF+2}, s49, v{OF+1}
    v_add_u32 v{OF+3}, s49, v{OF+2}
    v_lshlrev_b32 v188, 4, v188
    v_add_u32 v188, {L_NM}, v188
    s_mov_b32 s33, {L_NM-NMS}
    v_mul_u32_u24 v{XL}, {BLK}, v103
    v_lshl_add_u32 v{XL}, v102, 7, v{XL}
    v_bfe_u32 v103, v102, 1, 1
    v_lshrrev_b32 v102, 5, v20
    v_xor_b32 v103, v103, v102
    v_lshl_add_u32 v{XL}, v103, 6, v{XL}
    s_mul_i32 s48, s2, {R}
    s_sub_u32 s49, {N}, s48
    s_min_u32 s49, s49, {R}
    v_cmp_gt_u32 s[52:53], s49, v21
    v_add_u32 v109, s48, v21
    s_or_b32 s48, s45, s47
    s_cbranch_scc1 K2_SLOWLOAD
    s_mov_b64 {pm(12)}, 0
    s_mov_b64 {pm(13)}, 0
    """)
    def ext(i):
        o(f"v_lshlrev_b32_sdwa v{dl8(i)}, 2, v{meta(i//3)} dst_sel:DWORD dst_unused:UNUSED_PAD src0_sel:DWORD src1_sel:BYTE_{i%3}")
    def cnt(i):
        o(f"s_mov_b64 exec, {pm(i)}\nds_add_rtn_u32 v{RK+i}, v{dl8(i)}, v31 offset:{L_CNT-4}")
    def nmput(sl):
        for i in sl: o(f"v_mad_u32_u24 v{INF+i}, v{dl8(i)}, {NMS//4}, s33")
        o("s_waitcnt lgkmcnt(0)")
        for i in sl: o(f"v_min_u32 v{RK+i}, s94, v{RK+i}\nv_lshl_add_u32 v{INF+i}, v{RK+i}, 2, v{INF+i}")
        for i in sl: o(f"s_mov_b64 exec, {pm(i)}\nds_write_b32 v{INF+i}, v{pay(i)}")
    for q in range(4):
        o(f"s_waitcnt vmcnt({3-q+NLATE})")
        if q == 0: o("@SA 1")
        for j in range(3): ext(3*q+j)
        for j in range(3): o(f"v_cmp_ne_u32 {pm(3*q+j)}, 0, v{dl8(3*q+j)}")
        for j in range(3): cnt(3*q+j)
        o("s_mov_b64 exec, -1")
    o(f"""
    v_or3_b32 v102, v{meta(0)}, v{meta(1)}, v{meta(2)}
    v_or_b32 v102, v102, v{meta(3)}
    v_cmp_gt_i32 vcc, 0, v102
    s_cbranch_vccnz K2_QUICK
K2_COUNTED:
    s_mov_b64 exec, -1
    """)
    nmput(range(12))
    o(f"""
    s_mov_b64 exec, -1
@SA 11
    s_cmp_ge_u32 s3, 4
    s_cbranch_scc1 K2_YOUNG
    v_cmp_gt_u32 vcc, 32, v21
    """)
    for i in range(0 if OPT["OWNE"] else 7):
        o(f"s_add_u32 m0, s50, {L_OWN+4096*i}\ns_add_u32 s49, s28, {4096*i}")
        if i == 6: o("s_mov_b64 exec, vcc")
        o("buffer_load_dwordx4 v184, s[4:7], s49 offen lds")
    o(f"""
    s_mov_b64 exec, -1
    s_waitcnt lgkmcnt(0)
    s_barrier
@SA 2
    ds_read_b32 v111, v30 offset:{L_CNT}
    s_waitcnt lgkmcnt(0)
    v_cmp_lt_u32 vcc, s94, v111
    v_min_u32 v111, s94, v111
    v_sub_u32 v112, 63, v111
    v_lshlrev_b32 v112, 2, v112
    s_mov_b64 exec, s[52:53]
    ds_add_rtn_u32 v113, v112, v31 offset:{L_HIST}
    v_mov_b32 v107, {L_LG+36}
    s_and_b64 exec, exec, vcc
    ds_write_b32 v107, v107
    s_mov_b64 exec, -1
    s_waitcnt lgkmcnt(0)
    s_barrier
    ds_read_b32 v114, v28 offset:{L_HIST}
    s_waitcnt lgkmcnt(0)
    v_mov_b32 v115, v114
    """)
    scan(o, 114)
    o(f"""
    v_sub_u32 v114, v114, v115
    ds_bpermute_b32 v114, v112, v114
    v_mov_b32 v118, 128
    s_movk_i32 s48, {GS}
    s_waitcnt lgkmcnt(0)
    v_add_u32 v114, v114, v113
    v_add_u32 v115, 56, v114
    v_lshrrev_b32 v116, 5, v115
    v_and_b32 v117, 31, v115
    v_add_u32 v115, 8, v114
    v_cmp_gt_u32 vcc, 40, v114
    v_cmp_gt_u32 s[54:55], 8, v114
    v_lshrrev_b32 v119, 4, v115
    v_and_b32 v120, 15, v115
    v_cndmask_b32 v116, v116, v119, vcc
    v_cndmask_b32 v117, v117, v120, vcc
    v_cndmask_b32 v118, v118, 64, vcc
    v_cndmask_b32 v117, v117, v114, s[54:55]
    v_cndmask_b32 v23, v118, 32, s[54:55]
    v_lshlrev_b32 v117, 2, v117
    v_mad_u32_u24 v22, v116, s48, v117
    v_mul_u32_u24 v24, v111, v23
    v_add_u32 v24, 127, v24
    v_lshrrev_b32 v24, 7, v24
    v_lshlrev_b32 v25, 2, v116
    s_mov_b64 exec, s[52:53]
    ds_write_b32 v22, v109
    ds_max_u32 v25, v24 offset:{L_LG}
    s_mov_b64 exec, -1
    s_waitcnt vmcnt(0) lgkmcnt(0)
    s_branch K2_B4
K2_YOUNG:
    s_waitcnt lgkmcnt(0)
    s_barrier
@SA 2
    s_barrier
    """)
    for i in (4, 5, 0, 1, 2, 3, 6, 7):
        o(f"s_add_u32 m0, s50, {L_WB+4096*i}\ns_movk_i32 s49, {4096*i}")
        o("buffer_load_dwordx4 v185, s[16:19], s49 offen lds")
    if OPT["OWNE"]: o("s_waitcnt vmcnt(8)")
    if OPT["OUTTLB"]:
        o(f"""
        v_lshlrev_b32 v186, 12, v20
        v_min_u32 v186, {R*128-4}, v186
        s_mov_b32 m0, {L_CNT}
        s_mov_b64 exec, 0xff
        buffer_load_dword v186, s[20:23], s51 offen lds
        s_mov_b64 exec, -1
        """)
    o(f"""
K2_B4:
    s_mul_i32 s48, s2, {R}
    s_movk_i32 s49, {NMS}
    s_barrier
@ST 3
    ds_read_b32 v120, v191
    ds_read_b32 v121, v190
    ds_read_b32 v123, v28 offset:{L_LG}
    ds_read_b128 {vr(D0,4)}, v189
    s_waitcnt lgkmcnt(1)
@SB 1
    v_subrev_u32 v120, s48, v120
    v_min_u32 v120, {R}, v120
    v_mad_u32_u24 v120, v120, s49, v188
    v_add_u32 v119, s95, v120
    v_add_u32 v118, s95, v119
    v_cmp_lt_u32 vcc, {LCAP}, v123
    ds_read_b128 {vr(T2,4)}, v120
    ds_read_b128 {vr(T2+4,4)}, v119
    ds_read_b128 {vr(T2+8,4)}, v118
    v_subrev_u32 v121, s48, v121
    v_min_u32 v121, {R-1}, v121
    v_lshlrev_b32 v124, 3, v121
    v_and_b32 v124, 0x70, v124
    v_xor_b32 v124, v124, v122
    v_lshl_add_u32 v124, v121, 7, v124
    v_xor_b32 v125, 16, v124
    v_xor_b32 v126, 32, v124
    v_xor_b32 v127, 48, v124
    v_readlane_b32 s43, v123, s44
    """)
    for s_ in range(4): o(f"ds_read_b128 {vr(X+4*s_,4)}, v{124+s_} offset:{L_OWN}")
    o(f"""
    s_mov_b32 s47, 0
    s_and_b32 s33, vcc_lo, 0x3ff
    s_cbranch_scc1 K2_FLAGS
K2_FLAGSDONE:
    s_lshl_b32 s48, s43, 7
    v_add_u32 v121, s48, v{LD}
    v_mov_b32 v{VT}, v110
    s_mov_b32 m0, s40
    {'s_mov_b32 s76, s43' if DIAG else ''}
    """)
    def build_list():
        for k in range(3):
            for e in range(4):
                o(f"ds_write_b32 v{OF+e}, v{T2+4*k+e} offset:{128+1024*k}")
        o(f"""
        ds_write_b128 v121, {vr(D0,4)} offset:128
        ds_read_b128 {vr(D0,4)}, v{LD} offset:128
        ds_read_b128 {vr(T,4)}, v{LD} offset:256
        ds_read_b128 {vr(T+4,4)}, v{LD} offset:384
        ds_read_b128 {vr(T+8,4)}, v{LD} offset:512
        ds_read_b32 v{EP}, v{LE} offset:128
        """)
    def frags(reg, off):
        for f in range(8): o(f"ds_read_b128 {vr(reg+4*f,4)}, v{VT} offset:{L_WB+off+1024*f}")
    def rowdma(n):
        if n: o(f"s_add_u32 m0, s40, {n*SLOT}")
        for i in range(4): o(f"v_mad_u32_u16 v{D0+i}, v{T+4*(n-1)+i if n else D0+i}, s31, v{CK}")
        for i in range(4): o(dma(i))
    def aprime():
        k = 0
        for s_ in range(4):
            for t in range(2):
                o(mf(AP+16*t, WA+16*t+4*s_, X+4*s_, None if s_ == 0 else AP+16*t))
                for i in range(8*k, 8*k+8): o(f"v_mov_b32 v{DEN+i}, 0")
                k += 1
    o("s_cmp_ge_u32 s3, 4\ns_cbranch_scc1 K2_YPRE")
    o("s_waitcnt lgkmcnt(4)\n@SB 11")
    build_list()
    o("s_waitcnt lgkmcnt(4)\n@SB 2\ns_barrier\n@ST 6")
    rowdma(0)
    frags(WA, 16384)
    o("s_waitcnt lgkmcnt(8)")
    rowdma(1)
    frags(WB, 0)
    rowdma(2)
    o("s_waitcnt lgkmcnt(8)")
    frags(WV, 8192)
    aprime()
    if OPT["PRIO"]: o(f"s_setprio 2\ns_mov_b32 s50, {OPT['PK']}")
    o("s_branch K2_PRE\nK2_YPRE:")
    if OPT["PRIO"]: o(f"s_setprio 1\ns_mov_b32 s50, -5")
    o(f"s_waitcnt vmcnt({OPT['OUTTLB']}) lgkmcnt(0)\n@SB 11\n@SB 2\ns_barrier\n@ST 6")
    build_list()
    frags(WA, 16384)
    frags(WB, 0)
    o("s_waitcnt lgkmcnt(8)")
    frags(WV, 8192)
    aprime()
    if OPT["YD"] > 1: o("s_waitcnt lgkmcnt(0)")
    rowdma(0); rowdma(1); rowdma(2)
    o("K2_PRE:")
    for i in range(4): o(f"v_mad_u32_u16 v{D0+i}, v{T+8+i}, s31, v{CK}")
    o(f"""
    v_pk_sub_u16 v{EP}, v{EP}, s32 clamp
    v_add_u32 v{XA}, s40, v{XL}
    v_add_u32 v{LD}, {5*128}, v{LD}
    v_add_u32 v{LE}, {2*128}, v{LE}
    s_cmp_lg_u32 s46, 0
    s_cbranch_scc1 K2_LOADACC
K2_ACCDONE:
    s_mov_b32 m0, s40
    s_add_u32 s42, s40, {SLOT}
    """)
    for i in range(16): o(f"v_pk_mul_f32 {vr(AP+2*i,2)}, {vr(AP+2*i,2)}, s[38:39]")
    o(f"""
    s_waitcnt vmcnt(8)
@ST 7
    """)
    for s_ in range(4): o(xread(s_))
    ml = mf_list(0)
    o(ml[0])
    o("s_waitcnt lgkmcnt(0)")
    for i in range(4): o(ml[1+2*i]); o(dma(i))
    for i in range(4): o(ml[2+2*i])
    o(f"""
    v_add_u32 v{XA}, {SLOT}, v{XA}
@ST 8
    """)
    o(f"""
    s_sub_u32 s43, s43, 1
    s_cbranch_scc1 K2_LOOPEND
    .p2align 4
K2_LOOP:
    """)
    sl = [[] for _ in range(9)]
    sl[0] = [f"ds_read_b32 v{VT}, v{LE}"]
    sl[1] = ["s_waitcnt vmcnt(8)"]
    sl[2] = [xread(0)]
    sl[3] = [f"ds_read_b128 {vr(D0,4)}, v{LD}"]
    sl[4] = [xread(1)]
    sl[5] = ["s_mov_b32 m0, s42"]
    sl[6] = [xread(2)]
    sl[7] = ["s_waitcnt lgkmcnt(2)"]
    sl[8] = [xread(3)]
    phase(o, 0, mf_list(1), sl,
          [f"v_add_u32 v{LE}, 128, v{LE}", f"v_add_u32 v{LD}, 128, v{LD}"],
          [f"v_pk_sub_u16 v{EP}, v{VT}, s32 clamp"] + mads(),
          pk1=(), pk2=ADV + ["s_waitcnt lgkmcnt(0)"])
    sl = [[] for _ in range(9)]
    for i in range(4): sl[i] = [dma(i)]
    if OPT["PRIO"]:
        sl[5] = ["s_cmp_lg_u32 s43, s50"]
        sl[6] = ["s_cbranch_scc1 K2_NOP", "s_setprio 0", "K2_NOP:"]
    sl[8] = ["s_sub_u32 s43, s43, 1"]
    phase(o, 1, mf_list(0), sl, [f"v_add_u32 v{XA}, s42, v{XL}"], [])
    o(f"""
    s_cbranch_scc0 K2_LOOP
K2_LOOPEND:
@ST 9
    v_mbcnt_lo_u32_b32 v{D0}, -1, 0
    v_mbcnt_hi_u32_b32 v{D0}, -1, v{D0}
    v_lshlrev_b32 v{D0+1}, 4, v{D0}
    v_subrev_u32 v{LE}, 128, v{LE}
    ds_read_b32 v{VT}, v{LE}
    """)
    if OPT["OUTT"]:
        o(f"""
        v_subrev_u32 v{LD}, 512, v{LD}
        ds_read_b128 {vr(AP,4)}, v{LD}
        v_add_u32 v{AP+4}, s40, v{D0+1}
        v_add_u32 v{AP+5}, s40, v{XL}
        s_mov_b64 s[54:55], -1
        """)
    for f in range(8):
        o(f"ds_read_b128 {vr(WB+4*f,4)}, v{D0+1} offset:{L_WU+1024*f}")
    o(f"""
    s_mov_b32 s48, 0
    s_cmp_ge_u32 s44, 3
    s_cbranch_scc1 K2_NOCOMB
    s_mov_b32 s48, 8
    s_mov_b32 s55, 0
    """)
    for i in range(64): o(f"v_add_f32_dpp v{DEN+i}, v{DEN+i}, v{DEN+i} row_ror:8 row_mask:0xf bank_mask:0xf")
    o(f"""
    s_cmp_lg_u32 s44, 0
    s_cbranch_scc1 K2_NOCOMB
    s_mov_b32 s48, 12
    s_mov_b32 s54, 0xffff
    """)
    for i in range(64): o(f"v_add_f32_dpp v{DEN+i}, v{DEN+i}, v{DEN+i} row_ror:4 row_mask:0xf bank_mask:0xf")
    o(f"""
K2_NOCOMB:
    v_and_b32 v{D0+2}, s48, v{D0}
    v_cmp_eq_u32 vcc, 0, v{D0+2}
    v_mov_b32 v{D0+3}, 0xffff
    v_lshrrev_b32 v{D0}, 5, v{D0}
    s_waitcnt lgkmcnt(0)
    v_cndmask_b32 v{D0+2}, v{D0+3}, v{VT}, vcc
    s_cmp_lg_u32 s33, 0
    s_cbranch_scc1 K2_STOREACC
    v_lshlrev_b32 v{D0}, 6, v{D0}
    v_lshl_add_u32 v{D0}, v{D0+2}, 7, v{D0}
    """)
    for i in range(16): o(f"v_pk_add_f32 {vr(DEN+2*i,2)}, {vr(DEN+2*i,2)}, s[36:37]")
    k = 0
    for s in range(4):
        for t in range(2):
            o(mf(G[t], WB+16*t+4*s, X+4*s, None if s == 0 else G[t]))
            n = 3 if (s, t) != (3, 1) else 11
            for i in range(k, k+n): o(f"v_rcp_f32 v{DEN+i}, v{DEN+i}")
            k += n
    o("s_mov_b32 s49, 0xffff0000\ns_nop 0")
    for t in range(2):
        for i in range(8):
            o(f"v_pk_fma_f32 {vr(G[t]+2*i,2)}, {vr(NUM+16*t+2*i,2)}, {vr(DEN+16*t+2*i,2)}, {vr(G[t]+2*i,2)}")
    for t in range(2):
        for i in range(8):
            o(f"v_lshlrev_b32 v{V[t]+2*i}, 16, v{X+8*t+i}")
            o(f"v_and_b32 v{V[t]+2*i+1}, s49, v{X+8*t+i}")
            o(f"v_max_f32 v{G[t]+2*i}, 0, v{G[t]+2*i}")
            o(f"v_max_f32 v{G[t]+2*i+1}, 0, v{G[t]+2*i+1}")
            o(f"v_pk_add_f32 {vr(G[t]+2*i,2)}, {vr(G[t]+2*i,2)}, {vr(V[t]+2*i,2)}")
            o(f"v_cvt_pk_bf16_f32 v{DEN+8*t+i}, v{G[t]+2*i}, v{G[t]+2*i+1}")
            if i % 4 == 3:
                j = 2*t + i//4
                if OPT["OUTT"]:
                    if j == 0: o("s_waitcnt vmcnt(0)")
                    o(f"ds_write_b128 v{AP+5}, {vr(DEN+4*j,4)}" + (f" offset:{16*j}" if j else ""))
                else: o(f"buffer_store_dwordx4 {vr(DEN+4*j,4)}, v{D0}, s[20:23], 0 offen" + (f" offset:{16*j}" if j else "") + (" " + OPT["OUTSC"] if OPT["OUTSC"] else ""))
    if OPT["OUTT"]:
        o("s_mov_b64 exec, s[54:55]")
        for i in range(4): o(f"ds_read_b128 {vr(AP+8+4*i,4)}, v{AP+4}" + (f" offset:{BLK*i}" if i else ""))
        for i in range(4): o(f"v_mad_u32_u16 v{AP+i}, v{AP+i}, s31, v{CK}")
        for i in range(4):
            o(f"s_waitcnt lgkmcnt({3-i})")
            o(f"buffer_store_dwordx4 {vr(AP+8+4*i,4)}, v{AP+i}, s[20:23], 0 offen" + (" " + OPT["OUTSC"] if OPT["OUTSC"] else ""))
    o("@ST 10\n@RT 5")
    if DIAG: o("s_getreg_b32 s77, hwreg(HW_REG_HW_ID)\ns_getreg_b32 s78, hwreg(HW_REG_XCC_ID)")
    dump(o, 12, 0x4000000, ("s76", "s77", "s78", "s44"))
    o(f"""
K2_END:
    s_endpgm
K2_FLAGS:
    s_and_b32 s48, s33, 0xff
    s_cbranch_scc0 K2_PEND
    s_mov_b32 s94, {LCAP}
    s_mov_b32 s47, 1
    s_branch K2_AGAIN
K2_PEND:
    s_and_b32 s47, s33, 0x200
    s_cbranch_scc0 K2_FLAGSDONE
    """)
    for i in range(NS):
        o(f"v_cmp_le_u32 vcc, s94, v{RK+i}\ns_and_b64 {pm(i)}, {pm(i)}, vcc")
    def more(v):
        o(f"""
        v_mov_b32 v107, {L_LG+32}
        v_mov_b32 v108, 64
        s_and_b64 exec, exec, vcc
        ds_write_b32 v107, v108
        """)
    o(f"""
    s_branch K2_FLAGSDONE
K2_QUICK:
    s_mov_b64 s[54:55], vcc
    v_mov_b32 v102, 192
    v_mov_b32 v103, 128
    v_cmp_gt_i32 vcc, 0, v{meta(2)}
    v_lshrrev_b32 v104, 31, v{meta(0)}
    v_lshrrev_b32 v105, 31, v{meta(1)}
    v_cndmask_b32 v102, v102, v103, vcc
    v_cmp_gt_i32 vcc, 0, v{meta(1)}
    v_add_u32 v104, v104, v105
    v_lshrrev_b32 v105, 31, v{meta(2)}
    v_cndmask_b32 v102, v102, 64, vcc
    v_cmp_gt_i32 vcc, 0, v{meta(0)}
    v_add_u32 v104, v104, v105
    v_lshrrev_b32 v105, 31, v{meta(3)}
    v_cndmask_b32 v102, v102, 0, vcc
    v_add_u32 v104, v104, v105
    v_add_u32 v102, v102, v22
    v_mul_u32_u24 v102, {OVS}, v102
    v_add_u32 v103, v102, v23
    s_mov_b64 exec, s[54:55]
    buffer_load_dword v{QC}, v102, s[12:15], 0 offen
    buffer_load_dwordx4 {vr(QK,4)}, v103, s[12:15], 0 offen offset:16
    v_lshrrev_b32 v105, 3, v23
    v_lshlrev_b32 v104, 4, v104
    s_waitcnt vmcnt(0)
    s_cmp_lg_u32 s47, 0
    s_cbranch_scc1 K2_QKEEP
    v_cmp_lt_u32 vcc, v105, v{QC}
    v_cmp_eq_u32_sdwa {pm(12)}, s2, v{QK+1} src0_sel:DWORD src1_sel:WORD_1
    v_add_u32 v105, 1, v105
    s_and_b64 {pm(12)}, {pm(12)}, vcc
    v_cmp_lt_u32 vcc, v105, v{QC}
    v_cmp_eq_u32_sdwa {pm(13)}, s2, v{QK+3} src0_sel:DWORD src1_sel:WORD_1
    s_and_b64 {pm(13)}, {pm(13)}, vcc
K2_QKEEP:
    v_and_b32 v{QK+1}, 0xffff, v{QK+1}
    v_and_b32 v{QK+3}, 0xffff, v{QK+3}
    v_max_u32 v104, v104, v{QC}
    v_cmp_lt_u32 vcc, 16, v104
    """)
    more(0)
    cnt(12); cnt(13)
    o('s_mov_b64 exec, -1')
    nmput((12, 13))
    o(f"""
    s_branch K2_COUNTED
K2_SLOWLOAD:
    s_waitcnt vmcnt(0)
    s_cmp_lg_u32 s45, 0
    s_cbranch_scc1 K2_CHUNK
    """)
    for i in range(12): ext(i)
    for i in range(12): cnt(i)
    o(f"""
    s_mov_b64 exec, -1
    v_or3_b32 v102, v{meta(0)}, v{meta(1)}, v{meta(2)}
    v_or_b32 v102, v102, v{meta(3)}
    v_cmp_gt_i32 vcc, 0, v102
    s_cbranch_vccnz K2_QUICK
    s_branch K2_COUNTED
K2_CHUNK:
    s_sub_u32 s48, s45, 16
    s_lshl_b32 s49, s48, 3
    v_mul_u32_u24 v102, {OVS}, v22
    v_lshrrev_b32 v105, 3, v23
    v_add_u32 v105, s48, v105
    v_add_u32 v106, 1, v105
    s_cmp_eq_u32 s48, 0
    s_cselect_b64 s[54:55], 0, -1
    v_mov_b32 v104, 0
    """)
    for q in range(4):
        o(f"""
        s_mov_b64 exec, -1
        v_mov_b32 v{QC+q}, 0
        v_cmp_gt_i32 vcc, 0, v{meta(q)}
        v_add3_u32 v103, v102, v23, s49
        s_mov_b64 exec, vcc
        buffer_load_dword v{QC+q}, v102, s[12:15], 0 offen
        buffer_load_dwordx4 {vr(INF+4*q,4)}, v103, s[12:15], 0 offen offset:16
        s_waitcnt vmcnt(0)
        v_max_u32 v104, v104, v{QC+q}
        s_andn2_b64 exec, vcc, s[54:55]
        v_mov_b32 v{QC+q}, 0
        s_or_b64 s[54:55], s[54:55], vcc
        s_mov_b64 exec, -1
        v_add_u32 v102, {64*OVS}, v102
        """)
    o(f"""
    s_cmp_lg_u32 s47, 0
    s_cbranch_scc1 K2_CKEEP
    s_mov_b64 {pm(12)}, 0
    s_mov_b64 {pm(13)}, 0
    """)
    for q in range(4):
        o(f"s_mov_b64 {pm(3*q+2)}, 0")
        for k in range(2):
            o(f"""
            v_cmp_lt_u32 vcc, v{105+k}, v{QC+q}
            v_cmp_eq_u32_sdwa {pm(3*q+k)}, s2, v{INF+4*q+2*k+1} src0_sel:DWORD src1_sel:WORD_1
            s_and_b64 {pm(3*q+k)}, {pm(3*q+k)}, vcc
            """)
    o("K2_CKEEP:")
    for q in range(4):
        for k in range(2):
            o(f"v_mov_b32 v{pay(3*q+k)}, v{INF+4*q+2*k}\nv_and_b32 v{dl8(3*q+k)}, 0xffff, v{INF+4*q+2*k+1}")
    o(f"v_cmp_lt_u32 vcc, s45, v104")
    more(0)
    for q in range(4):
        for k in range(2): cnt(3*q+k)
    o(f"""
    s_branch K2_COUNTED
K2_LOADACC:
    s_lshl_b32 s48, s43, 7
    s_sub_u32 s48, s48, 128
    v_add_u32 v{G[0]}, s48, v{LE}
    ds_read_b32 v{G[0]}, v{G[0]}
    v_mbcnt_lo_u32_b32 v{G[0]+1}, -1, 0
    v_mbcnt_hi_u32_b32 v{G[0]+1}, -1, v{G[0]+1}
    s_cmp_ge_u32 s44, 3
    s_cselect_b32 s48, 0, 8
    s_cmp_eq_u32 s44, 0
    s_cselect_b32 s48, 12, s48
    v_and_b32 v{G[0]+2}, s48, v{G[0]+1}
    v_cmp_eq_u32 vcc, 0, v{G[0]+2}
    v_mov_b32 v{G[0]+3}, 0xffff
    v_lshrrev_b32 v{G[0]+1}, 5, v{G[0]+1}
    v_lshlrev_b32 v{G[0]+1}, 8, v{G[0]+1}
    s_waitcnt lgkmcnt(0)
    v_cndmask_b32 v{G[0]}, v{G[0]+3}, v{G[0]}, vcc
    v_lshl_add_u32 v{G[0]}, v{G[0]}, 9, v{G[0]+1}
    """)
    for j in range(16):
        o(f"buffer_load_dwordx4 {vr(DEN+4*j,4)}, v{G[0]}, s[24:27], 0 offen offset:{16*j}")
    o(f"""
    s_waitcnt vmcnt(0)
    s_branch K2_ACCDONE
K2_STOREACC:
    v_lshlrev_b32 v{D0}, 8, v{D0}
    v_lshl_add_u32 v{D0}, v{D0+2}, 9, v{D0}
    """)
    for j in range(16):
        o(f"buffer_store_dwordx4 {vr(DEN+4*j,4)}, v{D0}, s[24:27], 0 offen offset:{16*j}")
    o(f"""
    s_mov_b32 s46, 1
    s_cmp_lg_u32 s47, 0
    s_cselect_b32 s48, 0, 16
    s_add_u32 s45, s45, s48
K2_AGAIN:
    s_waitcnt vmcnt(0) lgkmcnt(0)
    s_barrier
    """)
    celladdr()
    cellissue()
    o("s_branch K2_RESTART")
    return o.text()

def desc(name, nv, ns):
    return f"""
.p2align 6
.amdhsa_kernel {name}
  .amdhsa_next_free_vgpr {nv}
  .amdhsa_next_free_sgpr {ns}
  .amdhsa_accum_offset {(nv+3)//4*4}
  .amdhsa_group_segment_fixed_size 0
  .amdhsa_kernarg_size 96
  .amdhsa_user_sgpr_count 2
  .amdhsa_user_sgpr_kernarg_segment_ptr 1
  .amdhsa_system_sgpr_workgroup_id_x 1
  .amdhsa_float_denorm_mode_32 3
.end_amdhsa_kernel
"""

def build():
    hdr = open(f"cdna_kernels/{NAME}.s.ref").read().split("; Override launch geometry")[0]
    s = hdr
    s += f"; @launch kernel=part_kernel grid=({P+5},1,1) block=({896 if OPT['K1TLB'] else 832},1,1) lds={LDS1}\n"
    s += f"; @launch kernel=main_kernel grid=({NB},1,1) block=(512,1,1) lds={LDS2}\n"
    s += '.amdgcn_target "amdgcn-amd-amdhsa--gfx950"\n.text\n'
    for nm, body in (("part_kernel", k1()), ("main_kernel", k2())):
        s += f".globl {nm}\n.p2align 8\n.type {nm},@function\n" + body
    s += '.section .rodata,"a"\n' + desc("part_kernel", 52, 102 if DIAG else 24) + desc("main_kernel", 256, 102 if DIAG else 96)
    return s

if __name__ == "__main__":
    if "--diag" in sys.argv:
        sys.argv.remove("--diag"); DIAG = True
    out = sys.argv[1] if len(sys.argv) > 1 else f"cdna_kernels/{NAME}.s"
    open(out, "w").write(build())
```

```python
import sys, struct
NAME = "gather_scatter__edge_featured_mpnn_gatedgcn__graph"
N, E, R, P, CH = 50000, 800000, 196, 250, 3200
NB = 256
WS_WF, WS_OVF, WS_ACC = 0x800000, 0x840000, 0x1100000
OVL = 0x200000
OVS = 25728
K1_HIST = 40960
LDS1 = K1_HIST + 832*4
LCAP = 24
NMS = 208
GS = (LCAP + 2) * 128
L_LIST = 0
L_WB = 8 * GS
L_WU = L_WB + 24576
L_CNT = L_WB + 32768
L_HIST = L_CNT + 1024
L_LG = L_HIST + 256
L_RING = L_LG + 64
BLK, SLOT = 1040, 4160
RINGW = 3 * SLOT
L_NM = L_RING
L_OWN = (L_RING + 4 * RINGW + 127) // 128 * 128
LDS2 = L_RING + 8 * RINGW
def f32(x): return "0x%08x" % struct.unpack("<I", struct.pack("<f", x))[0]
NLOG2E = -1.4426950408889634

DIAG = False
import os
OPT = dict(XMAP=1, K1PF=0, K1SC="sc1", OUTSC="", YD=1, STSET=0, K1TLB=0, OUTTLB=1, OWNE=0, PRIO=0, PK=0, K1T2=0, OUTT=0, SPLIT=1, OWNO=0, R3E=1, OWN67=0, EARLY=0, K1LSC="nt", CELLSC="nt", OWNSC="nt", ROWSC="", PRESC="", PREN=3)
for kv in os.environ.get("GOPT", "").split(","):
    if kv:
        k_, v_ = kv.split("="); OPT[k_] = v_.replace("_", " ") if k_.endswith("SC") else int(v_)
ST_REGS = [56, 58, 60, 62, 96, 74, 64, 66, 68, 70, 72, 98]
def stamp(o, i, real=False):
    if DIAG:
        r = ST_REGS[i]
        o(f"s_mem{'real' if real else ''}time s[{r}:{r+1}]")
def dump(o, n, base, extra=()):
    if DIAG:
        o("s_load_dwordx2 s[100:101], s[0:1], 88\ns_waitcnt lgkmcnt(0)\ns_mov_b64 exec, -1")
        for i in range(n): o(f"v_writelane_b32 v1, s{ST_REGS[i]}, {i}")
        for j, x in enumerate(extra): o(f"v_writelane_b32 v1, {x}, {n+j}")
        o(f"""v_mbcnt_lo_u32_b32 v2, -1, 0
        v_mbcnt_hi_u32_b32 v2, -1, v2
        s_lshl_b32 s99, s2, 4
        s_add_u32 s99, s99, s3
        s_lshl_b32 s99, s99, 8
        s_add_u32 s99, s99, {base}
        v_lshl_add_u32 v2, v2, 2, s99
        global_store_dword v2, v1, s[100:101]""")

class A:
    def __init__(s): s.l = []
    def __call__(s, t):
        for x in t.strip("\n").split("\n"):
            x = x.strip()
            if x.startswith("@SA") or x.startswith("@SB"):
                if OPT["STSET"] == (0 if x[2] == "A" else 1): stamp(s, int(x.split()[1]))
                continue
            if x.startswith("@ST") or x.startswith("@RT"):
                stamp(s, int(x.split()[1]), x.startswith("@RT")); continue
            if x: s.l.append(x if x.endswith(":") else "    " + x)
    def text(s): return "\n".join(s.l) + "\n"

def vr(a, n): return f"v[{a}:{a+n-1}]"

def scan(o, v):
    for sh in (1, 2, 4, 8):
        o(f"s_nop 1\nv_add_u32_dpp v{v}, v{v}, v{v} row_shr:{sh} row_mask:0xf bank_mask:0xf")
    o(f"s_nop 1\nv_add_u32_dpp v{v}, v{v}, v{v} row_bcast:15 row_mask:0xa bank_mask:0xf")
    o(f"s_nop 1\nv_add_u32_dpp v{v}, v{v}, v{v} row_bcast:31 row_mask:0xc bank_mask:0xf")

def k1():
    o = A()
    o(f"""
part_kernel:
    s_cmp_ge_u32 s2, {P}
    s_cbranch_scc1 K1_W
@RT 4
@ST 0
    s_load_dwordx2 s[8:9], s[0:1], 24
    s_load_dwordx4 s[4:7], s[0:1], 8
    s_load_dwordx2 s[10:11], s[0:1], 88
    s_load_dwordx2 s[22:23], s[0:1], 0
    """)
    if OPT["K1TLB"]:
        o("v_readfirstlane_b32 s15, v0\ns_cmp_ge_u32 s15, 832\ns_cbranch_scc1 K1_T")
    o(f"""
    v_cmp_gt_u32 vcc, 800, v0
    s_mul_i32 s12, s2, {CH*4}
    v_lshlrev_b32 v1, 4, v0
    v_add_u32 v2, s12, v1
    v_lshrrev_b32 v3, 1, v2
    v_lshlrev_b32 v4, 2, v0
    v_mov_b32 v40, 0
    v_mov_b32 v41, 0
    v_mov_b32 v42, 0
    v_mov_b32 v43, 0
    v_mov_b32 v6, 1
    s_mov_b64 s[20:21], vcc
    s_mov_b64 exec, vcc
    s_waitcnt lgkmcnt(0)
@ST 1
    global_load_dwordx4 v[8:11], v2, s[8:9] {OPT['K1LSC']}
    global_load_dwordx4 v[12:15], v2, s[6:7] {OPT['K1LSC']}
    global_load_dwordx2 v[16:17], v3, s[4:5] {OPT['K1LSC']}
    """)
    npf = 0
    if OPT["K1PF"]:
        o(f"""
        s_mul_i32 s13, s2, {200*128}
        v_cmp_gt_u32 vcc, {200*OPT["K1PF"]}, v0
        v_lshlrev_b32 v5, {8-OPT["K1PF"]}, v0
        v_add_u32 v5, s13, v5
        v_min_u32 v5, {N*128-4}, v5
        s_or_b32 vcc_lo, vcc_lo, 1
        s_and_b64 exec, exec, vcc
        global_load_dword v44, v5, s[22:23]
        """)
        npf = 1
    o(f"""
    s_mov_b64 exec, -1
    ds_write_b32 v4, v40 offset:{K1_HIST}
    ds_write_b128 v1, v[40:43]
    ds_write_b128 v1, v[40:43] offset:13312
    ds_write_b128 v1, v[40:43] offset:26624
    s_movk_i32 s13, -{R}
    s_mov_b32 s14, 0xffff0000
    s_mov_b64 exec, s[20:21]
    s_waitcnt lgkmcnt(0)
    s_barrier
    s_waitcnt vmcnt({2+npf})
@ST 2
    """)
    for i in range(4):
        o(f"""
        v_mul_u32_u24 v{20+i}, 0x14e5f, v{8+i}
        v_lshrrev_b32 v{20+i}, 24, v{20+i}
        v_lshlrev_b32 v{24+i}, 2, v{20+i}
        ds_add_rtn_u32 v{28+i}, v{24+i}, v6 offset:{K1_HIST}
        """)
    for i in range(4):
        o(f"""
        v_mad_i32_i24 v{8+i}, v{20+i}, s13, v{8+i}
        v_add_u32 v{8+i}, 1, v{8+i}
        """)
    o(f"""
    s_waitcnt vmcnt({npf})
    v_lshl_or_b32 v32, v16, 16, v12
    v_and_or_b32 v33, v16, s14, v13
    v_lshl_or_b32 v34, v17, 16, v14
    v_and_or_b32 v35, v17, s14, v15
    """)
    if OPT["K1T2"]:
        o(f"""
        s_andn2_b64 exec, -1, s[20:21]
        s_cbranch_execz K1_NOT2
        s_load_dwordx2 s[16:17], s[0:1], 72
        s_lshr_b32 s15, s2, 3
        s_mul_i32 s15, s15, 6144
        v_and_b32 v5, 31, v0
        v_mul_u32_u24 v5, 200000, v5
        v_add_u32 v5, s15, v5
        v_mov_b32 v7, {WS_WF}
        """)
        if OPT["K1T2"] & 1: o("global_load_dword v44, v5, s[22:23]")
        if OPT["K1T2"] & 4: o("global_load_dword v45, v7, s[10:11]")
        if OPT["K1T2"] & 2: o("s_waitcnt lgkmcnt(0)\nglobal_load_dword v46, v5, s[16:17]")
        o("K1_NOT2:\ns_mov_b64 exec, s[20:21]")
    o(f"""
    s_waitcnt lgkmcnt(0)
@ST 3
    v_max3_u32 v36, v28, v29, v30
    v_max_u32 v36, v36, v31
    v_cmp_lt_u32 vcc, 23, v36
    s_cbranch_vccnz K1_OVF
    """)
    def put(i):
        o(f"""
        v_and_b32 v36, 7, v{28+i}
        v_lshl_add_u32 v36, v{24+i}, 1, v36
        v_lshrrev_b32 v37, 3, v{28+i}
        v_lshlrev_b32 v36, 4, v36
        v_lshl_add_u32 v38, v37, 2, v36
        v_add_u32 v39, v37, v36
        ds_write_b32 v38, v{32+i}
        ds_write_b8 v39, v{8+i} offset:12
        """)
    for i in range(4): put(i)
    sc = (" " + OPT["K1SC"]) if OPT["K1SC"] else ""
    o(f"""
K1_PUTDONE:
    s_mov_b64 exec, -1
    s_lshl_b32 s12, s2, 15
    v_add_u32 v2, s12, v1
    v_add_u32 v3, 13312, v2
    v_add_u32 v5, 26624, v2
    v_cmp_gt_u32 vcc, {2048-2*832}, v0
    v_mov_b32 v7, {K1_HIST+1024}
    s_waitcnt lgkmcnt(0)
    s_barrier
@ST 6
    ds_read_b128 v[8:11], v1
    ds_read_b128 v[12:15], v1 offset:13312
    ds_read_b128 v[16:19], v1 offset:26624
    ds_read_b32 v20, v7
    s_waitcnt lgkmcnt(3)
    global_store_dwordx4 v2, v[8:11], s[10:11]{sc}
    s_waitcnt lgkmcnt(2)
    global_store_dwordx4 v3, v[12:15], s[10:11]{sc}
    s_and_b64 exec, exec, vcc
    s_waitcnt lgkmcnt(0)
    global_store_dwordx4 v5, v[16:19], s[10:11]{sc}
    s_mov_b64 exec, -1
    s_mul_i32 s12, s2, {OVS}
    s_add_u32 s12, s12, {WS_OVF+OVL}
    v_cmp_eq_u32 vcc, 831, v0
    v_mov_b32 v7, s12
    s_and_b64 exec, exec, vcc
    global_store_dword v7, v20, s[10:11]
    """)
    if DIAG: o("@ST 7\ns_waitcnt vmcnt(0)\n@ST 8\n@RT 5\ns_mov_b64 exec, -1\nv_lshrrev_b32 v1, 6, v0\ns_nop 1\nv_readfirstlane_b32 s3, v1")
    dump(o, 9, 0x4800000)
    o(f"""
    s_endpgm
K1_OVF:
    s_mul_i32 s12, s2, {OVS}
    s_add_u32 s12, s12, {WS_OVF+OVL+16}
    s_lshl_b32 s15, s2, 13
    s_add_u32 s15, s15, {WS_OVF}
    v_mov_b32 v7, {K1_HIST+1024}
    """)
    for i in range(4):
        o(f"""
        s_mov_b64 exec, s[20:21]
        v_cmp_lt_u32 vcc, 23, v{28+i}
        v_cmp_lt_u32 s[16:17], 31, v{28+i}
        s_andn2_b64 exec, exec, vcc
        """)
        put(i)
        o(f"""
        s_andn2_b64 exec, vcc, s[16:17]
        s_cbranch_execz K1_OVM{i}
        v_and_b32 v36, 7, v{28+i}
        v_lshl_add_u32 v36, v{24+i}, 1, v36
        v_lshlrev_b32 v37, 4, v36
        v_lshl_add_u32 v36, v36, 2, s15
        ds_write_b8 v37, v{8+i} offset:15
        global_store_dword v36, v{32+i}, s[10:11]
K1_OVM{i}:
        s_mov_b64 exec, s[16:17]
        s_cbranch_execz K1_OVN{i}
        ds_add_rtn_u32 v36, v7, v6
        v_mov_b32 v46, v{32+i}
        v_lshlrev_b32 v47, 2, v{8+i}
        v_lshl_or_b32 v47, v{20+i}, 16, v47
        s_waitcnt lgkmcnt(0)
        v_lshl_add_u32 v36, v36, 3, s12
        global_store_dwordx2 v36, v[46:47], s[10:11]
K1_OVN{i}:
        """)
    o("s_branch K1_PUTDONE")
    if OPT["K1TLB"]:
        m = OPT["K1TLB"]
        o(f"""
K1_T:
        v_and_b32 v5, 63, v0
        s_barrier
        s_waitcnt lgkmcnt(0)
        """)
        if m & 8:
            o(f"""
            s_mul_i32 s12, s2, {CH*4}
            s_add_u32 s12, s12, {CH*4-4}
            v_mov_b32 v7, s12
            global_load_dword v44, v7, s[6:7]
            s_waitcnt vmcnt(0)
            """)
        if m & 2:
            o(f"""
            s_lshl_b32 s13, s2, 15
            v_lshlrev_b32 v7, 12, v5
            v_and_b32 v7, 0x7fff, v7
            v_add_u32 v7, s13, v7
            global_load_dword v45, v7, s[10:11]
            """)
        if m & 1:
            o(f"""
            s_lshr_b32 s13, s2, 3
            s_mul_i32 s13, s13, {50*4096}
            v_lshlrev_b32 v7, 12, v5
            v_add_u32 v7, s13, v7
            v_min_u32 v7, {N*128-4}, v7
            global_load_dword v44, v7, s[22:23]
            """)
        if m & 4:
            o(f"""
            s_mul_i32 s13, s2, {200*128}
            v_cmp_gt_u32 vcc, 50, v5
            v_lshl_add_u32 v7, v5, 7, s13
            s_mov_b64 exec, vcc
            """)
            for i in range(4):
                o(f"global_load_dword v44, v7, s[22:23]")
                if i < 3: o(f"v_add_u32 v7, {50*128}, v7")
        o("s_barrier\ns_endpgm")
    o(f"""
K1_W:
    s_cmp_ge_u32 s2, {P+5}
    s_cbranch_scc1 K1_END
    s_load_dwordx8 s[4:11], s[0:1], 32
    s_load_dwordx2 s[12:13], s[0:1], 64
    s_load_dwordx2 s[14:15], s[0:1], 88
    s_sub_u32 s3, s2, {P}
    v_bfe_u32 v1, v0, 2, 1
    v_lshlrev_b32 v1, 5, v1
    v_and_b32 v2, 3, v0
    v_add_u32 v1, v1, v2
    v_bfe_u32 v2, v0, 3, 2
    v_lshl_add_u32 v1, v2, 2, v1
    s_cmp_eq_u32 s3, 4
    s_cbranch_scc1 K1_WC
    v_cmp_gt_u32 vcc, 512, v0
    s_and_b64 exec, exec, vcc
    s_cbranch_execz K1_END
    v_bfe_u32 v2, v0, 8, 1
    v_lshl_add_u32 v1, v2, 4, v1
    v_lshlrev_b32 v1, 1, v1
    v_bfe_u32 v2, v0, 5, 1
    v_lshl_add_u32 v1, v2, 12, v1
    v_bfe_u32 v2, v0, 6, 2
    v_lshl_add_u32 v1, v2, 10, v1
    s_waitcnt lgkmcnt(0)
    s_mov_b32 s18, 1.0
    s_cmp_eq_u32 s3, 0
    s_cselect_b32 s16, s6, s12
    s_cselect_b32 s17, s7, s13
    s_cselect_b32 s18, {f32(NLOG2E)}, s18
    s_cmp_eq_u32 s3, 2
    s_cselect_b32 s16, s4, s16
    s_cselect_b32 s17, s5, s17
    s_cmp_eq_u32 s3, 3
    s_cselect_b32 s16, s10, s16
    s_cselect_b32 s17, s11, s17
    """)
    for j in range(8):
        o(f"global_load_ushort v{8+j}, v1, s[16:17] offset:{128*j}")
    o(f"""
    s_lshl_b32 s19, s3, 13
    s_add_u32 s19, s19, {WS_WF}
    v_lshlrev_b32 v2, 4, v0
    v_add_u32 v2, s19, v2
    s_waitcnt vmcnt(0)
    """)
    for j in range(8):
        o(f"v_lshlrev_b32 v{8+j}, 16, v{8+j}\nv_mul_f32 v{8+j}, s18, v{8+j}")
    for j in range(4):
        o(f"v_cvt_pk_bf16_f32 v{16+j}, v{8+2*j}, v{9+2*j}")
    o(f"""
    global_store_dwordx4 v2, v[16:19], s[14:15]
    s_endpgm
K1_WC:
    v_cmp_gt_u32 vcc, 128, v0
    s_and_b64 exec, exec, vcc
    s_cbranch_execz K1_END
    v_bfe_u32 v2, v0, 6, 1
    v_lshl_add_u32 v1, v2, 4, v1
    v_lshlrev_b32 v1, 1, v1
    s_waitcnt lgkmcnt(0)
    global_load_ushort v8, v1, s[8:9]
    v_lshlrev_b32 v2, 2, v0
    v_add_u32 v2, {WS_WF+32768}, v2
    v_and_b32 v3, 32, v0
    v_cmp_eq_u32 vcc, 0, v3
    v_mov_b32 v4, 0
    s_waitcnt vmcnt(0)
    v_lshlrev_b32 v8, 16, v8
    v_mul_f32 v8, {f32(NLOG2E)}, v8
    v_cvt_pk_bf16_f32 v9, v4, v8
    v_sub_f32 v10, v8, v9
    v_cvt_pk_bf16_f32 v10, v4, v10
    v_or_b32 v9, 0x7f7f, v9
    v_cndmask_b32 v9, v10, v9, vcc
    global_store_dword v2, v9, s[14:15]
K1_END:
    s_endpgm
    """)
    return o.text()

VT, XL, XA, CK, D0, LD, LE, EP, WC, X, WB, WV, AP, DEN, NUM = 0, 1, 2, 3, 4, 8, 9, 10, 12, 16, 32, 64, 96, 128, 160
G = (192, 224); V = (208, 240)
ENT, DLR, RK, OF, QC, INF, QK, WA = 128, 144, 160, 176, 180, 192, 220, 224
NS = 16
PM = 64

def mf(d, a, b, c):
    cs = "0" if c is None else vr(c, 16)
    return f"v_mfma_f32_32x32x16_bf16 {vr(d,16)}, {vr(a,4)}, {vr(b,4)}, {cs}"
def mfe(t):
    return f"v_mfma_f32_32x32x8_bf16 {vr(G[t],16)}, {vr(WC+2*t,2)}, {vr(EP,2)}, {vr(AP+16*t,16)}"
def mf_list(t):
    l = [mfe(t)]
    for s in range(4):
        l.append(mf(G[t], WB+16*t+4*s, X+4*s, G[t]))
        l.append(mf(V[t], WV+16*t+4*s, X+4*s, None if s == 0 else V[t]))
    return l
def dma(i, k="ROWSC"):
    so = ("s28", "s29", "s30", "0")[i]
    off = f" offset:{BLK*i}" if i else ""
    return f"buffer_load_dwordx4 v{D0+i}, s[4:7], {so} offen{off} {OPT[k]} lds"
def mads():
    return [f"v_mad_u32_u16 v{D0+i}, v{D0+i}, s31, v{CK}" for i in range(4)]
def xread(s): return f"ds_read_b128 {vr(X+4*s,4)}, v{XA}" + (f" offset:{16*s}" if s else "")
ADV = ["s_add_u32 s42, s42, %d" % SLOT, "s_cmp_eq_u32 s42, s41", "s_cselect_b32 s42, s40, s42"]

def phase(o, t, mfs, slots, fill1, fill2, pk1=(), pk2=()):
    g, v, den, num = G[t], V[t], DEN+16*t, NUM+16*t
    e = [f"v_exp_f32 v{g+i}, v{g+i}" for i in range(16)]
    r = [f"v_rcp_f32 v{g+i}, v{g+i}" for i in range(16)]
    def M(i):
        o(mfs[i])
        for x in slots[i]: o(x)
    k = 0
    for i in range(5):
        M(i)
        n = 3 if i < 4 else 4
        for x in e[k:k+n]: o(x)
        k += n
    for x in fill1: o(x)
    pk1 = list(pk1)
    for i in range(8):
        o(f"v_pk_add_f32 {vr(g+2*i,2)}, {vr(g+2*i,2)}, s[34:35]")
        if pk1: o(pk1.pop(0))
    k = 0
    for i in range(5, 9):
        M(i)
        n = 3 if i < 8 else 7
        for x in r[k:k+n]: o(x)
        k += n
    for x in fill2: o(x)
    pk2 = list(pk2)
    for i in range(8):
        o(f"v_pk_add_f32 {vr(den+2*i,2)}, {vr(den+2*i,2)}, {vr(g+2*i,2)}")
        if pk2: o(pk2.pop(0))
        o(f"v_pk_fma_f32 {vr(num+2*i,2)}, {vr(g+2*i,2)}, {vr(v+2*i,2)}, {vr(num+2*i,2)}")
        if pk2: o(pk2.pop(0))

def k2():
    o = A()
    def pay(i): return ENT + 4*(i//3) + i % 3 if i < 12 else QK + i - 12
    def dl4(i): return DLR + i
    def meta(q): return ENT + 4*q + 3
    def pm(i): return f"s[{PM+2*i}:{PM+2*i+1}]"
    T, T2 = G[0], V[0]
    def celladdr():
        o(f"""
        v_mbcnt_lo_u32_b32 v20, -1, 0
        v_mbcnt_hi_u32_b32 v20, -1, v20
        s_lshl_b32 s48, s3, 6
        v_add_u32 v21, s48, v20
        v_lshrrev_b32 v22, 3, v21
        v_and_b32 v23, 7, v20
        v_lshlrev_b32 v23, 4, v23
        s_lshl_b32 s49, s2, 7
        v_lshl_add_u32 v{OF}, v22, 15, s49
        v_add_u32 v{OF}, v{OF}, v23
        """)
        for q in range(1, 4):
            o(f"v_add_u32 v{OF+q}, {q*64*32768}, v{OF}")
    def cellissue(qs):
        for q in qs:
            o(f"buffer_load_dwordx4 {vr(ENT+4*q,4)}, v{OF+q}, s[8:11], 0 offen {OPT['CELLSC']}")
    first = (0, 1) if OPT["SPLIT"] else (0, 1, 2, 3)
    o(f"""
main_kernel:
    s_cmp_ge_u32 s2, {NB}
    s_cbranch_scc1 K2_END
    s_load_dwordx2 s[8:9], s[0:1], 88
    s_load_dwordx2 s[4:5], s[0:1], 0
    s_load_dwordx2 s[20:21], s[0:1], 72
@RT 4
@ST 0
    v_lshrrev_b32 v1, 6, v0
    s_mov_b32 s10, {P*32768}
    s_mov_b32 s11, 0x20000
    v_readfirstlane_b32 s3, v1
    """)
    if OPT["XMAP"]:
        o("""
        s_and_b32 s48, s2, 7
        s_lshr_b32 s2, s2, 3
        s_lshl_b32 s48, s48, 5
        s_or_b32 s2, s2, s48
        """)
    celladdr()
    o("s_waitcnt lgkmcnt(0)")
    cellissue(first)
    o(f"""
    s_add_u32 s16, s8, {WS_WF}
    s_addc_u32 s17, s9, 0
    s_mov_b32 s18, {32768+1024}
    s_mov_b32 s19, 0x20000
    s_add_u32 s12, s8, {WS_OVF}
    s_addc_u32 s13, s9, 0
    s_mov_b32 s14, {OVL+P*OVS+128}
    s_mov_b32 s15, 0x20000
    s_mov_b32 s45, 0
    s_mov_b32 s46, 0
    s_mov_b32 s47, 0
    s_movk_i32 s36, {48*4}
    s_sub_u32 s4, s4, {3*BLK}
    s_subb_u32 s5, s5, 0
    s_mov_b32 s6, {N*128+3*BLK}
    s_mov_b32 s7, 0x20000
    s_mov_b32 s22, {N*128}
    s_mov_b32 s23, 0x20000
    s_add_u32 s24, s8, {WS_ACC}
    s_addc_u32 s25, s9, 0
    s_mov_b32 s26, {N*512}
    s_mov_b32 s27, 0x20000
K2_RESTART:
    v_lshlrev_b32 v28, 2, v20
    v_lshlrev_b32 v24, 4, v21
    v_mov_b32 v96, 0xffff
    v_mov_b32 v97, 0xffff
    v_mov_b32 v98, 0xffff
    v_mov_b32 v99, 0xffff
    v_add_u32 v25, {L_NM}, v24
    v_mul_u32_u24 v187, {NMS}, v21
    v_add_u32 v187, {L_NM}, v187
    v_cmp_gt_u32 vcc, 256, v21
    v_lshlrev_b32 v30, 2, v21
    ds_write_b128 v25, v[96:99]
    ds_write_b128 v25, v[96:99] offset:8192
    v_cndmask_b32 v187, 0, v187, vcc
    ds_write_b128 v25, v[96:99] offset:16384
    ds_write_b128 v25, v[96:99] offset:24576
    v_cmp_gt_u32 vcc, {(L_RING-L_CNT)//4}, v21
    ds_write_b128 v25, v[96:99] offset:32768
    s_mul_i32 s48, s3, {GS}
    v_add_u32 v26, s48, v28
    ds_write_b32 v26, v96
    s_and_b64 exec, exec, vcc
    ds_write_b32 v30, v187 offset:{L_CNT}
    s_mov_b64 exec, -1
    """)
    if OPT["SPLIT"]: cellissue((2, 3))
    o(f"""
    v_add_u32 v29, 32768, v28
    buffer_load_dword v{WC}, v29, s[16:19], 0 offen
    buffer_load_dword v{WC+2}, v29, s[16:19], 0 offen offset:256
    s_mov_b32 s28, {3*BLK}
    s_and_b32 s48, s3, 1
    s_lshl_b32 s48, s48, 6
    v_and_b32 v102, 0x30, v20
    v_or_b32 v102, s48, v102
    v_xor_b32 v102, v102, v24
    v_and_b32 v102, {0x7ff if OPT['OWN67'] else 0xfff}, v102
    s_mul_i32 s51, s2, {R*128}
    v_add_u32 v184, s51, v102
    v_lshlrev_b32 v110, 4, v20
    s_and_b32 s50, s3, {1 if OPT['OWN67'] else 3}
    s_lshl_b32 s50, s50, 10
    v_lshrrev_b32 v186, 2, v{OF}
    ; constants
    s_mov_b32 s29, {2*BLK}
    s_mov_b32 s30, {BLK}
    s_mov_b32 s31, 128
    s_mov_b32 s32, {N}
    s_mov_b32 s34, 1.0
    s_mov_b32 s35, 1.0
    s_mov_b32 s39, 0
    s_mul_i32 s40, s3, {RINGW}
    s_add_u32 s40, s40, {L_RING}
    s_add_u32 s41, s40, {RINGW}
    s_lshl_b32 s48, s3, 2
    s_lshr_b32 s44, 0x72106453, s48
    s_and_b32 s44, s44, 7
    s_waitcnt lgkmcnt(0)
    s_barrier
    v_mov_b32 v{WC+1}, 0
    v_mov_b32 v{WC+3}, 0
    v_mov_b32 v{EP+1}, 0
    v_mov_b32 v31, 4
    v_bfe_u32 v{CK}, v20, 4, 1
    v_lshlrev_b32 v{CK}, 6, v{CK}
    v_xor_b32 v{CK}, v{CK}, v23
    ; column c = l&31, h = l>>5; r = (c3 c2 c4); i = c&3
    v_bfe_u32 v102, v20, 2, 2
    v_bfe_u32 v103, v20, 4, 1
    v_lshl_or_b32 v102, v102, 1, v103
    v_and_b32 v103, 3, v20
    v_lshl_or_b32 v{LE}, v102, 2, v103
    v_lshlrev_b32 v{LE}, 2, v{LE}
    v_lshrrev_b32 v{LD}, 3, v20
    v_lshlrev_b32 v{LD}, 4, v{LD}
    s_cmp_ge_u32 s44, 3
    s_cselect_b32 s49, 0x7c, 0x3c
    s_cmp_eq_u32 s44, 0
    s_cselect_b32 s49, 0x1c, s49
    s_mul_i32 s48, s44, {GS}
    v_and_b32 v189, s49, v{LD}
    v_and_b32 v190, s49, v{LE}
    v_add_u32 v189, s48, v189
    v_add_u32 v190, s48, v190
    v_add_u32 v{LE}, s48, v{LE}
    v_add_u32 v{LD}, s48, v{LD}
    v_and_b32 v122, 32, v20
    v_lshlrev_b32 v122, 1, v122
    v_add_u32 v122, {L_OWN}, v122
    s_add_u32 s49, s49, 4
    s_ff1_i32_b32 s54, s49
    s_sub_u32 s54, s54, 2
    s_lshr_b32 s37, 1024, s54
    v_lshrrev_b32 v188, s54, v20
    v_bfe_u32 v191, v20, 0, s54
    v_lshl_add_u32 v191, v191, 2, s48
    s_lshl_b32 s55, s49, 2
    v_mad_u32_u24 v{OF}, v188, s55, v191
    v_add_u32 v{OF+1}, s49, v{OF}
    v_add_u32 v{OF+2}, s49, v{OF+1}
    v_add_u32 v{OF+3}, s49, v{OF+2}
    v_lshlrev_b32 v188, 4, v188
    v_mul_u32_u24 v{XL}, {BLK}, v103
    v_lshl_add_u32 v{XL}, v102, 7, v{XL}
    v_bfe_u32 v103, v102, 1, 1
    v_lshrrev_b32 v102, 5, v20
    v_xor_b32 v103, v103, v102
    v_lshl_add_u32 v{XL}, v103, 6, v{XL}
    s_mul_i32 s48, s2, {R}
    s_sub_u32 s49, {N}, s48
    s_min_u32 s49, s49, {R}
    v_cmp_gt_u32 s[52:53], s49, v21
    v_add_u32 v109, s48, v21
    s_or_b32 s38, s45, s47
    s_cbranch_scc1 K2_SLOWLOAD
    """)
    for i in range(12, 16): o(f"s_mov_b64 {pm(i)}, 0")
    def ext(i):
        q, j = (i//3, i % 3) if i < 12 else (i-12, 3)
        o(f"v_lshlrev_b32_sdwa v{dl4(i)}, 2, v{meta(q)} dst_sel:DWORD dst_unused:UNUSED_PAD src0_sel:DWORD src1_sel:BYTE_{j}")
    def atom(i): o(f"ds_add_rtn_u32 v{RK+i}, v{dl4(i)}, v31 offset:{L_CNT-4}")
    def cnt(i):
        o(f"s_mov_b64 exec, {pm(i)}"); atom(i)
    def put(sl):
        for i in sl: o(f"s_mov_b64 exec, {pm(i)}\nds_write_b32 v{RK+i}, v{pay(i)}")
        o("s_mov_b64 exec, -1")
    def wload():
        o("s_lshl_b32 s48, s3, 10")
        for i in (2, 0, 1, 3):
            o(f"s_add_u32 m0, s48, {L_WB+8192*i}\ns_movk_i32 s49, {8192*i}")
            o("buffer_load_dwordx4 v24, s[16:19], s49 offen lds")
    def ownload():
        o(f"v_cmp_gt_u32 vcc, {32 if OPT['OWNO'] else 288}, v21")
        for i in range(7):
            o(f"s_add_u32 m0, s50, {L_OWN+4096*i}\ns_add_u32 s49, s28, {4096*i}")
            if i == 6: o("s_or_b64 exec, vcc, 1")
            o(f"buffer_load_dwordx4 v184, s[4:7], s49 offen {OPT['OWNSC']} lds")
        o("s_mov_b64 exec, -1")
    def own67():
        o(f"v_cmp_gt_u32 vcc, {384+32}, v21")
        for i in range(13):
            o(f"s_add_u32 m0, s50, {L_OWN+2048*i}\ns_add_u32 s49, s28, {2048*i}")
            if i == 12: o("s_or_b64 exec, vcc, 1")
            o(f"buffer_load_dwordx4 v184, s[4:7], s49 offen {OPT['OWNSC']} lds")
        o("s_mov_b64 exec, -1")
    def wyoung():
        o("s_and_b32 s48, s3, 3\ns_lshl_b32 s48, s48, 10\nv_and_b32 v107, 0xfff, v24")
        for i in (4, 5, 0, 1, 2, 3, 6, 7):
            o(f"s_add_u32 m0, s48, {L_WB+4096*i}\ns_movk_i32 s49, {4096*i}")
            o("buffer_load_dwordx4 v107, s[16:19], s49 offen lds")
    def count(late):
        for half in ((0, 1), (2, 3)):
            if half == (2, 3) and not OPT["OWN67"] and not OPT["EARLY"]: wload(); late += 4
            for q in half:
                o(f"s_waitcnt vmcnt({3-q+late})")
                if q == 0: o("@SA 1")
                for j in range(3): ext(3*q+j)
                for j in range(3):
                    o(f"v_cmpx_ne_u32 {pm(3*q+j)}, 0, v{dl4(3*q+j)}"); atom(3*q+j)
                o("s_mov_b64 exec, -1")
            if half == (2, 3):
                o(f"""
                v_or3_b32 v102, v{meta(0)}, v{meta(1)}, v{meta(2)}
                v_or_b32 v102, v102, v{meta(3)}
                v_cmp_lt_u32 vcc, 0xffffff, v102
                """)
            if OPT["SPLIT"] or half == (2, 3):
                o("s_waitcnt lgkmcnt(0)")
                put(range(3*half[0], 3*half[0]+6) if OPT["SPLIT"] else range(12))
    if OPT["OWN67"]:
        o("s_cmp_lt_u32 s3, 6\ns_cbranch_scc1 K2_CNT0")
        own67()
        count(15)
        o("s_branch K2_CNT1\nK2_CNT0:")
    if OPT["EARLY"]:
        o("s_cmp_lt_u32 s3, 4\ns_cbranch_scc1 K2_CNT0")
        wyoung(); ownload()
        count(17)
        o("s_branch K2_CNT1\nK2_CNT0:")
    count(2)
    o("K2_CNT1:")
    o(f"""
    s_cbranch_vccnz K2_X3
K2_COUNTED:
@SA 11
    s_cmp_ge_u32 s3, 4
    s_cbranch_scc1 K2_YOUNG
    """)
    if OPT["OWNO"]: ownload()
    o(f"""
    s_waitcnt lgkmcnt(0)
    s_barrier
@SA 2
    ds_read_b32 v111, v30 offset:{L_CNT}
    v_mov_b32 v107, {L_LG+36}
    v_mov_b32 v108, 1
    s_waitcnt lgkmcnt(0)
    v_sub_u32 v111, v111, v187
    v_cmp_lt_u32 vcc, s36, v111
    v_min_u32 v111, s36, v111
    v_sub_u32 v112, 252, v111
    s_mov_b64 exec, s[52:53]
    ds_add_rtn_u32 v113, v112, v108 offset:{L_HIST}
    s_and_b64 exec, exec, vcc
    ds_write_b32 v107, v107
    s_mov_b64 exec, -1
    s_waitcnt lgkmcnt(0)
    s_barrier
    ds_read_b32 v114, v28 offset:{L_HIST}
    s_waitcnt lgkmcnt(0)
    v_mov_b32 v115, v114
    """)
    scan(o, 114)
    o(f"""
    v_sub_u32 v114, v114, v115
    ds_bpermute_b32 v114, v112, v114
    v_mov_b32 v118, 128
    s_movk_i32 s48, {GS}
    s_waitcnt lgkmcnt(0)
    v_add_u32 v114, v114, v113
    v_add_u32 v115, 56, v114
    v_lshrrev_b32 v116, 5, v115
    v_and_b32 v117, 31, v115
    v_add_u32 v115, 8, v114
    v_cmp_gt_u32 vcc, 40, v114
    v_cmp_gt_u32 s[54:55], 8, v114
    v_lshrrev_b32 v119, 4, v115
    v_and_b32 v120, 15, v115
    v_cndmask_b32 v116, v116, v119, vcc
    v_cndmask_b32 v117, v117, v120, vcc
    v_cndmask_b32 v118, v118, 64, vcc
    v_cndmask_b32 v117, v117, v114, s[54:55]
    v_cndmask_b32 v118, v118, 32, s[54:55]
    v_lshlrev_b32 v117, 2, v117
    v_mad_u32_u24 v117, v116, s48, v117
    v_mul_u32_u24 v118, v111, v118
    v_add_u32 v118, 511, v118
    v_lshrrev_b32 v118, 9, v118
    v_lshlrev_b32 v116, 2, v116
    s_mov_b64 exec, s[52:53]
    ds_write_b32 v117, v109
    ds_max_u32 v116, v118 offset:{L_LG}
    s_mov_b64 exec, -1
    s_waitcnt vmcnt({7 if OPT['OWNO'] else 0})
    s_branch K2_B4
K2_YOUNG:
    s_waitcnt lgkmcnt(0)
    s_barrier
@SA 2
    """)
    if not OPT["OWNO"] and not OPT["OWN67"] and not OPT["EARLY"]: ownload()
    o("s_barrier")
    if not OPT["OWN67"]: o(f"s_waitcnt vmcnt({0 if OPT['OWNO'] else 7})")
    def outtlb():
        o(f"""
        v_lshlrev_b32 v107, 12, v20
        v_min_u32 v107, {R*128-4}, v107
        s_mov_b32 m0, {L_CNT}
        s_mov_b64 exec, 0xff
        buffer_load_dword v107, s[20:23], s51 offen lds
        s_mov_b64 exec, -1
        """)
    if OPT["OUTTLB"] and not OPT["OWN67"]: outtlb()
    o(f"""
K2_B4:
    s_cmp_lg_u32 s39, 0
    s_cbranch_scc1 K2_X3PUT
K2_B4B:
    s_mul_i32 s48, s2, {R}
    s_movk_i32 s49, {NMS}
    s_waitcnt lgkmcnt(0)
    s_barrier
@ST 3
    ds_read_b32 v120, v191
    ds_read_b32 v123, v28 offset:{L_LG}
    ds_read_b32 v121, v190
    ds_read_b128 {vr(D0,4)}, v189
    s_waitcnt lgkmcnt(2)
@SB 1
    v_subrev_u32 v120, s48, v120
    v_min_u32 v120, {R}, v120
    v_mad_u32_u24 v120, v120, s49, v188
    v_add_u32 v119, s37, v120
    v_add_u32 v118, s37, v119
    v_cmp_lt_u32 vcc, {LCAP}, v123
    ds_read_b128 {vr(T2,4)}, v120 offset:{L_NM}
    ds_read_b128 {vr(T2+4,4)}, v119 offset:{L_NM}
    ds_read_b128 {vr(T2+8,4)}, v118 offset:{L_NM}
    v_readlane_b32 s43, v123, s44
    s_waitcnt lgkmcnt(4)
    v_subrev_u32 v121, s48, v121
    v_min_u32 v121, {R-1}, v121
    v_lshlrev_b32 v124, 3, v121
    v_and_b32 v124, 0x70, v124
    v_xor_b32 v124, v124, v122
    v_lshl_add_u32 v124, v121, 7, v124
    v_xor_b32 v125, 16, v124
    v_xor_b32 v126, 32, v124
    v_xor_b32 v127, 48, v124
    s_mov_b32 s47, 0
    s_and_b32 s33, vcc_lo, 0x3ff
    s_cbranch_scc1 K2_FLAGS
K2_FLAGSDONE:
    s_lshl_b32 s48, s43, 7
    v_add_u32 v121, s48, v{LD}
    v_mov_b32 v{VT}, v110
    s_mov_b32 m0, s40
    {'s_mov_b32 s76, s43' if DIAG else ''}
    """)
    def build_list():
        for k in range(3):
            for e in range(4):
                o(f"ds_write_b32 v{OF+e}, v{T2+4*k+e} offset:{128+1024*k}")
        o(f"""
        ds_write_b128 v121, {vr(D0,4)} offset:128
        ds_read_b128 {vr(D0,4)}, v{LD} offset:128
        ds_read_b128 {vr(T,4)}, v{LD} offset:256
        ds_read_b128 {vr(T+4,4)}, v{LD} offset:384
        ds_read_b128 {vr(T+8,4)}, v{LD} offset:512
        ds_read_b32 v{EP}, v{LE} offset:128
        """)
    def frags(reg, off):
        for f in range(8): o(f"ds_read_b128 {vr(reg+4*f,4)}, v{VT} offset:{L_WB+off+1024*f}")
    def rowdma(n):
        if n: o(f"s_add_u32 m0, s40, {n*SLOT}")
        for i in range(4): o(f"v_mad_u32_u16 v{D0+i}, v{T+4*(n-1)+i if n else D0+i}, s31, v{CK}")
        for i in range(4): o(dma(i, "PRESC" if n < OPT["PREN"] else "ROWSC"))
    def own_x():
        for s_ in range(4): o(f"ds_read_b128 {vr(X+4*s_,4)}, v{124+s_}")
    def zero():
        for i in range(64): o(f"v_mov_b32 v{DEN+i}, 0")
    def aprime():
        for s_ in range(4):
            for t in range(2):
                o(mf(AP+16*t, WA+16*t+4*s_, X+4*s_, None if s_ == 0 else AP+16*t))
    o("s_cmp_ge_u32 s3, 4\ns_cbranch_scc1 K2_YPRE")
    o("s_waitcnt lgkmcnt(0)\n@SB 11")
    build_list()
    o("s_waitcnt lgkmcnt(4)\n@SB 2\ns_barrier\n@ST 6")
    if OPT["OWN67"]:
        rowdma(0)
        o("s_waitcnt lgkmcnt(0)")
        rowdma(1)
        if OPT["R3E"]: rowdma(2)
        zero()
        o("s_barrier")
        own_x(); frags(WA, 16384)
        o("s_waitcnt lgkmcnt(8)\ns_barrier")
        frags(WB, 0)
        o("s_waitcnt lgkmcnt(8)")
        aprime()
        frags(WV, 8192)
        if not OPT["R3E"]: rowdma(2)
    else:
        rowdma(0)
        frags(WA, 16384)
        o("s_waitcnt lgkmcnt(8)")
        rowdma(1)
        frags(WB, 0)
        if OPT["R3E"]: rowdma(2)
        frags(WV, 8192)
        zero()
        if OPT["OWNO"]: o(f"s_waitcnt vmcnt({12 if OPT['R3E'] else 8})")
        o("s_barrier")
        own_x()
        o("s_waitcnt lgkmcnt(0)")
        aprime()
        o("s_barrier")
        if not OPT["R3E"]: rowdma(2)
    o("s_branch K2_PRE\nK2_YPRE:")
    o("s_waitcnt lgkmcnt(0)\n@SB 11\n@SB 2\ns_barrier\n@ST 6")
    if OPT["OWN67"]:
        wyoung()
        if OPT["OUTTLB"]: outtlb()
        o("s_mov_b32 m0, s40")
    build_list()
    zero()
    o(f"s_waitcnt vmcnt({OPT['OUTTLB']})\ns_barrier")
    own_x()
    o("s_waitcnt lgkmcnt(0)\ns_barrier")
    if OPT["YD"] == 0: rowdma(0); rowdma(1); rowdma(2)
    frags(WA, 16384)
    frags(WB, 0)
    o("s_waitcnt lgkmcnt(8)")
    aprime()
    frags(WV, 8192)
    if OPT["YD"]: rowdma(0); rowdma(1); rowdma(2)
    o("K2_PRE:")
    for i in range(4): o(f"v_mad_u32_u16 v{D0+i}, v{T+8+i}, s31, v{CK}")
    o(f"""
    v_pk_sub_u16 v{EP}, v{EP}, s32 clamp
    v_add_u32 v{XA}, s40, v{XL}
    v_add_u32 v{LD}, {5*128}, v{LD}
    v_add_u32 v{LE}, {2*128}, v{LE}
    s_cmp_lg_u32 s46, 0
    s_cbranch_scc1 K2_LOADACC
K2_ACCDONE:
    s_mov_b32 m0, s40
    s_add_u32 s42, s40, {SLOT}
    s_mov_b32 s54, {f32(NLOG2E)}
    s_mov_b32 s55, {f32(NLOG2E)}
    """)
    for i in range(16): o(f"v_pk_mul_f32 {vr(AP+2*i,2)}, {vr(AP+2*i,2)}, s[54:55]")
    o(f"""
    s_waitcnt vmcnt(8)
@ST 7
    """)
    for s_ in range(4): o(xread(s_))
    ml = mf_list(0)
    o(ml[0])
    o("s_waitcnt lgkmcnt(0)")
    for i in range(4): o(ml[1+2*i]); o(dma(i))
    for i in range(4): o(ml[2+2*i])
    o(f"""
    v_add_u32 v{XA}, {SLOT}, v{XA}
@ST 8
    s_sub_u32 s43, s43, 1
    s_cbranch_scc1 K2_LOOPEND
    .p2align 4
K2_LOOP:
    """)
    sl = [[] for _ in range(9)]
    sl[0] = [f"ds_read_b32 v{VT}, v{LE}"]
    sl[1] = ["s_waitcnt vmcnt(8)"]
    sl[2] = [xread(0)]
    sl[3] = [f"ds_read_b128 {vr(D0,4)}, v{LD}"]
    sl[4] = [xread(1)]
    sl[5] = ["s_mov_b32 m0, s42"]
    sl[6] = [xread(2)]
    sl[7] = ["s_waitcnt lgkmcnt(2)"]
    sl[8] = [xread(3)]
    phase(o, 0, mf_list(1), sl,
          [f"v_add_u32 v{LE}, 128, v{LE}", f"v_add_u32 v{LD}, 128, v{LD}"],
          [f"v_pk_sub_u16 v{EP}, v{VT}, s32 clamp"] + mads(),
          pk1=(), pk2=ADV + ["s_waitcnt lgkmcnt(0)"])
    sl = [[] for _ in range(9)]
    for i in range(4): sl[i] = [dma(i)]
    if OPT["PRIO"]:
        sl[5] = ["s_cmp_lg_u32 s43, s50"]
        sl[6] = ["s_cbranch_scc1 K2_NOP", "s_setprio 0", "K2_NOP:"]
    sl[8] = ["s_sub_u32 s43, s43, 1"]
    phase(o, 1, mf_list(0), sl, [f"v_add_u32 v{XA}, s42, v{XL}"], [])
    o(f"""
    s_cbranch_scc0 K2_LOOP
K2_LOOPEND:
@ST 9
    v_mbcnt_lo_u32_b32 v{D0}, -1, 0
    v_mbcnt_hi_u32_b32 v{D0}, -1, v{D0}
    v_lshlrev_b32 v{D0+1}, 4, v{D0}
    v_subrev_u32 v{LE}, 128, v{LE}
    ds_read_b32 v{VT}, v{LE}
    """)
    if OPT["OUTT"]:
        o(f"""
        v_subrev_u32 v{LD}, 512, v{LD}
        ds_read_b128 {vr(AP,4)}, v{LD}
        v_add_u32 v{AP+4}, s40, v{D0+1}
        v_add_u32 v{AP+5}, s40, v{XL}
        s_mov_b64 s[54:55], -1
        """)
    for f in range(8):
        o(f"ds_read_b128 {vr(WB+4*f,4)}, v{D0+1} offset:{L_WU+1024*f}")
    o(f"""
    s_mov_b32 s48, 0
    s_cmp_ge_u32 s44, 3
    s_cbranch_scc1 K2_NOCOMB
    s_mov_b32 s48, 8
    s_mov_b32 s55, 0
    """)
    for i in range(64): o(f"v_add_f32_dpp v{DEN+i}, v{DEN+i}, v{DEN+i} row_ror:8 row_mask:0xf bank_mask:0xf")
    o(f"""
    s_cmp_lg_u32 s44, 0
    s_cbranch_scc1 K2_NOCOMB
    s_mov_b32 s48, 12
    s_mov_b32 s54, 0xffff
    """)
    for i in range(64): o(f"v_add_f32_dpp v{DEN+i}, v{DEN+i}, v{DEN+i} row_ror:4 row_mask:0xf bank_mask:0xf")
    o(f"""
K2_NOCOMB:
    v_and_b32 v{D0+2}, s48, v{D0}
    v_cmp_eq_u32 vcc, 0, v{D0+2}
    v_mov_b32 v{D0+3}, 0xffff
    v_lshrrev_b32 v{D0}, 5, v{D0}
    s_waitcnt lgkmcnt(0)
    v_cndmask_b32 v{D0+2}, v{D0+3}, v{VT}, vcc
    s_cmp_lg_u32 s33, 0
    s_cbranch_scc1 K2_STOREACC
    s_mov_b32 s52, {f32(1e-6)}
    s_mov_b32 s53, {f32(1e-6)}
    v_lshlrev_b32 v{D0}, 6, v{D0}
    v_lshl_add_u32 v{D0}, v{D0+2}, 7, v{D0}
    """)
    for i in range(16): o(f"v_pk_add_f32 {vr(DEN+2*i,2)}, {vr(DEN+2*i,2)}, s[52:53]")
    k = 0
    for s in range(4):
        for t in range(2):
            o(mf(G[t], WB+16*t+4*s, X+4*s, None if s == 0 else G[t]))
            n = 3 if (s, t) != (3, 1) else 11
            for i in range(k, k+n): o(f"v_rcp_f32 v{DEN+i}, v{DEN+i}")
            k += n
    o("s_mov_b32 s49, 0xffff0000\ns_nop 0")
    for t in range(2):
        for i in range(8):
            o(f"v_pk_fma_f32 {vr(G[t]+2*i,2)}, {vr(NUM+16*t+2*i,2)}, {vr(DEN+16*t+2*i,2)}, {vr(G[t]+2*i,2)}")
    for t in range(2):
        for i in range(8):
            o(f"v_lshlrev_b32 v{V[t]+2*i}, 16, v{X+8*t+i}")
            o(f"v_and_b32 v{V[t]+2*i+1}, s49, v{X+8*t+i}")
            o(f"v_max_f32 v{G[t]+2*i}, 0, v{G[t]+2*i}")
            o(f"v_max_f32 v{G[t]+2*i+1}, 0, v{G[t]+2*i+1}")
            o(f"v_pk_add_f32 {vr(G[t]+2*i,2)}, {vr(G[t]+2*i,2)}, {vr(V[t]+2*i,2)}")
            o(f"v_cvt_pk_bf16_f32 v{DEN+8*t+i}, v{G[t]+2*i}, v{G[t]+2*i+1}")
            if i % 4 == 3:
                j = 2*t + i//4
                if OPT["OUTT"]:
                    if j == 0: o("s_waitcnt vmcnt(0)")
                    o(f"ds_write_b128 v{AP+5}, {vr(DEN+4*j,4)}" + (f" offset:{16*j}" if j else ""))
                else: o(f"buffer_store_dwordx4 {vr(DEN+4*j,4)}, v{D0}, s[20:23], 0 offen" + (f" offset:{16*j}" if j else "") + (" " + OPT["OUTSC"] if OPT["OUTSC"] else ""))
    if OPT["OUTT"]:
        o("s_mov_b64 exec, s[54:55]")
        for i in range(4): o(f"ds_read_b128 {vr(AP+8+4*i,4)}, v{AP+4}" + (f" offset:{BLK*i}" if i else ""))
        for i in range(4): o(f"v_mad_u32_u16 v{AP+i}, v{AP+i}, s31, v{CK}")
        for i in range(4):
            o(f"s_waitcnt lgkmcnt({3-i})")
            o(f"buffer_store_dwordx4 {vr(AP+8+4*i,4)}, v{AP+i}, s[20:23], 0 offen" + (" " + OPT["OUTSC"] if OPT["OUTSC"] else ""))
    o("@ST 10\n@RT 5")
    if DIAG: o("s_getreg_b32 s77, hwreg(HW_REG_HW_ID)\ns_getreg_b32 s78, hwreg(HW_REG_XCC_ID)")
    dump(o, 12, 0x4000000, ("s76", "s77", "s78", "s44"))
    o(f"""
K2_END:
    s_endpgm
K2_FLAGS:
    s_and_b32 s48, s33, 0xff
    s_cbranch_scc0 K2_PEND
    s_movk_i32 s36, {LCAP*4}
    s_mov_b32 s47, 1
    s_branch K2_AGAIN
K2_PEND:
    s_and_b32 s47, s33, 0x200
    s_cbranch_scc0 K2_FLAGSDONE
    s_cmp_eq_u32 s38, 0
    s_cbranch_scc1 K2_AGAIN
    """)
    for i in range(NS):
        o(f"v_cmp_le_u32 vcc, v{INF+i}, v{RK+i}\ns_and_b64 {pm(i)}, {pm(i)}, vcc")
    def more():
        o(f"""
        v_mov_b32 v107, {L_LG+32}
        s_and_b64 exec, exec, vcc
        ds_write_b32 v107, v107
        s_mov_b64 exec, -1
        """)
    def clamp(sl):
        o(f"s_add_u32 s48, s36, {L_NM-NMS}")
        for i in sl: o(f"v_mad_u32_u24 v{INF+i}, v{dl4(i)}, {NMS//4}, s48")
        o("s_waitcnt lgkmcnt(0)")
        for i in sl: o(f"v_min_u32 v{RK+i}, v{INF+i}, v{RK+i}")
    o(f"""
    s_branch K2_FLAGSDONE
K2_X3:
    s_mov_b32 s39, 1
    v_mul_u32_u24 v102, {OVS}, v22
    v_mov_b32 v104, 0
    """)
    for q in range(4):
        ext(12+q)
        o(f"""
        s_cmp_lg_u32 s47, 0
        s_cbranch_scc1 K2_X3K{q}
        v_cmp_ne_u32 {pm(12+q)}, 0, v{dl4(12+q)}
K2_X3K{q}:
        s_mov_b32 s48, {q*64*8192}
        s_mov_b64 exec, {pm(12+q)}
        buffer_load_dword v{pay(12+q)}, v186, s[12:15], s48 offen
        """)
        atom(12+q)
        o(f"""
        s_mov_b64 exec, -1
        v_cmp_ne_u32 vcc, 0, v{dl4(12+q)}
        s_mov_b32 s48, 0x80808080
        s_and_b32 exec_lo, vcc_lo, s48
        s_and_b32 exec_hi, vcc_hi, s48
        s_cbranch_execz K2_X3N{q}
        s_mov_b32 s48, {OVL+q*64*OVS}
        buffer_load_dword v103, v102, s[12:15], s48 offen
        s_waitcnt vmcnt(0)
        v_or_b32 v104, v104, v103
K2_X3N{q}:
        s_mov_b64 exec, -1
        """)
    o("v_cmp_ne_u32 vcc, 0, v104")
    more()
    clamp(range(12, 16))
    o(f"""
    s_branch K2_COUNTED
K2_X3PUT:
    {'s_waitcnt vmcnt(0)' if OPT['OWN67'] or OPT['EARLY'] else ''}
    """)
    put(range(12, 16))
    o(f"""
    s_branch K2_B4B
K2_SLOWLOAD:
    """)
    if OPT["OWN67"]:
        o("s_cmp_lt_u32 s3, 6\ns_cbranch_scc1 K2_SL0")
        own67()
        o("K2_SL0:")
    elif OPT["EARLY"]:
        o("s_cmp_lt_u32 s3, 4\ns_cbranch_scc1 K2_SL0")
        wyoung(); ownload()
        o("K2_SL0:")
    else: wload()
    o(f"""
    s_waitcnt vmcnt(0)
    s_cmp_lg_u32 s45, 0
    s_cbranch_scc1 K2_CHUNK
    """)
    for i in range(12): ext(i)
    for i in range(12): cnt(i)
    o("s_mov_b64 exec, -1")
    clamp(range(12))
    put(range(12))
    o(f"""
    s_branch K2_X3
K2_CHUNK:
    s_sub_u32 s48, s45, 16
    s_lshl_b32 s49, s48, 3
    v_mul_u32_u24 v102, {OVS}, v22
    v_add_u32 v102, {OVL}, v102
    v_lshrrev_b32 v105, 3, v23
    v_add_u32 v105, s48, v105
    v_add_u32 v106, 1, v105
    v_or_b32 v107, 28, v28
    v_mov_b32 v104, 0
    """)
    for q in range(4):
        o(f"""
        ds_bpermute_b32 v108, v107, v{meta(q)}
        v_mov_b32 v{QC+q}, 0
        v_add3_u32 v103, v102, v23, s49
        s_waitcnt lgkmcnt(0)
        v_cmp_lt_u32 vcc, 0xffffff, v108
        s_mov_b64 exec, vcc
        buffer_load_dword v{QC+q}, v102, s[12:15], 0 offen
        buffer_load_dwordx4 {vr(INF+4*q,4)}, v103, s[12:15], 0 offen offset:16
        s_waitcnt vmcnt(0)
        s_mov_b64 exec, -1
        v_max_u32 v104, v104, v{QC+q}
        v_add_u32 v102, {64*OVS}, v102
        """)
    o(f"""
    s_cmp_lg_u32 s47, 0
    s_cbranch_scc1 K2_CKEEP
    """)
    for q in range(4):
        o(f"s_mov_b64 {pm(3*q+2)}, 0\ns_mov_b64 {pm(12+q)}, 0")
        for k in range(2):
            o(f"""
            v_cmp_lt_u32 vcc, v{105+k}, v{QC+q}
            v_cmp_eq_u32_sdwa {pm(3*q+k)}, s2, v{INF+4*q+2*k+1} src0_sel:DWORD src1_sel:WORD_1
            s_and_b64 {pm(3*q+k)}, {pm(3*q+k)}, vcc
            """)
    o("K2_CKEEP:")
    sl = [3*q+k for q in range(4) for k in range(2)]
    for q in range(4):
        for k in range(2):
            o(f"v_mov_b32 v{pay(3*q+k)}, v{INF+4*q+2*k}\nv_and_b32 v{dl4(3*q+k)}, 0xffff, v{INF+4*q+2*k+1}")
    o(f"v_cmp_lt_u32 vcc, s45, v104")
    more()
    for i in sl: cnt(i)
    o("s_mov_b64 exec, -1")
    clamp(sl)
    put(sl)
    o(f"""
    s_branch K2_COUNTED
K2_LOADACC:
    s_lshl_b32 s48, s43, 7
    s_sub_u32 s48, s48, 128
    v_add_u32 v{G[0]}, s48, v{LE}
    ds_read_b32 v{G[0]}, v{G[0]}
    v_mbcnt_lo_u32_b32 v{G[0]+1}, -1, 0
    v_mbcnt_hi_u32_b32 v{G[0]+1}, -1, v{G[0]+1}
    s_cmp_ge_u32 s44, 3
    s_cselect_b32 s48, 0, 8
    s_cmp_eq_u32 s44, 0
    s_cselect_b32 s48, 12, s48
    v_and_b32 v{G[0]+2}, s48, v{G[0]+1}
    v_cmp_eq_u32 vcc, 0, v{G[0]+2}
    v_mov_b32 v{G[0]+3}, 0xffff
    v_lshrrev_b32 v{G[0]+1}, 5, v{G[0]+1}
    v_lshlrev_b32 v{G[0]+1}, 8, v{G[0]+1}
    s_waitcnt lgkmcnt(0)
    v_cndmask_b32 v{G[0]}, v{G[0]+3}, v{G[0]}, vcc
    v_lshl_add_u32 v{G[0]}, v{G[0]}, 9, v{G[0]+1}
    """)
    for j in range(16):
        o(f"buffer_load_dwordx4 {vr(DEN+4*j,4)}, v{G[0]}, s[24:27], 0 offen offset:{16*j}")
    o(f"""
    s_waitcnt vmcnt(0)
    s_branch K2_ACCDONE
K2_STOREACC:
    v_lshlrev_b32 v{D0}, 8, v{D0}
    v_lshl_add_u32 v{D0}, v{D0+2}, 9, v{D0}
    """)
    for j in range(16):
        o(f"buffer_store_dwordx4 {vr(DEN+4*j,4)}, v{D0}, s[24:27], 0 offen offset:{16*j}")
    o(f"""
    s_mov_b32 s46, 1
    s_cmp_lg_u32 s47, 0
    s_cselect_b32 s48, 0, 16
    s_add_u32 s45, s45, s48
K2_AGAIN:
    s_waitcnt vmcnt(0) lgkmcnt(0)
    s_barrier
    """)
    celladdr()
    cellissue(first)
    o("s_branch K2_RESTART")
    return o.text()

def desc(name, nv, ns):
    return f"""
.p2align 6
.amdhsa_kernel {name}
  .amdhsa_next_free_vgpr {nv}
  .amdhsa_next_free_sgpr {ns}
  .amdhsa_accum_offset {(nv+3)//4*4}
  .amdhsa_group_segment_fixed_size 0
  .amdhsa_kernarg_size 96
  .amdhsa_user_sgpr_count 2
  .amdhsa_user_sgpr_kernarg_segment_ptr 1
  .amdhsa_system_sgpr_workgroup_id_x 1
  .amdhsa_float_denorm_mode_32 3
.end_amdhsa_kernel
"""

def build():
    hdr = open(f"cdna_kernels/{NAME}.s.ref").read().split("; Override launch geometry")[0]
    s = hdr
    s += f"; @launch kernel=part_kernel grid=({P+5},1,1) block=({896 if OPT['K1TLB'] else 832},1,1) lds={LDS1}\n"
    s += f"; @launch kernel=main_kernel grid=({NB},1,1) block=(512,1,1) lds={LDS2}\n"
    s += '.amdgcn_target "amdgcn-amd-amdhsa--gfx950"\n.text\n'
    for nm, body in (("part_kernel", k1()), ("main_kernel", k2())):
        s += f".globl {nm}\n.p2align 8\n.type {nm},@function\n" + body
    s += '.section .rodata,"a"\n' + desc("part_kernel", 52, 102 if DIAG else 24) + desc("main_kernel", 256, 102 if DIAG else 96)
    return s

if __name__ == "__main__":
    if "--diag" in sys.argv:
        sys.argv.remove("--diag"); DIAG = True
    out = sys.argv[1] if len(sys.argv) > 1 else f"cdna_kernels/{NAME}.s"
    open(out, "w").write(build())
```

```python
import sys, struct
NAME = "gather_scatter__edge_featured_mpnn_gatedgcn__graph"
N, E, R, P, CH = 50000, 800000, 196, 250, 3200
NB = 256
WS_WF, WS_OVF, WS_ACC = 0x800000, 0x840000, 0x1100000
OVL = 0x200000
OVS = 25728
K1_HIST = 40960
LDS1 = K1_HIST + 832*4
LCAP = 24
NMS = 208
GS = (LCAP + 2) * 128
L_LIST = 0
L_WB = 8 * GS
L_WU = L_WB + 24576
L_CNT = L_WB + 32768
L_HIST = L_CNT + 1024
L_LG = L_HIST + 256
L_RING = L_LG + 64
BLK, SLOT = 1040, 4160
RINGW = 3 * SLOT
L_NM = L_RING
L_OWN = (L_RING + 4 * RINGW + 127) // 128 * 128
LDS2 = L_RING + 8 * RINGW
def f32(x): return "0x%08x" % struct.unpack("<I", struct.pack("<f", x))[0]
NLOG2E = -1.4426950408889634

DIAG = False
import os
OPT = dict(XMAP=1, K1PF=0, K1SC="sc1", OUTSC="", YD=1, STSET=0, K1TLB=0, OUTTLB=1, OWNE=0, PRIO=0, PK=0, K1T2=0, OUTT=0, SPLIT=1, OWNO=0, R3E=1, OWN67=0, EARLY=0, K1LSC="nt", CELLSC="nt", OWNSC="nt", ROWSC="", PRESC="", PREN=3, HD=0)
for kv in os.environ.get("GOPT", "").split(","):
    if kv:
        k_, v_ = kv.split("="); OPT[k_] = v_.replace("_", " ") if k_.endswith("SC") else int(v_)
ST_REGS = [56, 58, 60, 62, 96, 74, 64, 66, 68, 70, 72, 98]
def stamp(o, i, real=False):
    if DIAG:
        r = ST_REGS[i]
        o(f"s_mem{'real' if real else ''}time s[{r}:{r+1}]")
def dump(o, n, base, extra=()):
    if DIAG:
        o("s_load_dwordx2 s[100:101], s[0:1], 88\ns_waitcnt lgkmcnt(0)\ns_mov_b64 exec, -1")
        for i in range(n): o(f"v_writelane_b32 v1, s{ST_REGS[i]}, {i}")
        for j, x in enumerate(extra): o(f"v_writelane_b32 v1, {x}, {n+j}")
        o(f"""v_mbcnt_lo_u32_b32 v2, -1, 0
        v_mbcnt_hi_u32_b32 v2, -1, v2
        s_lshl_b32 s99, s2, 4
        s_add_u32 s99, s99, s3
        s_lshl_b32 s99, s99, 8
        s_add_u32 s99, s99, {base}
        v_lshl_add_u32 v2, v2, 2, s99
        global_store_dword v2, v1, s[100:101]""")

class A:
    def __init__(s): s.l = []
    def __call__(s, t):
        for x in t.strip("\n").split("\n"):
            x = x.strip()
            if x.startswith("@SA") or x.startswith("@SB"):
                if OPT["STSET"] == (0 if x[2] == "A" else 1): stamp(s, int(x.split()[1]))
                continue
            if x.startswith("@ST") or x.startswith("@RT"):
                stamp(s, int(x.split()[1]), x.startswith("@RT")); continue
            if x: s.l.append(x if x.endswith(":") else "    " + x)
    def text(s): return "\n".join(s.l) + "\n"

def vr(a, n): return f"v[{a}:{a+n-1}]"

def scan(o, v):
    for sh in (1, 2, 4, 8):
        o(f"s_nop 1\nv_add_u32_dpp v{v}, v{v}, v{v} row_shr:{sh} row_mask:0xf bank_mask:0xf")
    o(f"s_nop 1\nv_add_u32_dpp v{v}, v{v}, v{v} row_bcast:15 row_mask:0xa bank_mask:0xf")
    o(f"s_nop 1\nv_add_u32_dpp v{v}, v{v}, v{v} row_bcast:31 row_mask:0xc bank_mask:0xf")

def k1():
    o = A()
    o(f"""
part_kernel:
    s_cmp_ge_u32 s2, {P}
    s_cbranch_scc1 K1_W
@RT 4
@ST 0
    s_load_dwordx2 s[8:9], s[0:1], 24
    s_load_dwordx4 s[4:7], s[0:1], 8
    s_load_dwordx2 s[10:11], s[0:1], 88
    s_load_dwordx2 s[22:23], s[0:1], 0
    """)
    if OPT["K1TLB"]:
        o("v_readfirstlane_b32 s15, v0\ns_cmp_ge_u32 s15, 832\ns_cbranch_scc1 K1_T")
    o(f"""
    v_cmp_gt_u32 vcc, 800, v0
    s_mul_i32 s12, s2, {CH*4}
    v_lshlrev_b32 v1, 4, v0
    v_add_u32 v2, s12, v1
    v_lshrrev_b32 v3, 1, v2
    v_lshlrev_b32 v4, 2, v0
    v_mov_b32 v40, 0
    v_mov_b32 v41, 0
    v_mov_b32 v42, 0
    v_mov_b32 v43, 0
    v_mov_b32 v6, 1
    s_mov_b64 s[20:21], vcc
    s_mov_b64 exec, vcc
    s_waitcnt lgkmcnt(0)
@ST 1
    global_load_dwordx4 v[8:11], v2, s[8:9] {OPT['K1LSC']}
    global_load_dwordx4 v[12:15], v2, s[6:7] {OPT['K1LSC']}
    global_load_dwordx2 v[16:17], v3, s[4:5] {OPT['K1LSC']}
    """)
    npf = 0
    if OPT["K1PF"]:
        o(f"""
        s_mul_i32 s13, s2, {200*128}
        v_cmp_gt_u32 vcc, {200*OPT["K1PF"]}, v0
        v_lshlrev_b32 v5, {8-OPT["K1PF"]}, v0
        v_add_u32 v5, s13, v5
        v_min_u32 v5, {N*128-4}, v5
        s_or_b32 vcc_lo, vcc_lo, 1
        s_and_b64 exec, exec, vcc
        global_load_dword v44, v5, s[22:23]
        """)
        npf = 1
    o(f"""
    s_mov_b64 exec, -1
    ds_write_b32 v4, v40 offset:{K1_HIST}
    ds_write_b128 v1, v[40:43]
    ds_write_b128 v1, v[40:43] offset:13312
    ds_write_b128 v1, v[40:43] offset:26624
    s_movk_i32 s13, -{R}
    s_mov_b32 s14, 0xffff0000
    s_mov_b64 exec, s[20:21]
    s_waitcnt lgkmcnt(0)
    s_barrier
    s_waitcnt vmcnt({2+npf})
@ST 2
    """)
    for i in range(4):
        o(f"""
        v_mul_u32_u24 v{20+i}, 0x14e5f, v{8+i}
        v_lshrrev_b32 v{20+i}, 24, v{20+i}
        v_lshlrev_b32 v{24+i}, 2, v{20+i}
        ds_add_rtn_u32 v{28+i}, v{24+i}, v6 offset:{K1_HIST}
        """)
    for i in range(4):
        o(f"""
        v_mad_i32_i24 v{8+i}, v{20+i}, s13, v{8+i}
        v_add_u32 v{8+i}, 1, v{8+i}
        """)
    o(f"""
    s_waitcnt vmcnt({npf})
    v_lshl_or_b32 v32, v16, 16, v12
    v_and_or_b32 v33, v16, s14, v13
    v_lshl_or_b32 v34, v17, 16, v14
    v_and_or_b32 v35, v17, s14, v15
    """)
    if OPT["K1T2"]:
        o(f"""
        s_andn2_b64 exec, -1, s[20:21]
        s_cbranch_execz K1_NOT2
        s_load_dwordx2 s[16:17], s[0:1], 72
        s_lshr_b32 s15, s2, 3
        s_mul_i32 s15, s15, 6144
        v_and_b32 v5, 31, v0
        v_mul_u32_u24 v5, 200000, v5
        v_add_u32 v5, s15, v5
        v_mov_b32 v7, {WS_WF}
        """)
        if OPT["K1T2"] & 1: o("global_load_dword v44, v5, s[22:23]")
        if OPT["K1T2"] & 4: o("global_load_dword v45, v7, s[10:11]")
        if OPT["K1T2"] & 2: o("s_waitcnt lgkmcnt(0)\nglobal_load_dword v46, v5, s[16:17]")
        o("K1_NOT2:\ns_mov_b64 exec, s[20:21]")
    o(f"""
    s_waitcnt lgkmcnt(0)
@ST 3
    v_max3_u32 v36, v28, v29, v30
    v_max_u32 v36, v36, v31
    v_cmp_lt_u32 vcc, 23, v36
    s_cbranch_vccnz K1_OVF
    """)
    def put(i):
        o(f"""
        v_and_b32 v36, 7, v{28+i}
        v_lshl_add_u32 v36, v{24+i}, 1, v36
        v_lshrrev_b32 v37, 3, v{28+i}
        v_lshlrev_b32 v36, 4, v36
        v_lshl_add_u32 v38, v37, 2, v36
        v_add_u32 v39, v37, v36
        ds_write_b32 v38, v{32+i}
        ds_write_b8 v39, v{8+i} offset:12
        """)
    for i in range(4): put(i)
    sc = (" " + OPT["K1SC"]) if OPT["K1SC"] else ""
    o(f"""
K1_PUTDONE:
    s_mov_b64 exec, -1
    s_lshl_b32 s12, s2, 15
    v_add_u32 v2, s12, v1
    v_add_u32 v3, 13312, v2
    v_add_u32 v5, 26624, v2
    v_cmp_gt_u32 vcc, {2048-2*832}, v0
    v_mov_b32 v7, {K1_HIST+1024}
    s_waitcnt lgkmcnt(0)
    s_barrier
@ST 6
    ds_read_b128 v[8:11], v1
    ds_read_b128 v[12:15], v1 offset:13312
    ds_read_b128 v[16:19], v1 offset:26624
    ds_read_b32 v20, v7
    s_waitcnt lgkmcnt(3)
    global_store_dwordx4 v2, v[8:11], s[10:11]{sc}
    s_waitcnt lgkmcnt(2)
    global_store_dwordx4 v3, v[12:15], s[10:11]{sc}
    s_and_b64 exec, exec, vcc
    s_waitcnt lgkmcnt(0)
    global_store_dwordx4 v5, v[16:19], s[10:11]{sc}
    s_mov_b64 exec, -1
    s_mul_i32 s12, s2, {OVS}
    s_add_u32 s12, s12, {WS_OVF+OVL}
    v_cmp_eq_u32 vcc, 831, v0
    v_mov_b32 v7, s12
    s_and_b64 exec, exec, vcc
    global_store_dword v7, v20, s[10:11]
    """)
    if DIAG: o("@ST 7\ns_waitcnt vmcnt(0)\n@ST 8\n@RT 5\ns_mov_b64 exec, -1\nv_lshrrev_b32 v1, 6, v0\ns_nop 1\nv_readfirstlane_b32 s3, v1")
    dump(o, 9, 0x4800000)
    if DIAG and OPT["HD"]:
        o(f"""
        s_or_b32 s99, s2, s3
        s_cbranch_scc1 K1_HDN
        s_load_dwordx2 s[16:17], s[0:1], 80
        v_lshlrev_b32 v2, 2, v0
        v_add_u32 v3, {0x4000000 + (100*16+OPT["HD"])*256}, v2
        global_load_dword v1, v3, s[100:101]
        s_sub_u32 s60, s60, s56
        s_sub_u32 s68, s68, s56
        s_sub_u32 s74, s74, s96
        s_waitcnt vmcnt(0) lgkmcnt(0)
        v_writelane_b32 v1, s60, 12
        v_writelane_b32 v1, s68, 13
        v_writelane_b32 v1, s74, 14
        v_writelane_b32 v1, s96, 15
        s_mov_b64 exec, 0xffff
        global_store_dword v2, v1, s[16:17]
K1_HDN:
        """)
    o(f"""
    s_endpgm
K1_OVF:
    s_mul_i32 s12, s2, {OVS}
    s_add_u32 s12, s12, {WS_OVF+OVL+16}
    s_lshl_b32 s15, s2, 13
    s_add_u32 s15, s15, {WS_OVF}
    v_mov_b32 v7, {K1_HIST+1024}
    """)
    for i in range(4):
        o(f"""
        s_mov_b64 exec, s[20:21]
        v_cmp_lt_u32 vcc, 23, v{28+i}
        v_cmp_lt_u32 s[16:17], 31, v{28+i}
        s_andn2_b64 exec, exec, vcc
        """)
        put(i)
        o(f"""
        s_andn2_b64 exec, vcc, s[16:17]
        s_cbranch_execz K1_OVM{i}
        v_and_b32 v36, 7, v{28+i}
        v_lshl_add_u32 v36, v{24+i}, 1, v36
        v_lshlrev_b32 v37, 4, v36
        v_lshl_add_u32 v36, v36, 2, s15
        ds_write_b8 v37, v{8+i} offset:15
        global_store_dword v36, v{32+i}, s[10:11]
K1_OVM{i}:
        s_mov_b64 exec, s[16:17]
        s_cbranch_execz K1_OVN{i}
        ds_add_rtn_u32 v36, v7, v6
        v_mov_b32 v46, v{32+i}
        v_lshlrev_b32 v47, 2, v{8+i}
        v_lshl_or_b32 v47, v{20+i}, 16, v47
        s_waitcnt lgkmcnt(0)
        v_lshl_add_u32 v36, v36, 3, s12
        global_store_dwordx2 v36, v[46:47], s[10:11]
K1_OVN{i}:
        """)
    o("s_branch K1_PUTDONE")
    if OPT["K1TLB"]:
        m = OPT["K1TLB"]
        o(f"""
K1_T:
        v_and_b32 v5, 63, v0
        s_barrier
        s_waitcnt lgkmcnt(0)
        """)
        if m & 8:
            o(f"""
            s_mul_i32 s12, s2, {CH*4}
            s_add_u32 s12, s12, {CH*4-4}
            v_mov_b32 v7, s12
            global_load_dword v44, v7, s[6:7]
            s_waitcnt vmcnt(0)
            """)
        if m & 2:
            o(f"""
            s_lshl_b32 s13, s2, 15
            v_lshlrev_b32 v7, 12, v5
            v_and_b32 v7, 0x7fff, v7
            v_add_u32 v7, s13, v7
            global_load_dword v45, v7, s[10:11]
            """)
        if m & 1:
            o(f"""
            s_lshr_b32 s13, s2, 3
            s_mul_i32 s13, s13, {50*4096}
            v_lshlrev_b32 v7, 12, v5
            v_add_u32 v7, s13, v7
            v_min_u32 v7, {N*128-4}, v7
            global_load_dword v44, v7, s[22:23]
            """)
        if m & 4:
            o(f"""
            s_mul_i32 s13, s2, {200*128}
            v_cmp_gt_u32 vcc, 50, v5
            v_lshl_add_u32 v7, v5, 7, s13
            s_mov_b64 exec, vcc
            """)
            for i in range(4):
                o(f"global_load_dword v44, v7, s[22:23]")
                if i < 3: o(f"v_add_u32 v7, {50*128}, v7")
        o("s_barrier\ns_endpgm")
    o(f"""
K1_W:
    s_cmp_ge_u32 s2, {P+5}
    s_cbranch_scc1 K1_END
    s_load_dwordx8 s[4:11], s[0:1], 32
    s_load_dwordx2 s[12:13], s[0:1], 64
    s_load_dwordx2 s[14:15], s[0:1], 88
    s_sub_u32 s3, s2, {P}
    v_bfe_u32 v1, v0, 2, 1
    v_lshlrev_b32 v1, 5, v1
    v_and_b32 v2, 3, v0
    v_add_u32 v1, v1, v2
    v_bfe_u32 v2, v0, 3, 2
    v_lshl_add_u32 v1, v2, 2, v1
    s_cmp_eq_u32 s3, 4
    s_cbranch_scc1 K1_WC
    v_cmp_gt_u32 vcc, 512, v0
    s_and_b64 exec, exec, vcc
    s_cbranch_execz K1_END
    v_bfe_u32 v2, v0, 8, 1
    v_lshl_add_u32 v1, v2, 4, v1
    v_lshlrev_b32 v1, 1, v1
    v_bfe_u32 v2, v0, 5, 1
    v_lshl_add_u32 v1, v2, 12, v1
    v_bfe_u32 v2, v0, 6, 2
    v_lshl_add_u32 v1, v2, 10, v1
    s_waitcnt lgkmcnt(0)
    s_mov_b32 s18, 1.0
    s_cmp_eq_u32 s3, 0
    s_cselect_b32 s16, s6, s12
    s_cselect_b32 s17, s7, s13
    s_cselect_b32 s18, {f32(NLOG2E)}, s18
    s_cmp_eq_u32 s3, 2
    s_cselect_b32 s16, s4, s16
    s_cselect_b32 s17, s5, s17
    s_cmp_eq_u32 s3, 3
    s_cselect_b32 s16, s10, s16
    s_cselect_b32 s17, s11, s17
    """)
    for j in range(8):
        o(f"global_load_ushort v{8+j}, v1, s[16:17] offset:{128*j}")
    o(f"""
    s_lshl_b32 s19, s3, 13
    s_add_u32 s19, s19, {WS_WF}
    v_lshlrev_b32 v2, 4, v0
    v_add_u32 v2, s19, v2
    s_waitcnt vmcnt(0)
    """)
    for j in range(8):
        o(f"v_lshlrev_b32 v{8+j}, 16, v{8+j}\nv_mul_f32 v{8+j}, s18, v{8+j}")
    for j in range(4):
        o(f"v_cvt_pk_bf16_f32 v{16+j}, v{8+2*j}, v{9+2*j}")
    o(f"""
    global_store_dwordx4 v2, v[16:19], s[14:15]
    s_endpgm
K1_WC:
    v_cmp_gt_u32 vcc, 128, v0
    s_and_b64 exec, exec, vcc
    s_cbranch_execz K1_END
    v_bfe_u32 v2, v0, 6, 1
    v_lshl_add_u32 v1, v2, 4, v1
    v_lshlrev_b32 v1, 1, v1
    s_waitcnt lgkmcnt(0)
    global_load_ushort v8, v1, s[8:9]
    v_lshlrev_b32 v2, 2, v0
    v_add_u32 v2, {WS_WF+32768}, v2
    v_and_b32 v3, 32, v0
    v_cmp_eq_u32 vcc, 0, v3
    v_mov_b32 v4, 0
    s_waitcnt vmcnt(0)
    v_lshlrev_b32 v8, 16, v8
    v_mul_f32 v8, {f32(NLOG2E)}, v8
    v_cvt_pk_bf16_f32 v9, v4, v8
    v_sub_f32 v10, v8, v9
    v_cvt_pk_bf16_f32 v10, v4, v10
    v_or_b32 v9, 0x7f7f, v9
    v_cndmask_b32 v9, v10, v9, vcc
    global_store_dword v2, v9, s[14:15]
K1_END:
    s_endpgm
    """)
    return o.text()

VT, XL, XA, CK, D0, LD, LE, EP, WC, X, WB, WV, AP, DEN, NUM = 0, 1, 2, 3, 4, 8, 9, 10, 12, 16, 32, 64, 96, 128, 160
G = (192, 224); V = (208, 240)
ENT, DLR, RK, OF, QC, INF, QK, WA = 128, 144, 160, 176, 180, 192, 220, 224
NS = 16
PM = 64

def mf(d, a, b, c):
    cs = "0" if c is None else vr(c, 16)
    return f"v_mfma_f32_32x32x16_bf16 {vr(d,16)}, {vr(a,4)}, {vr(b,4)}, {cs}"
def mfe(t):
    return f"v_mfma_f32_32x32x8_bf16 {vr(G[t],16)}, {vr(WC+2*t,2)}, {vr(EP,2)}, {vr(AP+16*t,16)}"
def mf_list(t):
    l = [mfe(t)]
    for s in range(4):
        l.append(mf(G[t], WB+16*t+4*s, X+4*s, G[t]))
        l.append(mf(V[t], WV+16*t+4*s, X+4*s, None if s == 0 else V[t]))
    return l
def dma(i, k="ROWSC"):
    so = ("s28", "s29", "s30", "0")[i]
    off = f" offset:{BLK*i}" if i else ""
    return f"buffer_load_dwordx4 v{D0+i}, s[4:7], {so} offen{off} {OPT[k]} lds"
def mads():
    return [f"v_mad_u32_u16 v{D0+i}, v{D0+i}, s31, v{CK}" for i in range(4)]
def xread(s): return f"ds_read_b128 {vr(X+4*s,4)}, v{XA}" + (f" offset:{16*s}" if s else "")
ADV = ["s_add_u32 s42, s42, %d" % SLOT, "s_cmp_eq_u32 s42, s41", "s_cselect_b32 s42, s40, s42"]

def phase(o, t, mfs, slots, fill1, fill2, pk1=(), pk2=()):
    g, v, den, num = G[t], V[t], DEN+16*t, NUM+16*t
    e = [f"v_exp_f32 v{g+i}, v{g+i}" for i in range(16)]
    r = [f"v_rcp_f32 v{g+i}, v{g+i}" for i in range(16)]
    def M(i):
        o(mfs[i])
        for x in slots[i]: o(x)
    k = 0
    for i in range(5):
        M(i)
        n = 3 if i < 4 else 4
        for x in e[k:k+n]: o(x)
        k += n
    for x in fill1: o(x)
    pk1 = list(pk1)
    for i in range(8):
        o(f"v_pk_add_f32 {vr(g+2*i,2)}, {vr(g+2*i,2)}, s[34:35]")
        if pk1: o(pk1.pop(0))
    k = 0
    for i in range(5, 9):
        M(i)
        n = 3 if i < 8 else 7
        for x in r[k:k+n]: o(x)
        k += n
    for x in fill2: o(x)
    pk2 = list(pk2)
    for i in range(8):
        o(f"v_pk_add_f32 {vr(den+2*i,2)}, {vr(den+2*i,2)}, {vr(g+2*i,2)}")
        if pk2: o(pk2.pop(0))
        o(f"v_pk_fma_f32 {vr(num+2*i,2)}, {vr(g+2*i,2)}, {vr(v+2*i,2)}, {vr(num+2*i,2)}")
        if pk2: o(pk2.pop(0))

def k2():
    o = A()
    def pay(i): return ENT + 4*(i//3) + i % 3 if i < 12 else QK + i - 12
    def dl4(i): return DLR + i
    def meta(q): return ENT + 4*q + 3
    def pm(i): return f"s[{PM+2*i}:{PM+2*i+1}]"
    T, T2 = G[0], V[0]
    def celladdr():
        o(f"""
        v_mbcnt_lo_u32_b32 v20, -1, 0
        v_mbcnt_hi_u32_b32 v20, -1, v20
        s_lshl_b32 s48, s3, 6
        v_add_u32 v21, s48, v20
        v_lshrrev_b32 v22, 3, v21
        v_and_b32 v23, 7, v20
        v_lshlrev_b32 v23, 4, v23
        s_lshl_b32 s49, s2, 7
        v_lshl_add_u32 v{OF}, v22, 15, s49
        v_add_u32 v{OF}, v{OF}, v23
        """)
        for q in range(1, 4):
            o(f"v_add_u32 v{OF+q}, {q*64*32768}, v{OF}")
    def cellissue(qs):
        for q in qs:
            o(f"buffer_load_dwordx4 {vr(ENT+4*q,4)}, v{OF+q}, s[8:11], 0 offen {OPT['CELLSC']}")
    first = (0, 1) if OPT["SPLIT"] else (0, 1, 2, 3)
    o(f"""
main_kernel:
    s_cmp_ge_u32 s2, {NB}
    s_cbranch_scc1 K2_END
    s_load_dwordx2 s[8:9], s[0:1], 88
    s_load_dwordx2 s[4:5], s[0:1], 0
    s_load_dwordx2 s[20:21], s[0:1], 72
@RT 4
@ST 0
    v_lshrrev_b32 v1, 6, v0
    s_mov_b32 s10, {P*32768}
    s_mov_b32 s11, 0x20000
    v_readfirstlane_b32 s3, v1
    """)
    if OPT["XMAP"]:
        o("""
        s_and_b32 s48, s2, 7
        s_lshr_b32 s2, s2, 3
        s_lshl_b32 s48, s48, 5
        s_or_b32 s2, s2, s48
        """)
    celladdr()
    o("s_waitcnt lgkmcnt(0)")
    cellissue(first)
    o(f"""
    s_add_u32 s16, s8, {WS_WF}
    s_addc_u32 s17, s9, 0
    s_mov_b32 s18, {32768+1024}
    s_mov_b32 s19, 0x20000
    s_add_u32 s12, s8, {WS_OVF}
    s_addc_u32 s13, s9, 0
    s_mov_b32 s14, {OVL+P*OVS+128}
    s_mov_b32 s15, 0x20000
    s_mov_b32 s45, 0
    s_mov_b32 s46, 0
    s_mov_b32 s47, 0
    s_movk_i32 s36, {48*4}
    s_sub_u32 s4, s4, {3*BLK}
    s_subb_u32 s5, s5, 0
    s_mov_b32 s6, {N*128+3*BLK}
    s_mov_b32 s7, 0x20000
    s_mov_b32 s22, {N*128}
    s_mov_b32 s23, 0x20000
    s_add_u32 s24, s8, {WS_ACC}
    s_addc_u32 s25, s9, 0
    s_mov_b32 s26, {N*512}
    s_mov_b32 s27, 0x20000
K2_RESTART:
    v_lshlrev_b32 v28, 2, v20
    v_lshlrev_b32 v24, 4, v21
    v_mov_b32 v96, 0xffff
    v_mov_b32 v97, 0xffff
    v_mov_b32 v98, 0xffff
    v_mov_b32 v99, 0xffff
    v_add_u32 v25, {L_NM}, v24
    v_mul_u32_u24 v187, {NMS}, v21
    v_add_u32 v187, {L_NM}, v187
    v_cmp_gt_u32 vcc, 256, v21
    v_lshlrev_b32 v30, 2, v21
    ds_write_b128 v25, v[96:99]
    ds_write_b128 v25, v[96:99] offset:8192
    v_cndmask_b32 v187, 0, v187, vcc
    ds_write_b128 v25, v[96:99] offset:16384
    ds_write_b128 v25, v[96:99] offset:24576
    v_cmp_gt_u32 vcc, {(L_RING-L_CNT)//4}, v21
    ds_write_b128 v25, v[96:99] offset:32768
    s_mul_i32 s48, s3, {GS}
    v_add_u32 v26, s48, v28
    ds_write_b32 v26, v96
    s_and_b64 exec, exec, vcc
    ds_write_b32 v30, v187 offset:{L_CNT}
    s_mov_b64 exec, -1
    """)
    if OPT["SPLIT"]: cellissue((2, 3))
    o(f"""
    v_add_u32 v29, 32768, v28
    buffer_load_dword v{WC}, v29, s[16:19], 0 offen
    buffer_load_dword v{WC+2}, v29, s[16:19], 0 offen offset:256
    s_mov_b32 s28, {3*BLK}
    s_and_b32 s48, s3, 1
    s_lshl_b32 s48, s48, 6
    v_and_b32 v102, 0x30, v20
    v_or_b32 v102, s48, v102
    v_xor_b32 v102, v102, v24
    v_and_b32 v102, {0x7ff if OPT['OWN67'] else 0xfff}, v102
    s_mul_i32 s51, s2, {R*128}
    v_add_u32 v184, s51, v102
    v_lshlrev_b32 v110, 4, v20
    s_and_b32 s50, s3, {1 if OPT['OWN67'] else 3}
    s_lshl_b32 s50, s50, 10
    v_lshrrev_b32 v186, 2, v{OF}
    ; constants
    s_mov_b32 s29, {2*BLK}
    s_mov_b32 s30, {BLK}
    s_mov_b32 s31, 128
    s_mov_b32 s32, {N}
    s_mov_b32 s34, 1.0
    s_mov_b32 s35, 1.0
    s_mov_b32 s39, 0
    s_mul_i32 s40, s3, {RINGW}
    s_add_u32 s40, s40, {L_RING}
    s_add_u32 s41, s40, {RINGW}
    s_lshl_b32 s48, s3, 2
    s_lshr_b32 s44, 0x72106453, s48
    s_and_b32 s44, s44, 7
    s_waitcnt lgkmcnt(0)
    s_barrier
    v_mov_b32 v{WC+1}, 0
    v_mov_b32 v{WC+3}, 0
    v_mov_b32 v{EP+1}, 0
    v_mov_b32 v31, 4
    v_bfe_u32 v{CK}, v20, 4, 1
    v_lshlrev_b32 v{CK}, 6, v{CK}
    v_xor_b32 v{CK}, v{CK}, v23
    ; column c = l&31, h = l>>5; r = (c3 c2 c4); i = c&3
    v_bfe_u32 v102, v20, 2, 2
    v_bfe_u32 v103, v20, 4, 1
    v_lshl_or_b32 v102, v102, 1, v103
    v_and_b32 v103, 3, v20
    v_lshl_or_b32 v{LE}, v102, 2, v103
    v_lshlrev_b32 v{LE}, 2, v{LE}
    v_lshrrev_b32 v{LD}, 3, v20
    v_lshlrev_b32 v{LD}, 4, v{LD}
    s_cmp_ge_u32 s44, 3
    s_cselect_b32 s49, 0x7c, 0x3c
    s_cmp_eq_u32 s44, 0
    s_cselect_b32 s49, 0x1c, s49
    s_mul_i32 s48, s44, {GS}
    v_and_b32 v189, s49, v{LD}
    v_and_b32 v190, s49, v{LE}
    v_add_u32 v189, s48, v189
    v_add_u32 v190, s48, v190
    v_add_u32 v{LE}, s48, v{LE}
    v_add_u32 v{LD}, s48, v{LD}
    v_and_b32 v122, 32, v20
    v_lshlrev_b32 v122, 1, v122
    v_add_u32 v122, {L_OWN}, v122
    s_add_u32 s49, s49, 4
    s_ff1_i32_b32 s54, s49
    s_sub_u32 s54, s54, 2
    s_lshr_b32 s37, 1024, s54
    v_lshrrev_b32 v188, s54, v20
    v_bfe_u32 v191, v20, 0, s54
    v_lshl_add_u32 v191, v191, 2, s48
    s_lshl_b32 s55, s49, 2
    v_mad_u32_u24 v{OF}, v188, s55, v191
    v_add_u32 v{OF+1}, s49, v{OF}
    v_add_u32 v{OF+2}, s49, v{OF+1}
    v_add_u32 v{OF+3}, s49, v{OF+2}
    v_lshlrev_b32 v188, 4, v188
    v_mul_u32_u24 v{XL}, {BLK}, v103
    v_lshl_add_u32 v{XL}, v102, 7, v{XL}
    v_bfe_u32 v103, v102, 1, 1
    v_lshrrev_b32 v102, 5, v20
    v_xor_b32 v103, v103, v102
    v_lshl_add_u32 v{XL}, v103, 6, v{XL}
    s_mul_i32 s48, s2, {R}
    s_sub_u32 s49, {N}, s48
    s_min_u32 s49, s49, {R}
    v_cmp_gt_u32 s[52:53], s49, v21
    v_add_u32 v109, s48, v21
    s_or_b32 s38, s45, s47
    s_cbranch_scc1 K2_SLOWLOAD
    """)
    for i in range(12, 16): o(f"s_mov_b64 {pm(i)}, 0")
    def ext(i):
        q, j = (i//3, i % 3) if i < 12 else (i-12, 3)
        o(f"v_lshlrev_b32_sdwa v{dl4(i)}, 2, v{meta(q)} dst_sel:DWORD dst_unused:UNUSED_PAD src0_sel:DWORD src1_sel:BYTE_{j}")
    def atom(i): o(f"ds_add_rtn_u32 v{RK+i}, v{dl4(i)}, v31 offset:{L_CNT-4}")
    def cnt(i):
        o(f"s_mov_b64 exec, {pm(i)}"); atom(i)
    def put(sl):
        for i in sl: o(f"s_mov_b64 exec, {pm(i)}\nds_write_b32 v{RK+i}, v{pay(i)}")
        o("s_mov_b64 exec, -1")
    def wload():
        o("s_lshl_b32 s48, s3, 10")
        for i in (2, 0, 1, 3):
            o(f"s_add_u32 m0, s48, {L_WB+8192*i}\ns_movk_i32 s49, {8192*i}")
            o("buffer_load_dwordx4 v24, s[16:19], s49 offen lds")
    def ownload():
        o(f"v_cmp_gt_u32 vcc, {32 if OPT['OWNO'] else 288}, v21")
        for i in range(7):
            o(f"s_add_u32 m0, s50, {L_OWN+4096*i}\ns_add_u32 s49, s28, {4096*i}")
            if i == 6: o("s_or_b64 exec, vcc, 1")
            o(f"buffer_load_dwordx4 v184, s[4:7], s49 offen {OPT['OWNSC']} lds")
        o("s_mov_b64 exec, -1")
    def own67():
        o(f"v_cmp_gt_u32 vcc, {384+32}, v21")
        for i in range(13):
            o(f"s_add_u32 m0, s50, {L_OWN+2048*i}\ns_add_u32 s49, s28, {2048*i}")
            if i == 12: o("s_or_b64 exec, vcc, 1")
            o(f"buffer_load_dwordx4 v184, s[4:7], s49 offen {OPT['OWNSC']} lds")
        o("s_mov_b64 exec, -1")
    def wyoung():
        o("s_and_b32 s48, s3, 3\ns_lshl_b32 s48, s48, 10\nv_and_b32 v107, 0xfff, v24")
        for i in (4, 5, 0, 1, 2, 3, 6, 7):
            o(f"s_add_u32 m0, s48, {L_WB+4096*i}\ns_movk_i32 s49, {4096*i}")
            o("buffer_load_dwordx4 v107, s[16:19], s49 offen lds")
    def count(late):
        for half in ((0, 1), (2, 3)):
            if half == (2, 3) and not OPT["OWN67"] and not OPT["EARLY"]: wload(); late += 4
            for q in half:
                o(f"s_waitcnt vmcnt({3-q+late})")
                if q == 0: o("@SA 1")
                for j in range(3): ext(3*q+j)
                for j in range(3):
                    o(f"v_cmpx_ne_u32 {pm(3*q+j)}, 0, v{dl4(3*q+j)}"); atom(3*q+j)
                o("s_mov_b64 exec, -1")
            if half == (2, 3):
                o(f"""
                v_or3_b32 v102, v{meta(0)}, v{meta(1)}, v{meta(2)}
                v_or_b32 v102, v102, v{meta(3)}
                v_cmp_lt_u32 vcc, 0xffffff, v102
                """)
            if OPT["SPLIT"] or half == (2, 3):
                o("s_waitcnt lgkmcnt(0)")
                put(range(3*half[0], 3*half[0]+6) if OPT["SPLIT"] else range(12))
    if OPT["OWN67"]:
        o("s_cmp_lt_u32 s3, 6\ns_cbranch_scc1 K2_CNT0")
        own67()
        count(15)
        o("s_branch K2_CNT1\nK2_CNT0:")
    if OPT["EARLY"]:
        o("s_cmp_lt_u32 s3, 4\ns_cbranch_scc1 K2_CNT0")
        wyoung(); ownload()
        count(17)
        o("s_branch K2_CNT1\nK2_CNT0:")
    count(2)
    o("K2_CNT1:")
    o(f"""
    s_cbranch_vccnz K2_X3
K2_COUNTED:
@SA 11
    s_cmp_ge_u32 s3, 4
    s_cbranch_scc1 K2_YOUNG
    """)
    if OPT["OWNO"]: ownload()
    o(f"""
    s_waitcnt lgkmcnt(0)
    s_barrier
@SA 2
    ds_read_b32 v111, v30 offset:{L_CNT}
    v_mov_b32 v107, {L_LG+36}
    v_mov_b32 v108, 1
    s_waitcnt lgkmcnt(0)
    v_sub_u32 v111, v111, v187
    v_cmp_lt_u32 vcc, s36, v111
    v_min_u32 v111, s36, v111
    v_sub_u32 v112, 252, v111
    s_mov_b64 exec, s[52:53]
    ds_add_rtn_u32 v113, v112, v108 offset:{L_HIST}
    s_and_b64 exec, exec, vcc
    ds_write_b32 v107, v107
    s_mov_b64 exec, -1
    s_waitcnt lgkmcnt(0)
    s_barrier
    ds_read_b32 v114, v28 offset:{L_HIST}
    s_waitcnt lgkmcnt(0)
    v_mov_b32 v115, v114
    """)
    scan(o, 114)
    o(f"""
    v_sub_u32 v114, v114, v115
    ds_bpermute_b32 v114, v112, v114
    v_mov_b32 v118, 128
    s_movk_i32 s48, {GS}
    s_waitcnt lgkmcnt(0)
    v_add_u32 v114, v114, v113
    v_add_u32 v115, 56, v114
    v_lshrrev_b32 v116, 5, v115
    v_and_b32 v117, 31, v115
    v_add_u32 v115, 8, v114
    v_cmp_gt_u32 vcc, 40, v114
    v_cmp_gt_u32 s[54:55], 8, v114
    v_lshrrev_b32 v119, 4, v115
    v_and_b32 v120, 15, v115
    v_cndmask_b32 v116, v116, v119, vcc
    v_cndmask_b32 v117, v117, v120, vcc
    v_cndmask_b32 v118, v118, 64, vcc
    v_cndmask_b32 v117, v117, v114, s[54:55]
    v_cndmask_b32 v118, v118, 32, s[54:55]
    v_lshlrev_b32 v117, 2, v117
    v_mad_u32_u24 v117, v116, s48, v117
    v_mul_u32_u24 v118, v111, v118
    v_add_u32 v118, 511, v118
    v_lshrrev_b32 v118, 9, v118
    v_lshlrev_b32 v116, 2, v116
    s_mov_b64 exec, s[52:53]
    ds_write_b32 v117, v109
    ds_max_u32 v116, v118 offset:{L_LG}
    s_mov_b64 exec, -1
    s_waitcnt vmcnt({7 if OPT['OWNO'] else 0})
    s_branch K2_B4
K2_YOUNG:
    s_waitcnt lgkmcnt(0)
    s_barrier
@SA 2
    """)
    if not OPT["OWNO"] and not OPT["OWN67"] and not OPT["EARLY"]: ownload()
    o("s_barrier")
    if not OPT["OWN67"]: o(f"s_waitcnt vmcnt({0 if OPT['OWNO'] else 7})")
    def outtlb():
        o(f"""
        v_lshlrev_b32 v107, 12, v20
        v_min_u32 v107, {R*128-4}, v107
        s_mov_b32 m0, {L_CNT}
        s_mov_b64 exec, 0xff
        buffer_load_dword v107, s[20:23], s51 offen lds
        s_mov_b64 exec, -1
        """)
    if OPT["OUTTLB"] and not OPT["OWN67"]: outtlb()
    o(f"""
K2_B4:
    s_cmp_lg_u32 s39, 0
    s_cbranch_scc1 K2_X3PUT
K2_B4B:
    s_mul_i32 s48, s2, {R}
    s_movk_i32 s49, {NMS}
    s_waitcnt lgkmcnt(0)
    s_barrier
@ST 3
    ds_read_b32 v120, v191
    ds_read_b32 v123, v28 offset:{L_LG}
    ds_read_b32 v121, v190
    ds_read_b128 {vr(D0,4)}, v189
    s_waitcnt lgkmcnt(2)
@SB 1
    v_subrev_u32 v120, s48, v120
    v_min_u32 v120, {R}, v120
    v_mad_u32_u24 v120, v120, s49, v188
    v_add_u32 v119, s37, v120
    v_add_u32 v118, s37, v119
    v_cmp_lt_u32 vcc, {LCAP}, v123
    ds_read_b128 {vr(T2,4)}, v120 offset:{L_NM}
    ds_read_b128 {vr(T2+4,4)}, v119 offset:{L_NM}
    ds_read_b128 {vr(T2+8,4)}, v118 offset:{L_NM}
    v_readlane_b32 s43, v123, s44
    s_waitcnt lgkmcnt(4)
    v_subrev_u32 v121, s48, v121
    v_min_u32 v121, {R-1}, v121
    v_lshlrev_b32 v124, 3, v121
    v_and_b32 v124, 0x70, v124
    v_xor_b32 v124, v124, v122
    v_lshl_add_u32 v124, v121, 7, v124
    v_xor_b32 v125, 16, v124
    v_xor_b32 v126, 32, v124
    v_xor_b32 v127, 48, v124
    s_mov_b32 s47, 0
    s_and_b32 s33, vcc_lo, 0x3ff
    s_cbranch_scc1 K2_FLAGS
K2_FLAGSDONE:
    s_lshl_b32 s48, s43, 7
    v_add_u32 v121, s48, v{LD}
    v_mov_b32 v{VT}, v110
    s_mov_b32 m0, s40
    {'s_mov_b32 s76, s43' if DIAG else ''}
    """)
    def build_list():
        for k in range(3):
            for e in range(4):
                o(f"ds_write_b32 v{OF+e}, v{T2+4*k+e} offset:{128+1024*k}")
        o(f"""
        ds_write_b128 v121, {vr(D0,4)} offset:128
        ds_read_b128 {vr(D0,4)}, v{LD} offset:128
        ds_read_b128 {vr(T,4)}, v{LD} offset:256
        ds_read_b128 {vr(T+4,4)}, v{LD} offset:384
        ds_read_b128 {vr(T+8,4)}, v{LD} offset:512
        ds_read_b32 v{EP}, v{LE} offset:128
        """)
    def frags(reg, off):
        for f in range(8): o(f"ds_read_b128 {vr(reg+4*f,4)}, v{VT} offset:{L_WB+off+1024*f}")
    def rowdma(n):
        if n: o(f"s_add_u32 m0, s40, {n*SLOT}")
        for i in range(4): o(f"v_mad_u32_u16 v{D0+i}, v{T+4*(n-1)+i if n else D0+i}, s31, v{CK}")
        for i in range(4): o(dma(i, "PRESC" if n < OPT["PREN"] else "ROWSC"))
    def own_x():
        for s_ in range(4): o(f"ds_read_b128 {vr(X+4*s_,4)}, v{124+s_}")
    def zero():
        for i in range(64): o(f"v_mov_b32 v{DEN+i}, 0")
    def aprime():
        for s_ in range(4):
            for t in range(2):
                o(mf(AP+16*t, WA+16*t+4*s_, X+4*s_, None if s_ == 0 else AP+16*t))
    o("s_cmp_ge_u32 s3, 4\ns_cbranch_scc1 K2_YPRE")
    o("s_waitcnt lgkmcnt(0)\n@SB 11")
    build_list()
    o("s_waitcnt lgkmcnt(4)\n@SB 2\ns_barrier\n@ST 6")
    if OPT["OWN67"]:
        rowdma(0)
        o("s_waitcnt lgkmcnt(0)")
        rowdma(1)
        if OPT["R3E"]: rowdma(2)
        zero()
        o("s_barrier")
        own_x(); frags(WA, 16384)
        o("s_waitcnt lgkmcnt(8)\ns_barrier")
        frags(WB, 0)
        o("s_waitcnt lgkmcnt(8)")
        aprime()
        frags(WV, 8192)
        if not OPT["R3E"]: rowdma(2)
    else:
        rowdma(0)
        frags(WA, 16384)
        o("s_waitcnt lgkmcnt(8)")
        rowdma(1)
        frags(WB, 0)
        if OPT["R3E"]: rowdma(2)
        frags(WV, 8192)
        zero()
        if OPT["OWNO"]: o(f"s_waitcnt vmcnt({12 if OPT['R3E'] else 8})")
        o("s_barrier")
        own_x()
        o("s_waitcnt lgkmcnt(0)")
        aprime()
        o("s_barrier")
        if not OPT["R3E"]: rowdma(2)
    o("s_branch K2_PRE\nK2_YPRE:")
    o("s_waitcnt lgkmcnt(0)\n@SB 11\n@SB 2\ns_barrier\n@ST 6")
    if OPT["OWN67"]:
        wyoung()
        if OPT["OUTTLB"]: outtlb()
        o("s_mov_b32 m0, s40")
    build_list()
    zero()
    o(f"s_waitcnt vmcnt({OPT['OUTTLB']})\ns_barrier")
    own_x()
    o("s_waitcnt lgkmcnt(0)\ns_barrier")
    if OPT["YD"] == 0: rowdma(0); rowdma(1); rowdma(2)
    frags(WA, 16384)
    frags(WB, 0)
    o("s_waitcnt lgkmcnt(8)")
    aprime()
    frags(WV, 8192)
    if OPT["YD"]: rowdma(0); rowdma(1); rowdma(2)
    o("K2_PRE:")
    for i in range(4): o(f"v_mad_u32_u16 v{D0+i}, v{T+8+i}, s31, v{CK}")
    o(f"""
    v_pk_sub_u16 v{EP}, v{EP}, s32 clamp
    v_add_u32 v{XA}, s40, v{XL}
    v_add_u32 v{LD}, {5*128}, v{LD}
    v_add_u32 v{LE}, {2*128}, v{LE}
    s_cmp_lg_u32 s46, 0
    s_cbranch_scc1 K2_LOADACC
K2_ACCDONE:
    s_mov_b32 m0, s40
    s_add_u32 s42, s40, {SLOT}
    s_mov_b32 s54, {f32(NLOG2E)}
    s_mov_b32 s55, {f32(NLOG2E)}
    """)
    for i in range(16): o(f"v_pk_mul_f32 {vr(AP+2*i,2)}, {vr(AP+2*i,2)}, s[54:55]")
    o(f"""
    s_waitcnt vmcnt(8)
@ST 7
    """)
    for s_ in range(4): o(xread(s_))
    ml = mf_list(0)
    o(ml[0])
    o("s_waitcnt lgkmcnt(0)")
    for i in range(4): o(ml[1+2*i]); o(dma(i))
    for i in range(4): o(ml[2+2*i])
    o(f"""
    v_add_u32 v{XA}, {SLOT}, v{XA}
@ST 8
    s_sub_u32 s43, s43, 1
    s_cbranch_scc1 K2_LOOPEND
    .p2align 4
K2_LOOP:
    """)
    sl = [[] for _ in range(9)]
    sl[0] = [f"ds_read_b32 v{VT}, v{LE}"]
    sl[1] = ["s_waitcnt vmcnt(8)"]
    sl[2] = [xread(0)]
    sl[3] = [f"ds_read_b128 {vr(D0,4)}, v{LD}"]
    sl[4] = [xread(1)]
    sl[5] = ["s_mov_b32 m0, s42"]
    sl[6] = [xread(2)]
    sl[7] = ["s_waitcnt lgkmcnt(2)"]
    sl[8] = [xread(3)]
    phase(o, 0, mf_list(1), sl,
          [f"v_add_u32 v{LE}, 128, v{LE}", f"v_add_u32 v{LD}, 128, v{LD}"],
          [f"v_pk_sub_u16 v{EP}, v{VT}, s32 clamp"] + mads(),
          pk1=(), pk2=ADV + ["s_waitcnt lgkmcnt(0)"])
    sl = [[] for _ in range(9)]
    for i in range(4): sl[i] = [dma(i)]
    if OPT["PRIO"]:
        sl[5] = ["s_cmp_lg_u32 s43, s50"]
        sl[6] = ["s_cbranch_scc1 K2_NOP", "s_setprio 0", "K2_NOP:"]
    sl[8] = ["s_sub_u32 s43, s43, 1"]
    phase(o, 1, mf_list(0), sl, [f"v_add_u32 v{XA}, s42, v{XL}"], [])
    o(f"""
    s_cbranch_scc0 K2_LOOP
K2_LOOPEND:
@ST 9
    v_mbcnt_lo_u32_b32 v{D0}, -1, 0
    v_mbcnt_hi_u32_b32 v{D0}, -1, v{D0}
    v_lshlrev_b32 v{D0+1}, 4, v{D0}
    v_subrev_u32 v{LE}, 128, v{LE}
    ds_read_b32 v{VT}, v{LE}
    """)
    if OPT["OUTT"]:
        o(f"""
        v_subrev_u32 v{LD}, 512, v{LD}
        ds_read_b128 {vr(AP,4)}, v{LD}
        v_add_u32 v{AP+4}, s40, v{D0+1}
        v_add_u32 v{AP+5}, s40, v{XL}
        s_mov_b64 s[54:55], -1
        """)
    for f in range(8):
        o(f"ds_read_b128 {vr(WB+4*f,4)}, v{D0+1} offset:{L_WU+1024*f}")
    o(f"""
    s_mov_b32 s48, 0
    s_cmp_ge_u32 s44, 3
    s_cbranch_scc1 K2_NOCOMB
    s_mov_b32 s48, 8
    s_mov_b32 s55, 0
    """)
    for i in range(64): o(f"v_add_f32_dpp v{DEN+i}, v{DEN+i}, v{DEN+i} row_ror:8 row_mask:0xf bank_mask:0xf")
    o(f"""
    s_cmp_lg_u32 s44, 0
    s_cbranch_scc1 K2_NOCOMB
    s_mov_b32 s48, 12
    s_mov_b32 s54, 0xffff
    """)
    for i in range(64): o(f"v_add_f32_dpp v{DEN+i}, v{DEN+i}, v{DEN+i} row_ror:4 row_mask:0xf bank_mask:0xf")
    o(f"""
K2_NOCOMB:
    v_and_b32 v{D0+2}, s48, v{D0}
    v_cmp_eq_u32 vcc, 0, v{D0+2}
    v_mov_b32 v{D0+3}, 0xffff
    v_lshrrev_b32 v{D0}, 5, v{D0}
    s_waitcnt lgkmcnt(0)
    v_cndmask_b32 v{D0+2}, v{D0+3}, v{VT}, vcc
    s_cmp_lg_u32 s33, 0
    s_cbranch_scc1 K2_STOREACC
    s_mov_b32 s52, {f32(1e-6)}
    s_mov_b32 s53, {f32(1e-6)}
    v_lshlrev_b32 v{D0}, 6, v{D0}
    v_lshl_add_u32 v{D0}, v{D0+2}, 7, v{D0}
    """)
    for i in range(16): o(f"v_pk_add_f32 {vr(DEN+2*i,2)}, {vr(DEN+2*i,2)}, s[52:53]")
    k = 0
    for s in range(4):
        for t in range(2):
            o(mf(G[t], WB+16*t+4*s, X+4*s, None if s == 0 else G[t]))
            n = 3 if (s, t) != (3, 1) else 11
            for i in range(k, k+n): o(f"v_rcp_f32 v{DEN+i}, v{DEN+i}")
            k += n
    o("s_mov_b32 s49, 0xffff0000\ns_nop 0")
    for t in range(2):
        for i in range(8):
            o(f"v_pk_fma_f32 {vr(G[t]+2*i,2)}, {vr(NUM+16*t+2*i,2)}, {vr(DEN+16*t+2*i,2)}, {vr(G[t]+2*i,2)}")
    for t in range(2):
        for i in range(8):
            o(f"v_lshlrev_b32 v{V[t]+2*i}, 16, v{X+8*t+i}")
            o(f"v_and_b32 v{V[t]+2*i+1}, s49, v{X+8*t+i}")
            o(f"v_max_f32 v{G[t]+2*i}, 0, v{G[t]+2*i}")
            o(f"v_max_f32 v{G[t]+2*i+1}, 0, v{G[t]+2*i+1}")
            o(f"v_pk_add_f32 {vr(G[t]+2*i,2)}, {vr(G[t]+2*i,2)}, {vr(V[t]+2*i,2)}")
            o(f"v_cvt_pk_bf16_f32 v{DEN+8*t+i}, v{G[t]+2*i}, v{G[t]+2*i+1}")
            if i % 4 == 3:
                j = 2*t + i//4
                if OPT["OUTT"]:
                    if j == 0: o("s_waitcnt vmcnt(0)")
                    o(f"ds_write_b128 v{AP+5}, {vr(DEN+4*j,4)}" + (f" offset:{16*j}" if j else ""))
                else: o(f"buffer_store_dwordx4 {vr(DEN+4*j,4)}, v{D0}, s[20:23], 0 offen" + (f" offset:{16*j}" if j else "") + (" " + OPT["OUTSC"] if OPT["OUTSC"] else ""))
    if OPT["OUTT"]:
        o("s_mov_b64 exec, s[54:55]")
        for i in range(4): o(f"ds_read_b128 {vr(AP+8+4*i,4)}, v{AP+4}" + (f" offset:{BLK*i}" if i else ""))
        for i in range(4): o(f"v_mad_u32_u16 v{AP+i}, v{AP+i}, s31, v{CK}")
        for i in range(4):
            o(f"s_waitcnt lgkmcnt({3-i})")
            o(f"buffer_store_dwordx4 {vr(AP+8+4*i,4)}, v{AP+i}, s[20:23], 0 offen" + (" " + OPT["OUTSC"] if OPT["OUTSC"] else ""))
    o("@ST 10\n@RT 5")
    if DIAG: o("s_getreg_b32 s77, hwreg(HW_REG_HW_ID)\ns_getreg_b32 s78, hwreg(HW_REG_XCC_ID)")
    dump(o, 12, 0x4000000, ("s76", "s77", "s78", "s44"))
    o(f"""
K2_END:
    s_endpgm
K2_FLAGS:
    s_and_b32 s48, s33, 0xff
    s_cbranch_scc0 K2_PEND
    s_movk_i32 s36, {LCAP*4}
    s_mov_b32 s47, 1
    s_branch K2_AGAIN
K2_PEND:
    s_and_b32 s47, s33, 0x200
    s_cbranch_scc0 K2_FLAGSDONE
    s_cmp_eq_u32 s38, 0
    s_cbranch_scc1 K2_AGAIN
    """)
    for i in range(NS):
        o(f"v_cmp_le_u32 vcc, v{INF+i}, v{RK+i}\ns_and_b64 {pm(i)}, {pm(i)}, vcc")
    def more():
        o(f"""
        v_mov_b32 v107, {L_LG+32}
        s_and_b64 exec, exec, vcc
        ds_write_b32 v107, v107
        s_mov_b64 exec, -1
        """)
    def clamp(sl):
        o(f"s_add_u32 s48, s36, {L_NM-NMS}")
        for i in sl: o(f"v_mad_u32_u24 v{INF+i}, v{dl4(i)}, {NMS//4}, s48")
        o("s_waitcnt lgkmcnt(0)")
        for i in sl: o(f"v_min_u32 v{RK+i}, v{INF+i}, v{RK+i}")
    o(f"""
    s_branch K2_FLAGSDONE
K2_X3:
    s_mov_b32 s39, 1
    v_mul_u32_u24 v102, {OVS}, v22
    v_mov_b32 v104, 0
    """)
    for q in range(4):
        ext(12+q)
        o(f"""
        s_cmp_lg_u32 s47, 0
        s_cbranch_scc1 K2_X3K{q}
        v_cmp_ne_u32 {pm(12+q)}, 0, v{dl4(12+q)}
K2_X3K{q}:
        s_mov_b32 s48, {q*64*8192}
        s_mov_b64 exec, {pm(12+q)}
        buffer_load_dword v{pay(12+q)}, v186, s[12:15], s48 offen
        """)
        atom(12+q)
        o(f"""
        s_mov_b64 exec, -1
        v_cmp_ne_u32 vcc, 0, v{dl4(12+q)}
        s_mov_b32 s48, 0x80808080
        s_and_b32 exec_lo, vcc_lo, s48
        s_and_b32 exec_hi, vcc_hi, s48
        s_cbranch_execz K2_X3N{q}
        s_mov_b32 s48, {OVL+q*64*OVS}
        buffer_load_dword v103, v102, s[12:15], s48 offen
        s_waitcnt vmcnt(0)
        v_or_b32 v104, v104, v103
K2_X3N{q}:
        s_mov_b64 exec, -1
        """)
    o("v_cmp_ne_u32 vcc, 0, v104")
    more()
    clamp(range(12, 16))
    o(f"""
    s_branch K2_COUNTED
K2_X3PUT:
    {'s_waitcnt vmcnt(0)' if OPT['OWN67'] or OPT['EARLY'] else ''}
    """)
    put(range(12, 16))
    o(f"""
    s_branch K2_B4B
K2_SLOWLOAD:
    """)
    if OPT["OWN67"]:
        o("s_cmp_lt_u32 s3, 6\ns_cbranch_scc1 K2_SL0")
        own67()
        o("K2_SL0:")
    elif OPT["EARLY"]:
        o("s_cmp_lt_u32 s3, 4\ns_cbranch_scc1 K2_SL0")
        wyoung(); ownload()
        o("K2_SL0:")
    else: wload()
    o(f"""
    s_waitcnt vmcnt(0)
    s_cmp_lg_u32 s45, 0
    s_cbranch_scc1 K2_CHUNK
    """)
    for i in range(12): ext(i)
    for i in range(12): cnt(i)
    o("s_mov_b64 exec, -1")
    clamp(range(12))
    put(range(12))
    o(f"""
    s_branch K2_X3
K2_CHUNK:
    s_sub_u32 s48, s45, 16
    s_lshl_b32 s49, s48, 3
    v_mul_u32_u24 v102, {OVS}, v22
    v_add_u32 v102, {OVL}, v102
    v_lshrrev_b32 v105, 3, v23
    v_add_u32 v105, s48, v105
    v_add_u32 v106, 1, v105
    v_or_b32 v107, 28, v28
    v_mov_b32 v104, 0
    """)
    for q in range(4):
        o(f"""
        ds_bpermute_b32 v108, v107, v{meta(q)}
        v_mov_b32 v{QC+q}, 0
        v_add3_u32 v103, v102, v23, s49
        s_waitcnt lgkmcnt(0)
        v_cmp_lt_u32 vcc, 0xffffff, v108
        s_mov_b64 exec, vcc
        buffer_load_dword v{QC+q}, v102, s[12:15], 0 offen
        buffer_load_dwordx4 {vr(INF+4*q,4)}, v103, s[12:15], 0 offen offset:16
        s_waitcnt vmcnt(0)
        s_mov_b64 exec, -1
        v_max_u32 v104, v104, v{QC+q}
        v_add_u32 v102, {64*OVS}, v102
        """)
    o(f"""
    s_cmp_lg_u32 s47, 0
    s_cbranch_scc1 K2_CKEEP
    """)
    for q in range(4):
        o(f"s_mov_b64 {pm(3*q+2)}, 0\ns_mov_b64 {pm(12+q)}, 0")
        for k in range(2):
            o(f"""
            v_cmp_lt_u32 vcc, v{105+k}, v{QC+q}
            v_cmp_eq_u32_sdwa {pm(3*q+k)}, s2, v{INF+4*q+2*k+1} src0_sel:DWORD src1_sel:WORD_1
            s_and_b64 {pm(3*q+k)}, {pm(3*q+k)}, vcc
            """)
    o("K2_CKEEP:")
    sl = [3*q+k for q in range(4) for k in range(2)]
    for q in range(4):
        for k in range(2):
            o(f"v_mov_b32 v{pay(3*q+k)}, v{INF+4*q+2*k}\nv_and_b32 v{dl4(3*q+k)}, 0xffff, v{INF+4*q+2*k+1}")
    o(f"v_cmp_lt_u32 vcc, s45, v104")
    more()
    for i in sl: cnt(i)
    o("s_mov_b64 exec, -1")
    clamp(sl)
    put(sl)
    o(f"""
    s_branch K2_COUNTED
K2_LOADACC:
    s_lshl_b32 s48, s43, 7
    s_sub_u32 s48, s48, 128
    v_add_u32 v{G[0]}, s48, v{LE}
    ds_read_b32 v{G[0]}, v{G[0]}
    v_mbcnt_lo_u32_b32 v{G[0]+1}, -1, 0
    v_mbcnt_hi_u32_b32 v{G[0]+1}, -1, v{G[0]+1}
    s_cmp_ge_u32 s44, 3
    s_cselect_b32 s48, 0, 8
    s_cmp_eq_u32 s44, 0
    s_cselect_b32 s48, 12, s48
    v_and_b32 v{G[0]+2}, s48, v{G[0]+1}
    v_cmp_eq_u32 vcc, 0, v{G[0]+2}
    v_mov_b32 v{G[0]+3}, 0xffff
    v_lshrrev_b32 v{G[0]+1}, 5, v{G[0]+1}
    v_lshlrev_b32 v{G[0]+1}, 8, v{G[0]+1}
    s_waitcnt lgkmcnt(0)
    v_cndmask_b32 v{G[0]}, v{G[0]+3}, v{G[0]}, vcc
    v_lshl_add_u32 v{G[0]}, v{G[0]}, 9, v{G[0]+1}
    """)
    for j in range(16):
        o(f"buffer_load_dwordx4 {vr(DEN+4*j,4)}, v{G[0]}, s[24:27], 0 offen offset:{16*j}")
    o(f"""
    s_waitcnt vmcnt(0)
    s_branch K2_ACCDONE
K2_STOREACC:
    v_lshlrev_b32 v{D0}, 8, v{D0}
    v_lshl_add_u32 v{D0}, v{D0+2}, 9, v{D0}
    """)
    for j in range(16):
        o(f"buffer_store_dwordx4 {vr(DEN+4*j,4)}, v{D0}, s[24:27], 0 offen offset:{16*j}")
    o(f"""
    s_mov_b32 s46, 1
    s_cmp_lg_u32 s47, 0
    s_cselect_b32 s48, 0, 16
    s_add_u32 s45, s45, s48
K2_AGAIN:
    s_waitcnt vmcnt(0) lgkmcnt(0)
    s_barrier
    """)
    celladdr()
    cellissue(first)
    o("s_branch K2_RESTART")
    return o.text()

def desc(name, nv, ns):
    return f"""
.p2align 6
.amdhsa_kernel {name}
  .amdhsa_next_free_vgpr {nv}
  .amdhsa_next_free_sgpr {ns}
  .amdhsa_accum_offset {(nv+3)//4*4}
  .amdhsa_group_segment_fixed_size 0
  .amdhsa_kernarg_size 96
  .amdhsa_user_sgpr_count 2
  .amdhsa_user_sgpr_kernarg_segment_ptr 1
  .amdhsa_system_sgpr_workgroup_id_x 1
  .amdhsa_float_denorm_mode_32 3
.end_amdhsa_kernel
"""

def build():
    hdr = open(f"cdna_kernels/{NAME}.s.ref").read().split("; Override launch geometry")[0]
    s = hdr
    s += f"; @launch kernel=part_kernel grid=({P+5},1,1) block=({896 if OPT['K1TLB'] else 832},1,1) lds={LDS1}\n"
    s += f"; @launch kernel=main_kernel grid=({NB},1,1) block=(512,1,1) lds={LDS2}\n"
    s += '.amdgcn_target "amdgcn-amd-amdhsa--gfx950"\n.text\n'
    for nm, body in (("part_kernel", k1()), ("main_kernel", k2())):
        s += f".globl {nm}\n.p2align 8\n.type {nm},@function\n" + body
    s += '.section .rodata,"a"\n' + desc("part_kernel", 52, 102 if DIAG else 24) + desc("main_kernel", 256, 102 if DIAG else 96)
    return s

if __name__ == "__main__":
    if "--diag" in sys.argv:
        sys.argv.remove("--diag"); DIAG = True
    out = sys.argv[1] if len(sys.argv) > 1 else f"cdna_kernels/{NAME}.s"
    open(out, "w").write(build())
```

```python
import sys, struct
NAME = "gather_scatter__edge_featured_mpnn_gatedgcn__graph"
N, E, R, P, CH = 50000, 800000, 196, 250, 3200
NB = 256
WS_WF, WS_OVF, WS_ACC = 0x800000, 0x840000, 0x1100000
OVL = 0x200000
OVS = 25728
K1_HIST = 40960
LDS1 = K1_HIST + 832*4
LCAP = 24
NMS = 208
GS = (LCAP + 2) * 128
L_LIST = 0
L_WB = 8 * GS
L_WU = L_WB + 24576
L_CNT = L_WB + 32768
L_HIST = L_CNT + 1024
L_LG = L_HIST + 256
L_RING = L_LG + 64
BLK, SLOT = 1040, 4160
RINGW = 3 * SLOT
L_NM = L_RING
L_OWN = (L_RING + 4 * RINGW + 127) // 128 * 128
LDS2 = L_RING + 8 * RINGW
def f32(x): return "0x%08x" % struct.unpack("<I", struct.pack("<f", x))[0]
NLOG2E = -1.4426950408889634

DIAG = False
import os
OPT = dict(XMAP=1, K1PF=0, K1SC="sc1", OUTSC="", YD=1, STSET=0, K1TLB=0, OUTTLB=1, OWNE=0, PRIO=0, PK=0, K1T2=0, OUTT=0, SPLIT=1, OWNO=0, R3E=1, OWN67=0, EARLY=0, K1LSC="nt", CELLSC="nt", OWNSC="nt", ROWSC="", PRESC="", PREN=3, HD=0)
for kv in os.environ.get("GOPT", "").split(","):
    if kv:
        k_, v_ = kv.split("="); OPT[k_] = v_.replace("_", " ") if k_.endswith("SC") else int(v_)
ST_REGS = [56, 58, 60, 62, 96, 74, 64, 66, 68, 70, 72, 98]
def stamp(o, i, real=False):
    if DIAG:
        r = ST_REGS[i]
        o(f"s_mem{'real' if real else ''}time s[{r}:{r+1}]")
def dump(o, n, base, extra=()):
    if DIAG:
        o("s_load_dwordx2 s[100:101], s[0:1], 88\ns_waitcnt lgkmcnt(0)\ns_mov_b64 exec, -1")
        for i in range(n): o(f"v_writelane_b32 v1, s{ST_REGS[i]}, {i}")
        for j, x in enumerate(extra): o(f"v_writelane_b32 v1, {x}, {n+j}")
        o(f"""v_mbcnt_lo_u32_b32 v2, -1, 0
        v_mbcnt_hi_u32_b32 v2, -1, v2
        s_lshl_b32 s99, s2, 4
        s_add_u32 s99, s99, s3
        s_lshl_b32 s99, s99, 8
        s_add_u32 s99, s99, {base}
        v_lshl_add_u32 v2, v2, 2, s99
        global_store_dword v2, v1, s[100:101]""")

class A:
    def __init__(s): s.l = []
    def __call__(s, t):
        for x in t.strip("\n").split("\n"):
            x = x.strip()
            if x.startswith("@SA") or x.startswith("@SB"):
                if OPT["STSET"] == (0 if x[2] == "A" else 1): stamp(s, int(x.split()[1]))
                continue
            if x.startswith("@ST") or x.startswith("@RT"):
                stamp(s, int(x.split()[1]), x.startswith("@RT")); continue
            if x: s.l.append(x if x.endswith(":") else "    " + x)
    def text(s): return "\n".join(s.l) + "\n"

def vr(a, n): return f"v[{a}:{a+n-1}]"

def scan(o, v):
    for sh in (1, 2, 4, 8):
        o(f"s_nop 1\nv_add_u32_dpp v{v}, v{v}, v{v} row_shr:{sh} row_mask:0xf bank_mask:0xf")
    o(f"s_nop 1\nv_add_u32_dpp v{v}, v{v}, v{v} row_bcast:15 row_mask:0xa bank_mask:0xf")
    o(f"s_nop 1\nv_add_u32_dpp v{v}, v{v}, v{v} row_bcast:31 row_mask:0xc bank_mask:0xf")

def k1():
    o = A()
    o(f"""
part_kernel:
    s_cmp_ge_u32 s2, {P}
    s_cbranch_scc1 K1_W
@RT 4
@ST 0
    s_load_dwordx2 s[8:9], s[0:1], 24
    s_load_dwordx4 s[4:7], s[0:1], 8
    s_load_dwordx2 s[10:11], s[0:1], 88
    s_load_dwordx2 s[22:23], s[0:1], 0
    """)
    if OPT["K1TLB"]:
        o("v_readfirstlane_b32 s15, v0\ns_cmp_ge_u32 s15, 832\ns_cbranch_scc1 K1_T")
    o(f"""
    v_cmp_gt_u32 vcc, 800, v0
    s_mul_i32 s12, s2, {CH*4}
    v_lshlrev_b32 v1, 4, v0
    v_add_u32 v2, s12, v1
    v_lshrrev_b32 v3, 1, v2
    v_lshlrev_b32 v4, 2, v0
    v_mov_b32 v40, 0
    v_mov_b32 v41, 0
    v_mov_b32 v42, 0
    v_mov_b32 v43, 0
    v_mov_b32 v6, 1
    s_mov_b64 s[20:21], vcc
    s_mov_b64 exec, vcc
    s_waitcnt lgkmcnt(0)
@ST 1
    global_load_dwordx4 v[8:11], v2, s[8:9] {OPT['K1LSC']}
    global_load_dwordx4 v[12:15], v2, s[6:7] {OPT['K1LSC']}
    global_load_dwordx2 v[16:17], v3, s[4:5] {OPT['K1LSC']}
    """)
    npf = 0
    if OPT["K1PF"]:
        o(f"""
        s_mul_i32 s13, s2, {200*128}
        v_cmp_gt_u32 vcc, {200*OPT["K1PF"]}, v0
        v_lshlrev_b32 v5, {8-OPT["K1PF"]}, v0
        v_add_u32 v5, s13, v5
        v_min_u32 v5, {N*128-4}, v5
        s_or_b32 vcc_lo, vcc_lo, 1
        s_and_b64 exec, exec, vcc
        global_load_dword v44, v5, s[22:23]
        """)
        npf = 1
    o(f"""
    s_mov_b64 exec, -1
    ds_write_b32 v4, v40 offset:{K1_HIST}
    ds_write_b128 v1, v[40:43]
    ds_write_b128 v1, v[40:43] offset:13312
    ds_write_b128 v1, v[40:43] offset:26624
    s_movk_i32 s13, -{R}
    s_mov_b32 s14, 0xffff0000
    s_mov_b64 exec, s[20:21]
    s_waitcnt lgkmcnt(0)
    s_barrier
    s_waitcnt vmcnt({2+npf})
@ST 2
    """)
    for i in range(4):
        o(f"""
        v_mul_u32_u24 v{20+i}, 0x14e5f, v{8+i}
        v_lshrrev_b32 v{20+i}, 24, v{20+i}
        v_lshlrev_b32 v{24+i}, 2, v{20+i}
        ds_add_rtn_u32 v{28+i}, v{24+i}, v6 offset:{K1_HIST}
        """)
    for i in range(4):
        o(f"""
        v_mad_i32_i24 v{8+i}, v{20+i}, s13, v{8+i}
        v_add_u32 v{8+i}, 1, v{8+i}
        """)
    o(f"""
    s_waitcnt vmcnt({npf})
    v_lshl_or_b32 v32, v16, 16, v12
    v_and_or_b32 v33, v16, s14, v13
    v_lshl_or_b32 v34, v17, 16, v14
    v_and_or_b32 v35, v17, s14, v15
    """)
    if OPT["K1T2"]:
        o(f"""
        s_andn2_b64 exec, -1, s[20:21]
        s_cbranch_execz K1_NOT2
        s_load_dwordx2 s[16:17], s[0:1], 72
        s_lshr_b32 s15, s2, 3
        s_mul_i32 s15, s15, 6144
        v_and_b32 v5, 31, v0
        v_mul_u32_u24 v5, 200000, v5
        v_add_u32 v5, s15, v5
        v_mov_b32 v7, {WS_WF}
        """)
        if OPT["K1T2"] & 1: o("global_load_dword v44, v5, s[22:23]")
        if OPT["K1T2"] & 4: o("global_load_dword v45, v7, s[10:11]")
        if OPT["K1T2"] & 2: o("s_waitcnt lgkmcnt(0)\nglobal_load_dword v46, v5, s[16:17]")
        o("K1_NOT2:\ns_mov_b64 exec, s[20:21]")
    o(f"""
    s_waitcnt lgkmcnt(0)
@ST 3
    v_max3_u32 v36, v28, v29, v30
    v_max_u32 v36, v36, v31
    v_cmp_lt_u32 vcc, 23, v36
    s_cbranch_vccnz K1_OVF
    """)
    def put(i):
        o(f"""
        v_and_b32 v36, 7, v{28+i}
        v_lshl_add_u32 v36, v{24+i}, 1, v36
        v_lshrrev_b32 v37, 3, v{28+i}
        v_lshlrev_b32 v36, 4, v36
        v_lshl_add_u32 v38, v37, 2, v36
        v_add_u32 v39, v37, v36
        ds_write_b32 v38, v{32+i}
        ds_write_b8 v39, v{8+i} offset:12
        """)
    for i in range(4): put(i)
    sc = (" " + OPT["K1SC"]) if OPT["K1SC"] else ""
    o(f"""
K1_PUTDONE:
    s_mov_b64 exec, -1
    s_lshl_b32 s12, s2, 15
    v_add_u32 v2, s12, v1
    v_add_u32 v3, 13312, v2
    v_add_u32 v5, 26624, v2
    v_cmp_gt_u32 vcc, {2048-2*832}, v0
    v_mov_b32 v7, {K1_HIST+1024}
    s_waitcnt lgkmcnt(0)
    s_barrier
@ST 6
    ds_read_b128 v[8:11], v1
    ds_read_b128 v[12:15], v1 offset:13312
    ds_read_b128 v[16:19], v1 offset:26624
    ds_read_b32 v20, v7
    s_waitcnt lgkmcnt(3)
    global_store_dwordx4 v2, v[8:11], s[10:11]{sc}
    s_waitcnt lgkmcnt(2)
    global_store_dwordx4 v3, v[12:15], s[10:11]{sc}
    s_and_b64 exec, exec, vcc
    s_waitcnt lgkmcnt(0)
    global_store_dwordx4 v5, v[16:19], s[10:11]{sc}
    s_mov_b64 exec, -1
    s_mul_i32 s12, s2, {OVS}
    s_add_u32 s12, s12, {WS_OVF+OVL}
    v_cmp_eq_u32 vcc, 831, v0
    v_mov_b32 v7, s12
    s_and_b64 exec, exec, vcc
    global_store_dword v7, v20, s[10:11]
    """)
    if DIAG: o("@ST 7\ns_waitcnt vmcnt(0)\n@ST 8\n@RT 5\ns_mov_b64 exec, -1\nv_lshrrev_b32 v1, 6, v0\ns_nop 1\nv_readfirstlane_b32 s3, v1")
    dump(o, 9, 0x4800000)
    o(f"""
    s_endpgm
K1_OVF:
    s_mul_i32 s12, s2, {OVS}
    s_add_u32 s12, s12, {WS_OVF+OVL+16}
    s_lshl_b32 s15, s2, 13
    s_add_u32 s15, s15, {WS_OVF}
    v_mov_b32 v7, {K1_HIST+1024}
    """)
    for i in range(4):
        o(f"""
        s_mov_b64 exec, s[20:21]
        v_cmp_lt_u32 vcc, 23, v{28+i}
        v_cmp_lt_u32 s[16:17], 31, v{28+i}
        s_andn2_b64 exec, exec, vcc
        """)
        put(i)
        o(f"""
        s_andn2_b64 exec, vcc, s[16:17]
        s_cbranch_execz K1_OVM{i}
        v_and_b32 v36, 7, v{28+i}
        v_lshl_add_u32 v36, v{24+i}, 1, v36
        v_lshlrev_b32 v37, 4, v36
        v_lshl_add_u32 v36, v36, 2, s15
        ds_write_b8 v37, v{8+i} offset:15
        global_store_dword v36, v{32+i}, s[10:11]
K1_OVM{i}:
        s_mov_b64 exec, s[16:17]
        s_cbranch_execz K1_OVN{i}
        ds_add_rtn_u32 v36, v7, v6
        v_mov_b32 v46, v{32+i}
        v_lshlrev_b32 v47, 2, v{8+i}
        v_lshl_or_b32 v47, v{20+i}, 16, v47
        s_waitcnt lgkmcnt(0)
        v_lshl_add_u32 v36, v36, 3, s12
        global_store_dwordx2 v36, v[46:47], s[10:11]
K1_OVN{i}:
        """)
    o("s_branch K1_PUTDONE")
    if OPT["K1TLB"]:
        m = OPT["K1TLB"]
        o(f"""
K1_T:
        v_and_b32 v5, 63, v0
        s_barrier
        s_waitcnt lgkmcnt(0)
        """)
        if m & 8:
            o(f"""
            s_mul_i32 s12, s2, {CH*4}
            s_add_u32 s12, s12, {CH*4-4}
            v_mov_b32 v7, s12
            global_load_dword v44, v7, s[6:7]
            s_waitcnt vmcnt(0)
            """)
        if m & 2:
            o(f"""
            s_lshl_b32 s13, s2, 15
            v_lshlrev_b32 v7, 12, v5
            v_and_b32 v7, 0x7fff, v7
            v_add_u32 v7, s13, v7
            global_load_dword v45, v7, s[10:11]
            """)
        if m & 1:
            o(f"""
            s_lshr_b32 s13, s2, 3
            s_mul_i32 s13, s13, {50*4096}
            v_lshlrev_b32 v7, 12, v5
            v_add_u32 v7, s13, v7
            v_min_u32 v7, {N*128-4}, v7
            global_load_dword v44, v7, s[22:23]
            """)
        if m & 4:
            o(f"""
            s_mul_i32 s13, s2, {200*128}
            v_cmp_gt_u32 vcc, 50, v5
            v_lshl_add_u32 v7, v5, 7, s13
            s_mov_b64 exec, vcc
            """)
            for i in range(4):
                o(f"global_load_dword v44, v7, s[22:23]")
                if i < 3: o(f"v_add_u32 v7, {50*128}, v7")
        o("s_barrier\ns_endpgm")
    o(f"""
K1_W:
    s_cmp_ge_u32 s2, {P+5}
    s_cbranch_scc1 K1_END
    s_load_dwordx8 s[4:11], s[0:1], 32
    s_load_dwordx2 s[12:13], s[0:1], 64
    s_load_dwordx2 s[14:15], s[0:1], 88
    s_sub_u32 s3, s2, {P}
    v_bfe_u32 v1, v0, 2, 1
    v_lshlrev_b32 v1, 5, v1
    v_and_b32 v2, 3, v0
    v_add_u32 v1, v1, v2
    v_bfe_u32 v2, v0, 3, 2
    v_lshl_add_u32 v1, v2, 2, v1
    s_cmp_eq_u32 s3, 4
    s_cbranch_scc1 K1_WC
    v_cmp_gt_u32 vcc, 512, v0
    s_and_b64 exec, exec, vcc
    s_cbranch_execz K1_END
    v_bfe_u32 v2, v0, 8, 1
    v_lshl_add_u32 v1, v2, 4, v1
    v_lshlrev_b32 v1, 1, v1
    v_bfe_u32 v2, v0, 5, 1
    v_lshl_add_u32 v1, v2, 12, v1
    v_bfe_u32 v2, v0, 6, 2
    v_lshl_add_u32 v1, v2, 10, v1
    s_waitcnt lgkmcnt(0)
    s_mov_b32 s18, 1.0
    s_cmp_eq_u32 s3, 0
    s_cselect_b32 s16, s6, s12
    s_cselect_b32 s17, s7, s13
    s_cselect_b32 s18, {f32(NLOG2E)}, s18
    s_cmp_eq_u32 s3, 2
    s_cselect_b32 s16, s4, s16
    s_cselect_b32 s17, s5, s17
    s_cmp_eq_u32 s3, 3
    s_cselect_b32 s16, s10, s16
    s_cselect_b32 s17, s11, s17
    """)
    for j in range(8):
        o(f"global_load_ushort v{8+j}, v1, s[16:17] offset:{128*j}")
    o(f"""
    s_lshl_b32 s19, s3, 13
    s_add_u32 s19, s19, {WS_WF}
    v_lshlrev_b32 v2, 4, v0
    v_add_u32 v2, s19, v2
    s_waitcnt vmcnt(0)
    """)
    for j in range(8):
        o(f"v_lshlrev_b32 v{8+j}, 16, v{8+j}\nv_mul_f32 v{8+j}, s18, v{8+j}")
    for j in range(4):
        o(f"v_cvt_pk_bf16_f32 v{16+j}, v{8+2*j}, v{9+2*j}")
    o(f"""
    global_store_dwordx4 v2, v[16:19], s[14:15]
    s_endpgm
K1_WC:
    v_cmp_gt_u32 vcc, 128, v0
    s_and_b64 exec, exec, vcc
    s_cbranch_execz K1_END
    v_bfe_u32 v2, v0, 6, 1
    v_lshl_add_u32 v1, v2, 4, v1
    v_lshlrev_b32 v1, 1, v1
    s_waitcnt lgkmcnt(0)
    global_load_ushort v8, v1, s[8:9]
    v_lshlrev_b32 v2, 2, v0
    v_add_u32 v2, {WS_WF+32768}, v2
    v_and_b32 v3, 32, v0
    v_cmp_eq_u32 vcc, 0, v3
    v_mov_b32 v4, 0
    s_waitcnt vmcnt(0)
    v_lshlrev_b32 v8, 16, v8
    v_mul_f32 v8, {f32(NLOG2E)}, v8
    v_cvt_pk_bf16_f32 v9, v4, v8
    v_sub_f32 v10, v8, v9
    v_cvt_pk_bf16_f32 v10, v4, v10
    v_or_b32 v9, 0x7f7f, v9
    v_cndmask_b32 v9, v10, v9, vcc
    global_store_dword v2, v9, s[14:15]
K1_END:
    s_endpgm
    """)
    return o.text()

VT, XL, XA, CK, D0, LD, LE, EP, WC, X, WB, WV, AP, DEN, NUM = 0, 1, 2, 3, 4, 8, 9, 10, 12, 16, 32, 64, 96, 128, 160
G = (192, 224); V = (208, 240)
ENT, DLR, RK, OF, QC, INF, QK, WA = 128, 144, 160, 176, 180, 192, 220, 224
NS = 16
PM = 64

def mf(d, a, b, c):
    cs = "0" if c is None else vr(c, 16)
    return f"v_mfma_f32_32x32x16_bf16 {vr(d,16)}, {vr(a,4)}, {vr(b,4)}, {cs}"
def mfe(t):
    return f"v_mfma_f32_32x32x8_bf16 {vr(G[t],16)}, {vr(WC+2*t,2)}, {vr(EP,2)}, {vr(AP+16*t,16)}"
def mf_list(t):
    l = [mfe(t)]
    for s in range(4):
        l.append(mf(G[t], WB+16*t+4*s, X+4*s, G[t]))
        l.append(mf(V[t], WV+16*t+4*s, X+4*s, None if s == 0 else V[t]))
    return l
def dma(i, k="ROWSC"):
    so = ("s28", "s29", "s30", "0")[i]
    off = f" offset:{BLK*i}" if i else ""
    return f"buffer_load_dwordx4 v{D0+i}, s[4:7], {so} offen{off} {OPT[k]} lds"
def mads():
    return [f"v_mad_u32_u16 v{D0+i}, v{D0+i}, s31, v{CK}" for i in range(4)]
def xread(s): return f"ds_read_b128 {vr(X+4*s,4)}, v{XA}" + (f" offset:{16*s}" if s else "")
ADV = ["s_add_u32 s42, s42, %d" % SLOT, "s_cmp_eq_u32 s42, s41", "s_cselect_b32 s42, s40, s42"]

def phase(o, t, mfs, slots, fill1, fill2, pk1=(), pk2=()):
    g, v, den, num = G[t], V[t], DEN+16*t, NUM+16*t
    e = [f"v_exp_f32 v{g+i}, v{g+i}" for i in range(16)]
    r = [f"v_rcp_f32 v{g+i}, v{g+i}" for i in range(16)]
    def M(i):
        o(mfs[i])
        for x in slots[i]: o(x)
    k = 0
    for i in range(5):
        M(i)
        n = 3 if i < 4 else 4
        for x in e[k:k+n]: o(x)
        k += n
    for x in fill1: o(x)
    pk1 = list(pk1)
    for i in range(8):
        o(f"v_pk_add_f32 {vr(g+2*i,2)}, {vr(g+2*i,2)}, s[34:35]")
        if pk1: o(pk1.pop(0))
    k = 0
    for i in range(5, 9):
        M(i)
        n = 3 if i < 8 else 7
        for x in r[k:k+n]: o(x)
        k += n
    for x in fill2: o(x)
    pk2 = list(pk2)
    for i in range(8):
        o(f"v_pk_add_f32 {vr(den+2*i,2)}, {vr(den+2*i,2)}, {vr(g+2*i,2)}")
        if pk2: o(pk2.pop(0))
        o(f"v_pk_fma_f32 {vr(num+2*i,2)}, {vr(g+2*i,2)}, {vr(v+2*i,2)}, {vr(num+2*i,2)}")
        if pk2: o(pk2.pop(0))

def k2():
    o = A()
    def pay(i): return ENT + 4*(i//3) + i % 3 if i < 12 else QK + i - 12
    def dl4(i): return DLR + i
    def meta(q): return ENT + 4*q + 3
    def pm(i): return f"s[{PM+2*i}:{PM+2*i+1}]"
    T, T2 = G[0], V[0]
    def celladdr():
        o(f"""
        v_mbcnt_lo_u32_b32 v20, -1, 0
        v_mbcnt_hi_u32_b32 v20, -1, v20
        s_lshl_b32 s48, s3, 6
        v_add_u32 v21, s48, v20
        v_lshrrev_b32 v22, 3, v21
        v_and_b32 v23, 7, v20
        v_lshlrev_b32 v23, 4, v23
        s_lshl_b32 s49, s2, 7
        v_lshl_add_u32 v{OF}, v22, 15, s49
        v_add_u32 v{OF}, v{OF}, v23
        """)
        for q in range(1, 4):
            o(f"v_add_u32 v{OF+q}, {q*64*32768}, v{OF}")
    def cellissue(qs):
        for q in qs:
            o(f"buffer_load_dwordx4 {vr(ENT+4*q,4)}, v{OF+q}, s[8:11], 0 offen {OPT['CELLSC']}")
    first = (0, 1) if OPT["SPLIT"] else (0, 1, 2, 3)
    o(f"""
main_kernel:
    s_cmp_ge_u32 s2, {NB}
    s_cbranch_scc1 K2_END
    s_load_dwordx2 s[8:9], s[0:1], 88
    s_load_dwordx2 s[4:5], s[0:1], 0
    s_load_dwordx2 s[20:21], s[0:1], 72
@RT 4
@ST 0
    v_lshrrev_b32 v1, 6, v0
    s_mov_b32 s10, {P*32768}
    s_mov_b32 s11, 0x20000
    v_readfirstlane_b32 s3, v1
    """)
    if OPT["XMAP"]:
        o("""
        s_and_b32 s48, s2, 7
        s_lshr_b32 s2, s2, 3
        s_lshl_b32 s48, s48, 5
        s_or_b32 s2, s2, s48
        """)
    celladdr()
    o("s_waitcnt lgkmcnt(0)")
    cellissue(first)
    o(f"""
    s_add_u32 s16, s8, {WS_WF}
    s_addc_u32 s17, s9, 0
    s_mov_b32 s18, {32768+1024}
    s_mov_b32 s19, 0x20000
    s_add_u32 s12, s8, {WS_OVF}
    s_addc_u32 s13, s9, 0
    s_mov_b32 s14, {OVL+P*OVS+128}
    s_mov_b32 s15, 0x20000
    s_mov_b32 s45, 0
    s_mov_b32 s46, 0
    s_mov_b32 s47, 0
    s_movk_i32 s36, {48*4}
    s_sub_u32 s4, s4, {3*BLK}
    s_subb_u32 s5, s5, 0
    s_mov_b32 s6, {N*128+3*BLK}
    s_mov_b32 s7, 0x20000
    s_mov_b32 s22, {N*128}
    s_mov_b32 s23, 0x20000
    s_add_u32 s24, s8, {WS_ACC}
    s_addc_u32 s25, s9, 0
    s_mov_b32 s26, {N*512}
    s_mov_b32 s27, 0x20000
K2_RESTART:
    v_lshlrev_b32 v28, 2, v20
    v_lshlrev_b32 v24, 4, v21
    v_mov_b32 v96, 0xffff
    v_mov_b32 v97, 0xffff
    v_mov_b32 v98, 0xffff
    v_mov_b32 v99, 0xffff
    v_add_u32 v25, {L_NM}, v24
    v_mul_u32_u24 v187, {NMS}, v21
    v_add_u32 v187, {L_NM}, v187
    v_cmp_gt_u32 vcc, 256, v21
    v_lshlrev_b32 v30, 2, v21
    ds_write_b128 v25, v[96:99]
    ds_write_b128 v25, v[96:99] offset:8192
    v_cndmask_b32 v187, 0, v187, vcc
    ds_write_b128 v25, v[96:99] offset:16384
    ds_write_b128 v25, v[96:99] offset:24576
    v_cmp_gt_u32 vcc, {(L_RING-L_CNT)//4}, v21
    ds_write_b128 v25, v[96:99] offset:32768
    s_mul_i32 s48, s3, {GS}
    v_add_u32 v26, s48, v28
    ds_write_b32 v26, v96
    s_and_b64 exec, exec, vcc
    ds_write_b32 v30, v187 offset:{L_CNT}
    s_mov_b64 exec, -1
    """)
    if OPT["SPLIT"]: cellissue((2, 3))
    o(f"""
    v_add_u32 v29, 32768, v28
    buffer_load_dword v{WC}, v29, s[16:19], 0 offen
    buffer_load_dword v{WC+2}, v29, s[16:19], 0 offen offset:256
    s_mov_b32 s28, {3*BLK}
    s_and_b32 s48, s3, 1
    s_lshl_b32 s48, s48, 6
    v_and_b32 v102, 0x30, v20
    v_or_b32 v102, s48, v102
    v_xor_b32 v102, v102, v24
    v_and_b32 v102, {0x7ff if OPT['OWN67'] else 0xfff}, v102
    s_mul_i32 s51, s2, {R*128}
    v_add_u32 v184, s51, v102
    v_lshlrev_b32 v110, 4, v20
    s_and_b32 s50, s3, {1 if OPT['OWN67'] else 3}
    s_lshl_b32 s50, s50, 10
    v_lshrrev_b32 v186, 2, v{OF}
    ; constants
    s_mov_b32 s29, {2*BLK}
    s_mov_b32 s30, {BLK}
    s_mov_b32 s31, 128
    s_mov_b32 s32, {N}
    s_mov_b32 s34, 1.0
    s_mov_b32 s35, 1.0
    s_mov_b32 s39, 0
    s_mul_i32 s40, s3, {RINGW}
    s_add_u32 s40, s40, {L_RING}
    s_add_u32 s41, s40, {RINGW}
    s_lshl_b32 s48, s3, 2
    s_lshr_b32 s44, 0x72106453, s48
    s_and_b32 s44, s44, 7
    s_waitcnt lgkmcnt(0)
    s_barrier
    v_mov_b32 v{WC+1}, 0
    v_mov_b32 v{WC+3}, 0
    v_mov_b32 v{EP+1}, 0
    v_mov_b32 v31, 4
    v_bfe_u32 v{CK}, v20, 4, 1
    v_lshlrev_b32 v{CK}, 6, v{CK}
    v_xor_b32 v{CK}, v{CK}, v23
    ; column c = l&31, h = l>>5; r = (c3 c2 c4); i = c&3
    v_bfe_u32 v102, v20, 2, 2
    v_bfe_u32 v103, v20, 4, 1
    v_lshl_or_b32 v102, v102, 1, v103
    v_and_b32 v103, 3, v20
    v_lshl_or_b32 v{LE}, v102, 2, v103
    v_lshlrev_b32 v{LE}, 2, v{LE}
    v_lshrrev_b32 v{LD}, 3, v20
    v_lshlrev_b32 v{LD}, 4, v{LD}
    s_cmp_ge_u32 s44, 3
    s_cselect_b32 s49, 0x7c, 0x3c
    s_cmp_eq_u32 s44, 0
    s_cselect_b32 s49, 0x1c, s49
    s_mul_i32 s48, s44, {GS}
    v_and_b32 v189, s49, v{LD}
    v_and_b32 v190, s49, v{LE}
    v_add_u32 v189, s48, v189
    v_add_u32 v190, s48, v190
    v_add_u32 v{LE}, s48, v{LE}
    v_add_u32 v{LD}, s48, v{LD}
    v_and_b32 v122, 32, v20
    v_lshlrev_b32 v122, 1, v122
    v_add_u32 v122, {L_OWN}, v122
    s_add_u32 s49, s49, 4
    s_ff1_i32_b32 s54, s49
    s_sub_u32 s54, s54, 2
    s_lshr_b32 s37, 1024, s54
    v_lshrrev_b32 v188, s54, v20
    v_bfe_u32 v191, v20, 0, s54
    v_lshl_add_u32 v191, v191, 2, s48
    s_lshl_b32 s55, s49, 2
    v_mad_u32_u24 v{OF}, v188, s55, v191
    v_add_u32 v{OF+1}, s49, v{OF}
    v_add_u32 v{OF+2}, s49, v{OF+1}
    v_add_u32 v{OF+3}, s49, v{OF+2}
    v_lshlrev_b32 v188, 4, v188
    v_mul_u32_u24 v{XL}, {BLK}, v103
    v_lshl_add_u32 v{XL}, v102, 7, v{XL}
    v_bfe_u32 v103, v102, 1, 1
    v_lshrrev_b32 v102, 5, v20
    v_xor_b32 v103, v103, v102
    v_lshl_add_u32 v{XL}, v103, 6, v{XL}
    s_mul_i32 s48, s2, {R}
    s_sub_u32 s49, {N}, s48
    s_min_u32 s49, s49, {R}
    v_cmp_gt_u32 s[52:53], s49, v21
    v_add_u32 v109, s48, v21
    s_or_b32 s38, s45, s47
    s_cbranch_scc1 K2_SLOWLOAD
    """)
    for i in range(12, 16): o(f"s_mov_b64 {pm(i)}, 0")
    def ext(i):
        q, j = (i//3, i % 3) if i < 12 else (i-12, 3)
        o(f"v_lshlrev_b32_sdwa v{dl4(i)}, 2, v{meta(q)} dst_sel:DWORD dst_unused:UNUSED_PAD src0_sel:DWORD src1_sel:BYTE_{j}")
    def atom(i): o(f"ds_add_rtn_u32 v{RK+i}, v{dl4(i)}, v31 offset:{L_CNT-4}")
    def cnt(i):
        o(f"s_mov_b64 exec, {pm(i)}"); atom(i)
    def put(sl):
        for i in sl: o(f"s_mov_b64 exec, {pm(i)}\nds_write_b32 v{RK+i}, v{pay(i)}")
        o("s_mov_b64 exec, -1")
    def wload():
        o("s_lshl_b32 s48, s3, 10")
        for i in (2, 0, 1, 3):
            o(f"s_add_u32 m0, s48, {L_WB+8192*i}\ns_movk_i32 s49, {8192*i}")
            o("buffer_load_dwordx4 v24, s[16:19], s49 offen lds")
    def ownload():
        o(f"v_cmp_gt_u32 vcc, {32 if OPT['OWNO'] else 288}, v21")
        for i in range(7):
            o(f"s_add_u32 m0, s50, {L_OWN+4096*i}\ns_add_u32 s49, s28, {4096*i}")
            if i == 6: o("s_or_b64 exec, vcc, 1")
            o(f"buffer_load_dwordx4 v184, s[4:7], s49 offen {OPT['OWNSC']} lds")
        o("s_mov_b64 exec, -1")
    def own67():
        o(f"v_cmp_gt_u32 vcc, {384+32}, v21")
        for i in range(13):
            o(f"s_add_u32 m0, s50, {L_OWN+2048*i}\ns_add_u32 s49, s28, {2048*i}")
            if i == 12: o("s_or_b64 exec, vcc, 1")
            o(f"buffer_load_dwordx4 v184, s[4:7], s49 offen {OPT['OWNSC']} lds")
        o("s_mov_b64 exec, -1")
    def wyoung():
        o("s_and_b32 s48, s3, 3\ns_lshl_b32 s48, s48, 10\nv_and_b32 v107, 0xfff, v24")
        for i in (4, 5, 0, 1, 2, 3, 6, 7):
            o(f"s_add_u32 m0, s48, {L_WB+4096*i}\ns_movk_i32 s49, {4096*i}")
            o("buffer_load_dwordx4 v107, s[16:19], s49 offen lds")
    def count(late):
        for half in ((0, 1), (2, 3)):
            if half == (2, 3) and not OPT["OWN67"] and not OPT["EARLY"]: wload(); late += 4
            for q in half:
                o(f"s_waitcnt vmcnt({3-q+late})")
                if q == 0: o("@SA 1")
                for j in range(3): ext(3*q+j)
                for j in range(3):
                    o(f"v_cmpx_ne_u32 {pm(3*q+j)}, 0, v{dl4(3*q+j)}"); atom(3*q+j)
                o("s_mov_b64 exec, -1")
            if half == (2, 3):
                o(f"""
                v_or3_b32 v102, v{meta(0)}, v{meta(1)}, v{meta(2)}
                v_or_b32 v102, v102, v{meta(3)}
                v_cmp_lt_u32 vcc, 0xffffff, v102
                """)
            if OPT["SPLIT"] or half == (2, 3):
                o("s_waitcnt lgkmcnt(0)")
                put(range(3*half[0], 3*half[0]+6) if OPT["SPLIT"] else range(12))
    if OPT["OWN67"]:
        o("s_cmp_lt_u32 s3, 6\ns_cbranch_scc1 K2_CNT0")
        own67()
        count(15)
        o("s_branch K2_CNT1\nK2_CNT0:")
    if OPT["EARLY"]:
        o("s_cmp_lt_u32 s3, 4\ns_cbranch_scc1 K2_CNT0")
        wyoung(); ownload()
        count(17)
        o("s_branch K2_CNT1\nK2_CNT0:")
    count(2)
    o("K2_CNT1:")
    o(f"""
    s_cbranch_vccnz K2_X3
K2_COUNTED:
@SA 11
    s_cmp_ge_u32 s3, 4
    s_cbranch_scc1 K2_YOUNG
    """)
    if OPT["OWNO"]: ownload()
    o(f"""
    s_waitcnt lgkmcnt(0)
    s_barrier
@SA 2
    ds_read_b32 v111, v30 offset:{L_CNT}
    v_mov_b32 v107, {L_LG+36}
    v_mov_b32 v108, 1
    s_waitcnt lgkmcnt(0)
    v_sub_u32 v111, v111, v187
    v_cmp_lt_u32 vcc, s36, v111
    v_min_u32 v111, s36, v111
    v_sub_u32 v112, 252, v111
    s_mov_b64 exec, s[52:53]
    ds_add_rtn_u32 v113, v112, v108 offset:{L_HIST}
    s_and_b64 exec, exec, vcc
    ds_write_b32 v107, v107
    s_mov_b64 exec, -1
    s_waitcnt lgkmcnt(0)
    s_barrier
    ds_read_b32 v114, v28 offset:{L_HIST}
    s_waitcnt lgkmcnt(0)
    v_mov_b32 v115, v114
    """)
    scan(o, 114)
    o(f"""
    v_sub_u32 v114, v114, v115
    ds_bpermute_b32 v114, v112, v114
    v_mov_b32 v118, 128
    s_movk_i32 s48, {GS}
    s_waitcnt lgkmcnt(0)
    v_add_u32 v114, v114, v113
    v_add_u32 v115, 56, v114
    v_lshrrev_b32 v116, 5, v115
    v_and_b32 v117, 31, v115
    v_add_u32 v115, 8, v114
    v_cmp_gt_u32 vcc, 40, v114
    v_cmp_gt_u32 s[54:55], 8, v114
    v_lshrrev_b32 v119, 4, v115
    v_and_b32 v120, 15, v115
    v_cndmask_b32 v116, v116, v119, vcc
    v_cndmask_b32 v117, v117, v120, vcc
    v_cndmask_b32 v118, v118, 64, vcc
    v_cndmask_b32 v117, v117, v114, s[54:55]
    v_cndmask_b32 v118, v118, 32, s[54:55]
    v_lshlrev_b32 v117, 2, v117
    v_mad_u32_u24 v117, v116, s48, v117
    v_mul_u32_u24 v118, v111, v118
    v_add_u32 v118, 511, v118
    v_lshrrev_b32 v118, 9, v118
    v_lshlrev_b32 v116, 2, v116
    s_mov_b64 exec, s[52:53]
    ds_write_b32 v117, v109
    ds_max_u32 v116, v118 offset:{L_LG}
    s_mov_b64 exec, -1
    s_waitcnt vmcnt({7 if OPT['OWNO'] else 0})
    s_branch K2_B4
K2_YOUNG:
    s_waitcnt lgkmcnt(0)
    s_barrier
@SA 2
    """)
    if not OPT["OWNO"] and not OPT["OWN67"] and not OPT["EARLY"]: ownload()
    o("s_barrier")
    if not OPT["OWN67"]: o(f"s_waitcnt vmcnt({0 if OPT['OWNO'] else 7})")
    def outtlb():
        o(f"""
        v_lshlrev_b32 v107, 12, v20
        v_min_u32 v107, {R*128-4}, v107
        s_mov_b32 m0, {L_CNT}
        s_mov_b64 exec, 0xff
        buffer_load_dword v107, s[20:23], s51 offen lds
        s_mov_b64 exec, -1
        """)
    if OPT["OUTTLB"] and not OPT["OWN67"]: outtlb()
    o(f"""
K2_B4:
    s_cmp_lg_u32 s39, 0
    s_cbranch_scc1 K2_X3PUT
K2_B4B:
    s_mul_i32 s48, s2, {R}
    s_movk_i32 s49, {NMS}
    s_waitcnt lgkmcnt(0)
    s_barrier
@ST 3
    ds_read_b32 v120, v191
    ds_read_b32 v123, v28 offset:{L_LG}
    ds_read_b32 v121, v190
    ds_read_b128 {vr(D0,4)}, v189
    s_waitcnt lgkmcnt(2)
@SB 1
    v_subrev_u32 v120, s48, v120
    v_min_u32 v120, {R}, v120
    v_mad_u32_u24 v120, v120, s49, v188
    v_add_u32 v119, s37, v120
    v_add_u32 v118, s37, v119
    v_cmp_lt_u32 vcc, {LCAP}, v123
    ds_read_b128 {vr(T2,4)}, v120 offset:{L_NM}
    ds_read_b128 {vr(T2+4,4)}, v119 offset:{L_NM}
    ds_read_b128 {vr(T2+8,4)}, v118 offset:{L_NM}
    v_readlane_b32 s43, v123, s44
    s_waitcnt lgkmcnt(4)
    v_subrev_u32 v121, s48, v121
    v_min_u32 v121, {R-1}, v121
    v_lshlrev_b32 v124, 3, v121
    v_and_b32 v124, 0x70, v124
    v_xor_b32 v124, v124, v122
    v_lshl_add_u32 v124, v121, 7, v124
    v_xor_b32 v125, 16, v124
    v_xor_b32 v126, 32, v124
    v_xor_b32 v127, 48, v124
    s_mov_b32 s47, 0
    s_and_b32 s33, vcc_lo, 0x3ff
    s_cbranch_scc1 K2_FLAGS
K2_FLAGSDONE:
    s_lshl_b32 s48, s43, 7
    v_add_u32 v121, s48, v{LD}
    v_mov_b32 v{VT}, v110
    s_mov_b32 m0, s40
    {'s_mov_b32 s76, s43' if DIAG else ''}
    """)
    def build_list():
        for k in range(3):
            for e in range(4):
                o(f"ds_write_b32 v{OF+e}, v{T2+4*k+e} offset:{128+1024*k}")
        o(f"""
        ds_write_b128 v121, {vr(D0,4)} offset:128
        ds_read_b128 {vr(D0,4)}, v{LD} offset:128
        ds_read_b128 {vr(T,4)}, v{LD} offset:256
        ds_read_b128 {vr(T+4,4)}, v{LD} offset:384
        ds_read_b128 {vr(T+8,4)}, v{LD} offset:512
        ds_read_b32 v{EP}, v{LE} offset:128
        """)
    def frags(reg, off):
        for f in range(8): o(f"ds_read_b128 {vr(reg+4*f,4)}, v{VT} offset:{L_WB+off+1024*f}")
    def rowdma(n):
        if n: o(f"s_add_u32 m0, s40, {n*SLOT}")
        for i in range(4): o(f"v_mad_u32_u16 v{D0+i}, v{T+4*(n-1)+i if n else D0+i}, s31, v{CK}")
        for i in range(4): o(dma(i, "PRESC" if n < OPT["PREN"] else "ROWSC"))
    def own_x():
        for s_ in range(4): o(f"ds_read_b128 {vr(X+4*s_,4)}, v{124+s_}")
    def zero():
        for i in range(64): o(f"v_mov_b32 v{DEN+i}, 0")
    def aprime():
        for s_ in range(4):
            for t in range(2):
                o(mf(AP+16*t, WA+16*t+4*s_, X+4*s_, None if s_ == 0 else AP+16*t))
    o("s_cmp_ge_u32 s3, 4\ns_cbranch_scc1 K2_YPRE")
    o("s_waitcnt lgkmcnt(0)\n@SB 11")
    build_list()
    o("s_waitcnt lgkmcnt(4)\n@SB 2\ns_barrier\n@ST 6")
    if OPT["OWN67"]:
        rowdma(0)
        o("s_waitcnt lgkmcnt(0)")
        rowdma(1)
        if OPT["R3E"]: rowdma(2)
        zero()
        o("s_barrier")
        own_x(); frags(WA, 16384)
        o("s_waitcnt lgkmcnt(8)\ns_barrier")
        frags(WB, 0)
        o("s_waitcnt lgkmcnt(8)")
        aprime()
        frags(WV, 8192)
        if not OPT["R3E"]: rowdma(2)
    else:
        rowdma(0)
        frags(WA, 16384)
        o("s_waitcnt lgkmcnt(8)")
        rowdma(1)
        frags(WB, 0)
        if OPT["R3E"]: rowdma(2)
        frags(WV, 8192)
        zero()
        if OPT["OWNO"]: o(f"s_waitcnt vmcnt({12 if OPT['R3E'] else 8})")
        o("s_barrier")
        own_x()
        o("s_waitcnt lgkmcnt(0)")
        aprime()
        o("s_barrier")
        if not OPT["R3E"]: rowdma(2)
    o("s_branch K2_PRE\nK2_YPRE:")
    o("s_waitcnt lgkmcnt(0)\n@SB 11\n@SB 2\ns_barrier\n@ST 6")
    if OPT["OWN67"]:
        wyoung()
        if OPT["OUTTLB"]: outtlb()
        o("s_mov_b32 m0, s40")
    build_list()
    zero()
    o(f"s_waitcnt vmcnt({OPT['OUTTLB']})\ns_barrier")
    own_x()
    o("s_waitcnt lgkmcnt(0)\ns_barrier")
    if OPT["YD"] == 0: rowdma(0); rowdma(1); rowdma(2)
    frags(WA, 16384)
    frags(WB, 0)
    o("s_waitcnt lgkmcnt(8)")
    aprime()
    frags(WV, 8192)
    if OPT["YD"]: rowdma(0); rowdma(1); rowdma(2)
    o("K2_PRE:")
    for i in range(4): o(f"v_mad_u32_u16 v{D0+i}, v{T+8+i}, s31, v{CK}")
    o(f"""
    v_pk_sub_u16 v{EP}, v{EP}, s32 clamp
    v_add_u32 v{XA}, s40, v{XL}
    v_add_u32 v{LD}, {5*128}, v{LD}
    v_add_u32 v{LE}, {2*128}, v{LE}
    s_cmp_lg_u32 s46, 0
    s_cbranch_scc1 K2_LOADACC
K2_ACCDONE:
    s_mov_b32 m0, s40
    s_add_u32 s42, s40, {SLOT}
    s_mov_b32 s54, {f32(NLOG2E)}
    s_mov_b32 s55, {f32(NLOG2E)}
    """)
    for i in range(16): o(f"v_pk_mul_f32 {vr(AP+2*i,2)}, {vr(AP+2*i,2)}, s[54:55]")
    o(f"""
    s_waitcnt vmcnt(8)
@ST 7
    """)
    for s_ in range(4): o(xread(s_))
    ml = mf_list(0)
    o(ml[0])
    o("s_waitcnt lgkmcnt(0)")
    for i in range(4): o(ml[1+2*i]); o(dma(i))
    for i in range(4): o(ml[2+2*i])
    o(f"""
    v_add_u32 v{XA}, {SLOT}, v{XA}
@ST 8
    s_sub_u32 s43, s43, 1
    s_cbranch_scc1 K2_LOOPEND
    .p2align 4
K2_LOOP:
    """)
    sl = [[] for _ in range(9)]
    sl[0] = [f"ds_read_b32 v{VT}, v{LE}"]
    sl[1] = ["s_waitcnt vmcnt(8)"]
    sl[2] = [xread(0)]
    sl[3] = [f"ds_read_b128 {vr(D0,4)}, v{LD}"]
    sl[4] = [xread(1)]
    sl[5] = ["s_mov_b32 m0, s42"]
    sl[6] = [xread(2)]
    sl[7] = ["s_waitcnt lgkmcnt(2)"]
    sl[8] = [xread(3)]
    phase(o, 0, mf_list(1), sl,
          [f"v_add_u32 v{LE}, 128, v{LE}", f"v_add_u32 v{LD}, 128, v{LD}"],
          [f"v_pk_sub_u16 v{EP}, v{VT}, s32 clamp"] + mads(),
          pk1=(), pk2=ADV + ["s_waitcnt lgkmcnt(0)"])
    sl = [[] for _ in range(9)]
    for i in range(4): sl[i] = [dma(i)]
    if OPT["PRIO"]:
        sl[5] = ["s_cmp_lg_u32 s43, s50"]
        sl[6] = ["s_cbranch_scc1 K2_NOP", "s_setprio 0", "K2_NOP:"]
    sl[8] = ["s_sub_u32 s43, s43, 1"]
    phase(o, 1, mf_list(0), sl, [f"v_add_u32 v{XA}, s42, v{XL}"], [])
    o(f"""
    s_cbranch_scc0 K2_LOOP
K2_LOOPEND:
@ST 9
    v_mbcnt_lo_u32_b32 v{D0}, -1, 0
    v_mbcnt_hi_u32_b32 v{D0}, -1, v{D0}
    v_lshlrev_b32 v{D0+1}, 4, v{D0}
    v_subrev_u32 v{LE}, 128, v{LE}
    ds_read_b32 v{VT}, v{LE}
    """)
    if OPT["OUTT"]:
        o(f"""
        v_subrev_u32 v{LD}, 512, v{LD}
        ds_read_b128 {vr(AP,4)}, v{LD}
        v_add_u32 v{AP+4}, s40, v{D0+1}
        v_add_u32 v{AP+5}, s40, v{XL}
        s_mov_b64 s[54:55], -1
        """)
    for f in range(8):
        o(f"ds_read_b128 {vr(WB+4*f,4)}, v{D0+1} offset:{L_WU+1024*f}")
    o(f"""
    s_mov_b32 s48, 0
    s_cmp_ge_u32 s44, 3
    s_cbranch_scc1 K2_NOCOMB
    s_mov_b32 s48, 8
    s_mov_b32 s55, 0
    """)
    for i in range(64): o(f"v_add_f32_dpp v{DEN+i}, v{DEN+i}, v{DEN+i} row_ror:8 row_mask:0xf bank_mask:0xf")
    o(f"""
    s_cmp_lg_u32 s44, 0
    s_cbranch_scc1 K2_NOCOMB
    s_mov_b32 s48, 12
    s_mov_b32 s54, 0xffff
    """)
    for i in range(64): o(f"v_add_f32_dpp v{DEN+i}, v{DEN+i}, v{DEN+i} row_ror:4 row_mask:0xf bank_mask:0xf")
    o(f"""
K2_NOCOMB:
    v_and_b32 v{D0+2}, s48, v{D0}
    v_cmp_eq_u32 vcc, 0, v{D0+2}
    v_mov_b32 v{D0+3}, 0xffff
    v_lshrrev_b32 v{D0}, 5, v{D0}
    s_waitcnt lgkmcnt(0)
    v_cndmask_b32 v{D0+2}, v{D0+3}, v{VT}, vcc
    s_cmp_lg_u32 s33, 0
    s_cbranch_scc1 K2_STOREACC
    s_mov_b32 s52, {f32(1e-6)}
    s_mov_b32 s53, {f32(1e-6)}
    v_lshlrev_b32 v{D0}, 6, v{D0}
    v_lshl_add_u32 v{D0}, v{D0+2}, 7, v{D0}
    """)
    for i in range(16): o(f"v_pk_add_f32 {vr(DEN+2*i,2)}, {vr(DEN+2*i,2)}, s[52:53]")
    k = 0
    for s in range(4):
        for t in range(2):
            o(mf(G[t], WB+16*t+4*s, X+4*s, None if s == 0 else G[t]))
            n = 3 if (s, t) != (3, 1) else 11
            for i in range(k, k+n): o(f"v_rcp_f32 v{DEN+i}, v{DEN+i}")
            k += n
    o("s_mov_b32 s49, 0xffff0000\ns_nop 0")
    for t in range(2):
        for i in range(8):
            o(f"v_pk_fma_f32 {vr(G[t]+2*i,2)}, {vr(NUM+16*t+2*i,2)}, {vr(DEN+16*t+2*i,2)}, {vr(G[t]+2*i,2)}")
    for t in range(2):
        for i in range(8):
            o(f"v_lshlrev_b32 v{V[t]+2*i}, 16, v{X+8*t+i}")
            o(f"v_and_b32 v{V[t]+2*i+1}, s49, v{X+8*t+i}")
            o(f"v_max_f32 v{G[t]+2*i}, 0, v{G[t]+2*i}")
            o(f"v_max_f32 v{G[t]+2*i+1}, 0, v{G[t]+2*i+1}")
            o(f"v_pk_add_f32 {vr(G[t]+2*i,2)}, {vr(G[t]+2*i,2)}, {vr(V[t]+2*i,2)}")
            o(f"v_cvt_pk_bf16_f32 v{DEN+8*t+i}, v{G[t]+2*i}, v{G[t]+2*i+1}")
            if i % 4 == 3:
                j = 2*t + i//4
                if OPT["OUTT"]:
                    if j == 0: o("s_waitcnt vmcnt(0)")
                    o(f"ds_write_b128 v{AP+5}, {vr(DEN+4*j,4)}" + (f" offset:{16*j}" if j else ""))
                else: o(f"buffer_store_dwordx4 {vr(DEN+4*j,4)}, v{D0}, s[20:23], 0 offen" + (f" offset:{16*j}" if j else "") + (" " + OPT["OUTSC"] if OPT["OUTSC"] else ""))
    if OPT["OUTT"]:
        o("s_mov_b64 exec, s[54:55]")
        for i in range(4): o(f"ds_read_b128 {vr(AP+8+4*i,4)}, v{AP+4}" + (f" offset:{BLK*i}" if i else ""))
        for i in range(4): o(f"v_mad_u32_u16 v{AP+i}, v{AP+i}, s31, v{CK}")
        for i in range(4):
            o(f"s_waitcnt lgkmcnt({3-i})")
            o(f"buffer_store_dwordx4 {vr(AP+8+4*i,4)}, v{AP+i}, s[20:23], 0 offen" + (" " + OPT["OUTSC"] if OPT["OUTSC"] else ""))
    o("@ST 10\n@RT 5")
    if DIAG: o("s_getreg_b32 s77, hwreg(HW_REG_HW_ID)\ns_getreg_b32 s78, hwreg(HW_REG_XCC_ID)")
    dump(o, 12, 0x4000000, ("s76", "s77", "s78", "s44"))
    if DIAG and OPT["HD"]:
        o(f"""
        s_cmp_lg_u32 s2, 100
        s_cbranch_scc1 K2_END
        s_cmp_lg_u32 s3, {OPT["HD"]}
        s_cbranch_scc1 K2_END
        s_load_dwordx2 s[80:81], s[0:1], 80
        s_add_u32 s100, s100, {0x4800000 + 100*16*256}
        s_addc_u32 s101, s101, 0
        s_load_dwordx8 s[84:91], s[100:101], 0
        s_load_dword s92, s[100:101], 32
        v_mbcnt_lo_u32_b32 v2, -1, 0
        v_lshlrev_b32 v2, 2, v2
        v_subrev_u32 v1, s56, v1
        s_waitcnt lgkmcnt(0)
        s_sub_u32 s92, s92, s84
        s_sub_u32 s86, s86, s84
        s_sub_u32 s89, s89, s88
        s_sub_u32 s93, s96, s88
        s_sub_u32 s94, s74, s88
        v_writelane_b32 v1, s93, 4
        v_writelane_b32 v1, s94, 5
        v_writelane_b32 v1, s86, 12
        v_writelane_b32 v1, s92, 13
        v_writelane_b32 v1, s89, 14
        v_writelane_b32 v1, s76, 15
        s_mov_b64 exec, 0xffff
        global_store_dword v2, v1, s[80:81]
        """)
    o(f"""
K2_END:
    s_endpgm
K2_FLAGS:
    s_and_b32 s48, s33, 0xff
    s_cbranch_scc0 K2_PEND
    s_movk_i32 s36, {LCAP*4}
    s_mov_b32 s47, 1
    s_branch K2_AGAIN
K2_PEND:
    s_and_b32 s47, s33, 0x200
    s_cbranch_scc0 K2_FLAGSDONE
    s_cmp_eq_u32 s38, 0
    s_cbranch_scc1 K2_AGAIN
    """)
    for i in range(NS):
        o(f"v_cmp_le_u32 vcc, v{INF+i}, v{RK+i}\ns_and_b64 {pm(i)}, {pm(i)}, vcc")
    def more():
        o(f"""
        v_mov_b32 v107, {L_LG+32}
        s_and_b64 exec, exec, vcc
        ds_write_b32 v107, v107
        s_mov_b64 exec, -1
        """)
    def clamp(sl):
        o(f"s_add_u32 s48, s36, {L_NM-NMS}")
        for i in sl: o(f"v_mad_u32_u24 v{INF+i}, v{dl4(i)}, {NMS//4}, s48")
        o("s_waitcnt lgkmcnt(0)")
        for i in sl: o(f"v_min_u32 v{RK+i}, v{INF+i}, v{RK+i}")
    o(f"""
    s_branch K2_FLAGSDONE
K2_X3:
    s_mov_b32 s39, 1
    v_mul_u32_u24 v102, {OVS}, v22
    v_mov_b32 v104, 0
    """)
    for q in range(4):
        ext(12+q)
        o(f"""
        s_cmp_lg_u32 s47, 0
        s_cbranch_scc1 K2_X3K{q}
        v_cmp_ne_u32 {pm(12+q)}, 0, v{dl4(12+q)}
K2_X3K{q}:
        s_mov_b32 s48, {q*64*8192}
        s_mov_b64 exec, {pm(12+q)}
        buffer_load_dword v{pay(12+q)}, v186, s[12:15], s48 offen
        """)
        atom(12+q)
        o(f"""
        s_mov_b64 exec, -1
        v_cmp_ne_u32 vcc, 0, v{dl4(12+q)}
        s_mov_b32 s48, 0x80808080
        s_and_b32 exec_lo, vcc_lo, s48
        s_and_b32 exec_hi, vcc_hi, s48
        s_cbranch_execz K2_X3N{q}
        s_mov_b32 s48, {OVL+q*64*OVS}
        buffer_load_dword v103, v102, s[12:15], s48 offen
        s_waitcnt vmcnt(0)
        v_or_b32 v104, v104, v103
K2_X3N{q}:
        s_mov_b64 exec, -1
        """)
    o("v_cmp_ne_u32 vcc, 0, v104")
    more()
    clamp(range(12, 16))
    o(f"""
    s_branch K2_COUNTED
K2_X3PUT:
    {'s_waitcnt vmcnt(0)' if OPT['OWN67'] or OPT['EARLY'] else ''}
    """)
    put(range(12, 16))
    o(f"""
    s_branch K2_B4B
K2_SLOWLOAD:
    """)
    if OPT["OWN67"]:
        o("s_cmp_lt_u32 s3, 6\ns_cbranch_scc1 K2_SL0")
        own67()
        o("K2_SL0:")
    elif OPT["EARLY"]:
        o("s_cmp_lt_u32 s3, 4\ns_cbranch_scc1 K2_SL0")
        wyoung(); ownload()
        o("K2_SL0:")
    else: wload()
    o(f"""
    s_waitcnt vmcnt(0)
    s_cmp_lg_u32 s45, 0
    s_cbranch_scc1 K2_CHUNK
    """)
    for i in range(12): ext(i)
    for i in range(12): cnt(i)
    o("s_mov_b64 exec, -1")
    clamp(range(12))
    put(range(12))
    o(f"""
    s_branch K2_X3
K2_CHUNK:
    s_sub_u32 s48, s45, 16
    s_lshl_b32 s49, s48, 3
    v_mul_u32_u24 v102, {OVS}, v22
    v_add_u32 v102, {OVL}, v102
    v_lshrrev_b32 v105, 3, v23
    v_add_u32 v105, s48, v105
    v_add_u32 v106, 1, v105
    v_or_b32 v107, 28, v28
    v_mov_b32 v104, 0
    """)
    for q in range(4):
        o(f"""
        ds_bpermute_b32 v108, v107, v{meta(q)}
        v_mov_b32 v{QC+q}, 0
        v_add3_u32 v103, v102, v23, s49
        s_waitcnt lgkmcnt(0)
        v_cmp_lt_u32 vcc, 0xffffff, v108
        s_mov_b64 exec, vcc
        buffer_load_dword v{QC+q}, v102, s[12:15], 0 offen
        buffer_load_dwordx4 {vr(INF+4*q,4)}, v103, s[12:15], 0 offen offset:16
        s_waitcnt vmcnt(0)
        s_mov_b64 exec, -1
        v_max_u32 v104, v104, v{QC+q}
        v_add_u32 v102, {64*OVS}, v102
        """)
    o(f"""
    s_cmp_lg_u32 s47, 0
    s_cbranch_scc1 K2_CKEEP
    """)
    for q in range(4):
        o(f"s_mov_b64 {pm(3*q+2)}, 0\ns_mov_b64 {pm(12+q)}, 0")
        for k in range(2):
            o(f"""
            v_cmp_lt_u32 vcc, v{105+k}, v{QC+q}
            v_cmp_eq_u32_sdwa {pm(3*q+k)}, s2, v{INF+4*q+2*k+1} src0_sel:DWORD src1_sel:WORD_1
            s_and_b64 {pm(3*q+k)}, {pm(3*q+k)}, vcc
            """)
    o("K2_CKEEP:")
    sl = [3*q+k for q in range(4) for k in range(2)]
    for q in range(4):
        for k in range(2):
            o(f"v_mov_b32 v{pay(3*q+k)}, v{INF+4*q+2*k}\nv_and_b32 v{dl4(3*q+k)}, 0xffff, v{INF+4*q+2*k+1}")
    o(f"v_cmp_lt_u32 vcc, s45, v104")
    more()
    for i in sl: cnt(i)
    o("s_mov_b64 exec, -1")
    clamp(sl)
    put(sl)
    o(f"""
    s_branch K2_COUNTED
K2_LOADACC:
    s_lshl_b32 s48, s43, 7
    s_sub_u32 s48, s48, 128
    v_add_u32 v{G[0]}, s48, v{LE}
    ds_read_b32 v{G[0]}, v{G[0]}
    v_mbcnt_lo_u32_b32 v{G[0]+1}, -1, 0
    v_mbcnt_hi_u32_b32 v{G[0]+1}, -1, v{G[0]+1}
    s_cmp_ge_u32 s44, 3
    s_cselect_b32 s48, 0, 8
    s_cmp_eq_u32 s44, 0
    s_cselect_b32 s48, 12, s48
    v_and_b32 v{G[0]+2}, s48, v{G[0]+1}
    v_cmp_eq_u32 vcc, 0, v{G[0]+2}
    v_mov_b32 v{G[0]+3}, 0xffff
    v_lshrrev_b32 v{G[0]+1}, 5, v{G[0]+1}
    v_lshlrev_b32 v{G[0]+1}, 8, v{G[0]+1}
    s_waitcnt lgkmcnt(0)
    v_cndmask_b32 v{G[0]}, v{G[0]+3}, v{G[0]}, vcc
    v_lshl_add_u32 v{G[0]}, v{G[0]}, 9, v{G[0]+1}
    """)
    for j in range(16):
        o(f"buffer_load_dwordx4 {vr(DEN+4*j,4)}, v{G[0]}, s[24:27], 0 offen offset:{16*j}")
    o(f"""
    s_waitcnt vmcnt(0)
    s_branch K2_ACCDONE
K2_STOREACC:
    v_lshlrev_b32 v{D0}, 8, v{D0}
    v_lshl_add_u32 v{D0}, v{D0+2}, 9, v{D0}
    """)
    for j in range(16):
        o(f"buffer_store_dwordx4 {vr(DEN+4*j,4)}, v{D0}, s[24:27], 0 offen offset:{16*j}")
    o(f"""
    s_mov_b32 s46, 1
    s_cmp_lg_u32 s47, 0
    s_cselect_b32 s48, 0, 16
    s_add_u32 s45, s45, s48
K2_AGAIN:
    s_waitcnt vmcnt(0) lgkmcnt(0)
    s_barrier
    """)
    celladdr()
    cellissue(first)
    o("s_branch K2_RESTART")
    return o.text()

def desc(name, nv, ns):
    return f"""
.p2align 6
.amdhsa_kernel {name}
  .amdhsa_next_free_vgpr {nv}
  .amdhsa_next_free_sgpr {ns}
  .amdhsa_accum_offset {(nv+3)//4*4}
  .amdhsa_group_segment_fixed_size 0
  .amdhsa_kernarg_size 96
  .amdhsa_user_sgpr_count 2
  .amdhsa_user_sgpr_kernarg_segment_ptr 1
  .amdhsa_system_sgpr_workgroup_id_x 1
  .amdhsa_float_denorm_mode_32 3
.end_amdhsa_kernel
"""

def build():
    hdr = open(f"cdna_kernels/{NAME}.s.ref").read().split("; Override launch geometry")[0]
    s = hdr
    s += f"; @launch kernel=part_kernel grid=({P+5},1,1) block=({896 if OPT['K1TLB'] else 832},1,1) lds={LDS1}\n"
    s += f"; @launch kernel=main_kernel grid=({NB},1,1) block=(512,1,1) lds={LDS2}\n"
    s += '.amdgcn_target "amdgcn-amd-amdhsa--gfx950"\n.text\n'
    for nm, body in (("part_kernel", k1()), ("main_kernel", k2())):
        s += f".globl {nm}\n.p2align 8\n.type {nm},@function\n" + body
    s += '.section .rodata,"a"\n' + desc("part_kernel", 52, 102 if DIAG else 24) + desc("main_kernel", 256, 102 if DIAG else 96)
    return s

if __name__ == "__main__":
    if "--diag" in sys.argv:
        sys.argv.remove("--diag"); DIAG = True
    out = sys.argv[1] if len(sys.argv) > 1 else f"cdna_kernels/{NAME}.s"
    open(out, "w").write(build())
```

```python
import sys, struct
NAME = "gather_scatter__edge_featured_mpnn_gatedgcn__graph"
N, E, R, P, CH = 50000, 800000, 196, 250, 3200
NB = 256
WS_WF, WS_OVF, WS_ACC = 0x800000, 0x840000, 0x1100000
OVL = 0x200000
OVS = 25728
K1_HIST = 40960
LDS1 = K1_HIST + 832*4
LCAP = 24
NMS = 208
GS = (LCAP + 2) * 128
L_LIST = 0
L_WB = 8 * GS
L_WU = L_WB + 24576
L_CNT = L_WB + 32768
L_HIST = L_CNT + 1024
L_LG = L_HIST + 256
L_RING = L_LG + 64
BLK, SLOT = 1040, 4160
RINGW = 3 * SLOT
L_NM = L_RING
L_OWN = (L_RING + 4 * RINGW + 127) // 128 * 128
LDS2 = L_RING + 8 * RINGW
def f32(x): return "0x%08x" % struct.unpack("<I", struct.pack("<f", x))[0]
NLOG2E = -1.4426950408889634

DIAG = False
import os
OPT = dict(XMAP=1, K1PF=0, K1SC="sc1", OUTSC="sc1", K2SC="sc1", EPI=1, OSL=0, YD=1, STSET=0, K1TLB=0, OUTTLB=0, OWNE=0, PRIO=0, PK=0, K1T2=0, OUTT=1, SPLIT=1, OWNO=0, R3E=1, OWN67=0, EARLY=0, K1LSC="nt", CELLSC="nt", OWNSC="nt", ROWSC="", PRESC="", PREN=3, HD=0)
for kv in os.environ.get("GOPT", "").split(","):
    if kv:
        k_, v_ = kv.split("="); OPT[k_] = v_.replace("_", " ") if k_.endswith("SC") else int(v_)
ST_REGS = [56, 58, 60, 62, 96, 74, 64, 66, 68, 70, 72, 98]
def stamp(o, i, real=False):
    if DIAG:
        r = ST_REGS[i]
        o(f"s_mem{'real' if real else ''}time s[{r}:{r+1}]")
def dump(o, n, base, extra=()):
    if DIAG:
        o("s_load_dwordx2 s[100:101], s[0:1], 88\ns_waitcnt lgkmcnt(0)\ns_mov_b64 exec, -1")
        for i in range(n): o(f"v_writelane_b32 v1, s{ST_REGS[i]}, {i}")
        for j, x in enumerate(extra): o(f"v_writelane_b32 v1, {x}, {n+j}")
        o(f"""v_mbcnt_lo_u32_b32 v2, -1, 0
        v_mbcnt_hi_u32_b32 v2, -1, v2
        s_lshl_b32 s99, s2, 4
        s_add_u32 s99, s99, s3
        s_lshl_b32 s99, s99, 8
        s_add_u32 s99, s99, {base}
        v_lshl_add_u32 v2, v2, 2, s99
        global_store_dword v2, v1, s[100:101]""")

class A:
    def __init__(s): s.l = []
    def __call__(s, t):
        for x in t.strip("\n").split("\n"):
            x = x.strip()
            if x.startswith("@SA") or x.startswith("@SB"):
                if OPT["STSET"] == (0 if x[2] == "A" else 1): stamp(s, int(x.split()[1]))
                continue
            if x.startswith("@ST") or x.startswith("@RT"):
                stamp(s, int(x.split()[1]), x.startswith("@RT")); continue
            if x: s.l.append(x if x.endswith(":") else "    " + x)
    def text(s): return "\n".join(s.l) + "\n"

def vr(a, n): return f"v[{a}:{a+n-1}]"

def scan(o, v):
    for sh in (1, 2, 4, 8):
        o(f"s_nop 1\nv_add_u32_dpp v{v}, v{v}, v{v} row_shr:{sh} row_mask:0xf bank_mask:0xf")
    o(f"s_nop 1\nv_add_u32_dpp v{v}, v{v}, v{v} row_bcast:15 row_mask:0xa bank_mask:0xf")
    o(f"s_nop 1\nv_add_u32_dpp v{v}, v{v}, v{v} row_bcast:31 row_mask:0xc bank_mask:0xf")

def k1():
    o = A()
    o(f"""
part_kernel:
    s_cmp_ge_u32 s2, {P}
    s_cbranch_scc1 K1_W
@RT 4
@ST 0
    s_load_dwordx2 s[8:9], s[0:1], 24
    s_load_dwordx4 s[4:7], s[0:1], 8
    s_load_dwordx2 s[10:11], s[0:1], 88
    s_load_dwordx2 s[22:23], s[0:1], 0
    """)
    if OPT["K1TLB"]:
        o("v_readfirstlane_b32 s15, v0\ns_cmp_ge_u32 s15, 832\ns_cbranch_scc1 K1_T")
    o(f"""
    v_cmp_gt_u32 vcc, 800, v0
    s_mul_i32 s12, s2, {CH*4}
    v_lshlrev_b32 v1, 4, v0
    v_add_u32 v2, s12, v1
    v_lshrrev_b32 v3, 1, v2
    v_lshlrev_b32 v4, 2, v0
    v_mov_b32 v40, 0
    v_mov_b32 v41, 0
    v_mov_b32 v42, 0
    v_mov_b32 v43, 0
    v_mov_b32 v6, 1
    s_mov_b64 s[20:21], vcc
    s_mov_b64 exec, vcc
    s_waitcnt lgkmcnt(0)
@ST 1
    global_load_dwordx4 v[8:11], v2, s[8:9] {OPT['K1LSC']}
    global_load_dwordx4 v[12:15], v2, s[6:7] {OPT['K1LSC']}
    global_load_dwordx2 v[16:17], v3, s[4:5] {OPT['K1LSC']}
    """)
    npf = 0
    if OPT["K1PF"]:
        o(f"""
        s_mul_i32 s13, s2, {200*128}
        v_cmp_gt_u32 vcc, {200*OPT["K1PF"]}, v0
        v_lshlrev_b32 v5, {8-OPT["K1PF"]}, v0
        v_add_u32 v5, s13, v5
        v_min_u32 v5, {N*128-4}, v5
        s_or_b32 vcc_lo, vcc_lo, 1
        s_and_b64 exec, exec, vcc
        global_load_dword v44, v5, s[22:23]
        """)
        npf = 1
    o(f"""
    s_mov_b64 exec, -1
    ds_write_b32 v4, v40 offset:{K1_HIST}
    ds_write_b128 v1, v[40:43]
    ds_write_b128 v1, v[40:43] offset:13312
    ds_write_b128 v1, v[40:43] offset:26624
    s_movk_i32 s13, -{R}
    s_mov_b32 s14, 0xffff0000
    s_mov_b64 exec, s[20:21]
    s_waitcnt lgkmcnt(0)
    s_barrier
    s_waitcnt vmcnt({2+npf})
@ST 2
    """)
    for i in range(4):
        o(f"""
        v_mul_u32_u24 v{20+i}, 0x14e5f, v{8+i}
        v_lshrrev_b32 v{20+i}, 24, v{20+i}
        v_lshlrev_b32 v{24+i}, 2, v{20+i}
        ds_add_rtn_u32 v{28+i}, v{24+i}, v6 offset:{K1_HIST}
        """)
    for i in range(4):
        o(f"""
        v_mad_i32_i24 v{8+i}, v{20+i}, s13, v{8+i}
        v_add_u32 v{8+i}, 1, v{8+i}
        """)
    o(f"""
    s_waitcnt vmcnt({npf})
    v_lshl_or_b32 v32, v16, 16, v12
    v_and_or_b32 v33, v16, s14, v13
    v_lshl_or_b32 v34, v17, 16, v14
    v_and_or_b32 v35, v17, s14, v15
    """)
    if OPT["K1T2"]:
        o(f"""
        s_andn2_b64 exec, -1, s[20:21]
        s_cbranch_execz K1_NOT2
        s_load_dwordx2 s[16:17], s[0:1], 72
        s_lshr_b32 s15, s2, 3
        s_mul_i32 s15, s15, 6144
        v_and_b32 v5, 31, v0
        v_mul_u32_u24 v5, 200000, v5
        v_add_u32 v5, s15, v5
        v_mov_b32 v7, {WS_WF}
        """)
        if OPT["K1T2"] & 1: o("global_load_dword v44, v5, s[22:23]")
        if OPT["K1T2"] & 4: o("global_load_dword v45, v7, s[10:11]")
        if OPT["K1T2"] & 2: o("s_waitcnt lgkmcnt(0)\nglobal_load_dword v46, v5, s[16:17]")
        o("K1_NOT2:\ns_mov_b64 exec, s[20:21]")
    o(f"""
    s_waitcnt lgkmcnt(0)
@ST 3
    v_max3_u32 v36, v28, v29, v30
    v_max_u32 v36, v36, v31
    v_cmp_lt_u32 vcc, 23, v36
    s_cbranch_vccnz K1_OVF
    """)
    def put(i):
        o(f"""
        v_and_b32 v36, 7, v{28+i}
        v_lshl_add_u32 v36, v{24+i}, 1, v36
        v_lshrrev_b32 v37, 3, v{28+i}
        v_lshlrev_b32 v36, 4, v36
        v_lshl_add_u32 v38, v37, 2, v36
        v_add_u32 v39, v37, v36
        ds_write_b32 v38, v{32+i}
        ds_write_b8 v39, v{8+i} offset:12
        """)
    for i in range(4): put(i)
    sc = (" " + OPT["K1SC"]) if OPT["K1SC"] else ""
    o(f"""
K1_PUTDONE:
    s_mov_b64 exec, -1
    s_lshl_b32 s12, s2, 15
    v_add_u32 v2, s12, v1
    v_add_u32 v3, 13312, v2
    v_add_u32 v5, 26624, v2
    v_cmp_gt_u32 vcc, {2048-2*832}, v0
    v_mov_b32 v7, {K1_HIST+1024}
    s_waitcnt lgkmcnt(0)
    s_barrier
@ST 6
    ds_read_b128 v[8:11], v1
    ds_read_b128 v[12:15], v1 offset:13312
    ds_read_b128 v[16:19], v1 offset:26624
    ds_read_b32 v20, v7
    s_waitcnt lgkmcnt(3)
    global_store_dwordx4 v2, v[8:11], s[10:11]{sc}
    s_waitcnt lgkmcnt(2)
    global_store_dwordx4 v3, v[12:15], s[10:11]{sc}
    s_and_b64 exec, exec, vcc
    s_waitcnt lgkmcnt(0)
    global_store_dwordx4 v5, v[16:19], s[10:11]{sc}
    s_mov_b64 exec, -1
    s_mul_i32 s12, s2, {OVS}
    s_add_u32 s12, s12, {WS_OVF+OVL}
    v_cmp_eq_u32 vcc, 831, v0
    v_mov_b32 v7, s12
    s_and_b64 exec, exec, vcc
    global_store_dword v7, v20, s[10:11] {OPT["K2SC"]}
    """)
    if DIAG: o("@ST 7\ns_waitcnt vmcnt(0)\n@ST 8\n@RT 5\ns_mov_b64 exec, -1\nv_lshrrev_b32 v1, 6, v0\ns_nop 1\nv_readfirstlane_b32 s3, v1")
    dump(o, 9, 0x4800000)
    o(f"""
    s_endpgm
K1_OVF:
    s_mul_i32 s12, s2, {OVS}
    s_add_u32 s12, s12, {WS_OVF+OVL+16}
    s_lshl_b32 s15, s2, 13
    s_add_u32 s15, s15, {WS_OVF}
    v_mov_b32 v7, {K1_HIST+1024}
    """)
    for i in range(4):
        o(f"""
        s_mov_b64 exec, s[20:21]
        v_cmp_lt_u32 vcc, 23, v{28+i}
        v_cmp_lt_u32 s[16:17], 31, v{28+i}
        s_andn2_b64 exec, exec, vcc
        """)
        put(i)
        o(f"""
        s_andn2_b64 exec, vcc, s[16:17]
        s_cbranch_execz K1_OVM{i}
        v_and_b32 v36, 7, v{28+i}
        v_lshl_add_u32 v36, v{24+i}, 1, v36
        v_lshlrev_b32 v37, 4, v36
        v_lshl_add_u32 v36, v36, 2, s15
        ds_write_b8 v37, v{8+i} offset:15
        global_store_dword v36, v{32+i}, s[10:11] {OPT["K2SC"]}
K1_OVM{i}:
        s_mov_b64 exec, s[16:17]
        s_cbranch_execz K1_OVN{i}
        ds_add_rtn_u32 v36, v7, v6
        v_mov_b32 v46, v{32+i}
        v_lshlrev_b32 v47, 2, v{8+i}
        v_lshl_or_b32 v47, v{20+i}, 16, v47
        s_waitcnt lgkmcnt(0)
        v_lshl_add_u32 v36, v36, 3, s12
        global_store_dwordx2 v36, v[46:47], s[10:11]
K1_OVN{i}:
        """)
    o("s_branch K1_PUTDONE")
    if OPT["K1TLB"]:
        m = OPT["K1TLB"]
        o(f"""
K1_T:
        v_and_b32 v5, 63, v0
        s_barrier
        s_waitcnt lgkmcnt(0)
        """)
        if m & 8:
            o(f"""
            s_mul_i32 s12, s2, {CH*4}
            s_add_u32 s12, s12, {CH*4-4}
            v_mov_b32 v7, s12
            global_load_dword v44, v7, s[6:7]
            s_waitcnt vmcnt(0)
            """)
        if m & 2:
            o(f"""
            s_lshl_b32 s13, s2, 15
            v_lshlrev_b32 v7, 12, v5
            v_and_b32 v7, 0x7fff, v7
            v_add_u32 v7, s13, v7
            global_load_dword v45, v7, s[10:11]
            """)
        if m & 1:
            o(f"""
            s_lshr_b32 s13, s2, 3
            s_mul_i32 s13, s13, {50*4096}
            v_lshlrev_b32 v7, 12, v5
            v_add_u32 v7, s13, v7
            v_min_u32 v7, {N*128-4}, v7
            global_load_dword v44, v7, s[22:23]
            """)
        if m & 4:
            o(f"""
            s_mul_i32 s13, s2, {200*128}
            v_cmp_gt_u32 vcc, 50, v5
            v_lshl_add_u32 v7, v5, 7, s13
            s_mov_b64 exec, vcc
            """)
            for i in range(4):
                o(f"global_load_dword v44, v7, s[22:23]")
                if i < 3: o(f"v_add_u32 v7, {50*128}, v7")
        o("s_barrier\ns_endpgm")
    o(f"""
K1_W:
    s_cmp_ge_u32 s2, {P+5}
    s_cbranch_scc1 K1_END
    s_load_dwordx8 s[4:11], s[0:1], 32
    s_load_dwordx2 s[12:13], s[0:1], 64
    s_load_dwordx2 s[14:15], s[0:1], 88
    s_sub_u32 s3, s2, {P}
    v_bfe_u32 v1, v0, 2, 1
    v_lshlrev_b32 v1, 5, v1
    v_and_b32 v2, 3, v0
    v_add_u32 v1, v1, v2
    v_bfe_u32 v2, v0, 3, 2
    v_lshl_add_u32 v1, v2, 2, v1
    s_cmp_eq_u32 s3, 4
    s_cbranch_scc1 K1_WC
    v_cmp_gt_u32 vcc, 512, v0
    s_and_b64 exec, exec, vcc
    s_cbranch_execz K1_END
    v_bfe_u32 v2, v0, 8, 1
    v_lshl_add_u32 v1, v2, 4, v1
    v_lshlrev_b32 v1, 1, v1
    v_bfe_u32 v2, v0, 5, 1
    v_lshl_add_u32 v1, v2, 12, v1
    v_bfe_u32 v2, v0, 6, 2
    v_lshl_add_u32 v1, v2, 10, v1
    s_waitcnt lgkmcnt(0)
    s_mov_b32 s18, 1.0
    s_cmp_eq_u32 s3, 0
    s_cselect_b32 s16, s6, s12
    s_cselect_b32 s17, s7, s13
    s_cselect_b32 s18, {f32(NLOG2E)}, s18
    s_cmp_eq_u32 s3, 2
    s_cselect_b32 s16, s4, s16
    s_cselect_b32 s17, s5, s17
    s_cmp_eq_u32 s3, 3
    s_cselect_b32 s16, s10, s16
    s_cselect_b32 s17, s11, s17
    """)
    for j in range(8):
        o(f"global_load_ushort v{8+j}, v1, s[16:17] offset:{128*j}")
    o(f"""
    s_lshl_b32 s19, s3, 13
    s_add_u32 s19, s19, {WS_WF}
    v_lshlrev_b32 v2, 4, v0
    v_add_u32 v2, s19, v2
    s_waitcnt vmcnt(0)
    """)
    for j in range(8):
        o(f"v_lshlrev_b32 v{8+j}, 16, v{8+j}\nv_mul_f32 v{8+j}, s18, v{8+j}")
    for j in range(4):
        o(f"v_cvt_pk_bf16_f32 v{16+j}, v{8+2*j}, v{9+2*j}")
    o(f"""
    global_store_dwordx4 v2, v[16:19], s[14:15] {OPT["K2SC"]}
    s_endpgm
K1_WC:
    v_cmp_gt_u32 vcc, 128, v0
    s_and_b64 exec, exec, vcc
    s_cbranch_execz K1_END
    v_bfe_u32 v2, v0, 6, 1
    v_lshl_add_u32 v1, v2, 4, v1
    v_lshlrev_b32 v1, 1, v1
    s_waitcnt lgkmcnt(0)
    global_load_ushort v8, v1, s[8:9]
    v_lshlrev_b32 v2, 2, v0
    v_add_u32 v2, {WS_WF+32768}, v2
    v_and_b32 v3, 32, v0
    v_cmp_eq_u32 vcc, 0, v3
    v_mov_b32 v4, 0
    s_waitcnt vmcnt(0)
    v_lshlrev_b32 v8, 16, v8
    v_mul_f32 v8, {f32(NLOG2E)}, v8
    v_cvt_pk_bf16_f32 v9, v4, v8
    v_sub_f32 v10, v8, v9
    v_cvt_pk_bf16_f32 v10, v4, v10
    v_or_b32 v9, 0x7f7f, v9
    v_cndmask_b32 v9, v10, v9, vcc
    global_store_dword v2, v9, s[14:15] {OPT["K2SC"]}
K1_END:
    s_endpgm
    """)
    return o.text()

VT, XL, XA, CK, D0, LD, LE, EP, WC, X, WB, WV, AP, DEN, NUM = 0, 1, 2, 3, 4, 8, 9, 10, 12, 16, 32, 64, 96, 128, 160
G = (192, 224); V = (208, 240)
ENT, DLR, RK, OF, QC, INF, QK, WA = 128, 144, 160, 176, 180, 192, 220, 224
NS = 16
PM = 64

def mf(d, a, b, c):
    cs = "0" if c is None else vr(c, 16)
    return f"v_mfma_f32_32x32x16_bf16 {vr(d,16)}, {vr(a,4)}, {vr(b,4)}, {cs}"
def mfe(t):
    return f"v_mfma_f32_32x32x8_bf16 {vr(G[t],16)}, {vr(WC+2*t,2)}, {vr(EP,2)}, {vr(AP+16*t,16)}"
def mf_list(t):
    l = [mfe(t)]
    for s in range(4):
        l.append(mf(G[t], WB+16*t+4*s, X+4*s, G[t]))
        l.append(mf(V[t], WV+16*t+4*s, X+4*s, None if s == 0 else V[t]))
    return l
def dma(i, k="ROWSC"):
    so = ("s28", "s29", "s30", "0")[i]
    off = f" offset:{BLK*i}" if i else ""
    return f"buffer_load_dwordx4 v{D0+i}, s[4:7], {so} offen{off} {OPT[k]} lds"
def mads():
    return [f"v_mad_u32_u16 v{D0+i}, v{D0+i}, s31, v{CK}" for i in range(4)]
def xread(s): return f"ds_read_b128 {vr(X+4*s,4)}, v{XA}" + (f" offset:{16*s}" if s else "")
ADV = ["s_add_u32 s42, s42, %d" % SLOT, "s_cmp_eq_u32 s42, s41", "s_cselect_b32 s42, s40, s42"]

def phase(o, t, mfs, slots, fill1, fill2, pk1=(), pk2=()):
    g, v, den, num = G[t], V[t], DEN+16*t, NUM+16*t
    e = [f"v_exp_f32 v{g+i}, v{g+i}" for i in range(16)]
    r = [f"v_rcp_f32 v{g+i}, v{g+i}" for i in range(16)]
    def M(i):
        o(mfs[i])
        for x in slots[i]: o(x)
    k = 0
    for i in range(5):
        M(i)
        n = 3 if i < 4 else 4
        for x in e[k:k+n]: o(x)
        k += n
    for x in fill1: o(x)
    pk1 = list(pk1)
    for i in range(8):
        o(f"v_pk_add_f32 {vr(g+2*i,2)}, {vr(g+2*i,2)}, s[34:35]")
        if pk1: o(pk1.pop(0))
    k = 0
    for i in range(5, 9):
        M(i)
        n = 3 if i < 8 else 7
        for x in r[k:k+n]: o(x)
        k += n
    for x in fill2: o(x)
    pk2 = list(pk2)
    for i in range(8):
        o(f"v_pk_add_f32 {vr(den+2*i,2)}, {vr(den+2*i,2)}, {vr(g+2*i,2)}")
        if pk2: o(pk2.pop(0))
        o(f"v_pk_fma_f32 {vr(num+2*i,2)}, {vr(g+2*i,2)}, {vr(v+2*i,2)}, {vr(num+2*i,2)}")
        if pk2: o(pk2.pop(0))

def k2():
    o = A()
    def pay(i): return ENT + 4*(i//3) + i % 3 if i < 12 else QK + i - 12
    def dl4(i): return DLR + i
    def meta(q): return ENT + 4*q + 3
    def pm(i): return f"s[{PM+2*i}:{PM+2*i+1}]"
    T, T2 = G[0], V[0]
    def celladdr():
        o(f"""
        v_mbcnt_lo_u32_b32 v20, -1, 0
        v_mbcnt_hi_u32_b32 v20, -1, v20
        s_lshl_b32 s48, s3, 6
        v_add_u32 v21, s48, v20
        v_lshrrev_b32 v22, 3, v21
        v_and_b32 v23, 7, v20
        v_lshlrev_b32 v23, 4, v23
        s_lshl_b32 s49, s2, 7
        v_lshl_add_u32 v{OF}, v22, 15, s49
        v_add_u32 v{OF}, v{OF}, v23
        """)
        for q in range(1, 4):
            o(f"v_add_u32 v{OF+q}, {q*64*32768}, v{OF}")
    def cellissue(qs):
        for q in qs:
            o(f"buffer_load_dwordx4 {vr(ENT+4*q,4)}, v{OF+q}, s[8:11], 0 offen {OPT['CELLSC']}")
    first = (0, 1) if OPT["SPLIT"] else (0, 1, 2, 3)
    o(f"""
main_kernel:
    s_cmp_ge_u32 s2, {NB}
    s_cbranch_scc1 K2_END
    s_load_dwordx2 s[8:9], s[0:1], 88
    s_load_dwordx2 s[4:5], s[0:1], 0
    s_load_dwordx2 s[20:21], s[0:1], 72
@RT 4
@ST 0
    v_lshrrev_b32 v1, 6, v0
    s_mov_b32 s10, {P*32768}
    s_mov_b32 s11, 0x20000
    v_readfirstlane_b32 s3, v1
    """)
    if OPT["XMAP"]:
        o("""
        s_and_b32 s48, s2, 7
        s_lshr_b32 s2, s2, 3
        s_lshl_b32 s48, s48, 5
        s_or_b32 s2, s2, s48
        """)
    celladdr()
    o("s_waitcnt lgkmcnt(0)")
    cellissue(first)
    o(f"""
    s_add_u32 s16, s8, {WS_WF}
    s_addc_u32 s17, s9, 0
    s_mov_b32 s18, {32768+1024}
    s_mov_b32 s19, 0x20000
    s_add_u32 s12, s8, {WS_OVF}
    s_addc_u32 s13, s9, 0
    s_mov_b32 s14, {OVL+P*OVS+128}
    s_mov_b32 s15, 0x20000
    s_mov_b32 s45, 0
    s_mov_b32 s46, 0
    s_mov_b32 s47, 0
    s_movk_i32 s36, {48*4}
    s_sub_u32 s4, s4, {3*BLK}
    s_subb_u32 s5, s5, 0
    s_mov_b32 s6, {N*128+3*BLK}
    s_mov_b32 s7, 0x20000
    s_mov_b32 s22, {N*128}
    s_mov_b32 s23, 0x20000
    s_add_u32 s24, s8, {WS_ACC}
    s_addc_u32 s25, s9, 0
    s_mov_b32 s26, {N*512}
    s_mov_b32 s27, 0x20000
K2_RESTART:
    v_lshlrev_b32 v28, 2, v20
    v_lshlrev_b32 v24, 4, v21
    v_mov_b32 v96, 0xffff
    v_mov_b32 v97, 0xffff
    v_mov_b32 v98, 0xffff
    v_mov_b32 v99, 0xffff
    v_add_u32 v25, {L_NM}, v24
    v_mul_u32_u24 v187, {NMS}, v21
    v_add_u32 v187, {L_NM}, v187
    v_cmp_gt_u32 vcc, 256, v21
    v_lshlrev_b32 v30, 2, v21
    ds_write_b128 v25, v[96:99]
    ds_write_b128 v25, v[96:99] offset:8192
    v_cndmask_b32 v187, 0, v187, vcc
    ds_write_b128 v25, v[96:99] offset:16384
    ds_write_b128 v25, v[96:99] offset:24576
    v_cmp_gt_u32 vcc, {(L_RING-L_CNT)//4}, v21
    ds_write_b128 v25, v[96:99] offset:32768
    s_mul_i32 s48, s3, {GS}
    v_add_u32 v26, s48, v28
    ds_write_b32 v26, v96
    s_and_b64 exec, exec, vcc
    ds_write_b32 v30, v187 offset:{L_CNT}
    s_mov_b64 exec, -1
    """)
    if OPT["SPLIT"]: cellissue((2, 3))
    o(f"""
    v_add_u32 v29, 32768, v28
    buffer_load_dword v{WC}, v29, s[16:19], 0 offen
    buffer_load_dword v{WC+2}, v29, s[16:19], 0 offen offset:256
    s_mov_b32 s28, {3*BLK}
    s_and_b32 s48, s3, 1
    s_lshl_b32 s48, s48, 6
    v_and_b32 v102, 0x30, v20
    v_or_b32 v102, s48, v102
    v_xor_b32 v102, v102, v24
    v_and_b32 v102, {0x7ff if OPT['OWN67'] else 0xfff}, v102
    s_mul_i32 s51, s2, {R*128}
    v_add_u32 v184, s51, v102
    v_lshlrev_b32 v110, 4, v20
    s_and_b32 s50, s3, {1 if OPT['OWN67'] else 3}
    s_lshl_b32 s50, s50, 10
    v_lshrrev_b32 v186, 2, v{OF}
    ; constants
    s_mov_b32 s29, {2*BLK}
    s_mov_b32 s30, {BLK}
    s_mov_b32 s31, 128
    s_mov_b32 s32, {N}
    s_mov_b32 s34, 1.0
    s_mov_b32 s35, 1.0
    s_mov_b32 s39, 0
    s_mul_i32 s40, s3, {RINGW}
    s_add_u32 s40, s40, {L_RING}
    s_add_u32 s41, s40, {RINGW}
    s_lshl_b32 s48, s3, 2
    s_lshr_b32 s44, 0x72106453, s48
    s_and_b32 s44, s44, 7
    s_waitcnt lgkmcnt(0)
    s_barrier
    v_mov_b32 v{WC+1}, 0
    v_mov_b32 v{WC+3}, 0
    v_mov_b32 v{EP+1}, 0
    v_mov_b32 v31, 4
    v_bfe_u32 v{CK}, v20, 4, 1
    v_lshlrev_b32 v{CK}, 6, v{CK}
    v_xor_b32 v{CK}, v{CK}, v23
    ; column c = l&31, h = l>>5; r = (c3 c2 c4); i = c&3
    v_bfe_u32 v102, v20, 2, 2
    v_bfe_u32 v103, v20, 4, 1
    v_lshl_or_b32 v102, v102, 1, v103
    v_and_b32 v103, 3, v20
    v_lshl_or_b32 v{LE}, v102, 2, v103
    v_lshlrev_b32 v{LE}, 2, v{LE}
    v_lshrrev_b32 v{LD}, 3, v20
    v_lshlrev_b32 v{LD}, 4, v{LD}
    s_cmp_ge_u32 s44, 3
    s_cselect_b32 s49, 0x7c, 0x3c
    s_cmp_eq_u32 s44, 0
    s_cselect_b32 s49, 0x1c, s49
    s_mul_i32 s48, s44, {GS}
    v_and_b32 v189, s49, v{LD}
    v_and_b32 v190, s49, v{LE}
    v_add_u32 v189, s48, v189
    v_add_u32 v190, s48, v190
    v_add_u32 v{LE}, s48, v{LE}
    v_add_u32 v{LD}, s48, v{LD}
    v_and_b32 v122, 32, v20
    v_lshlrev_b32 v122, 1, v122
    v_add_u32 v122, {L_OWN}, v122
    s_add_u32 s49, s49, 4
    s_ff1_i32_b32 s54, s49
    s_sub_u32 s54, s54, 2
    s_lshr_b32 s37, 1024, s54
    v_lshrrev_b32 v188, s54, v20
    v_bfe_u32 v191, v20, 0, s54
    v_lshl_add_u32 v191, v191, 2, s48
    s_lshl_b32 s55, s49, 2
    v_mad_u32_u24 v{OF}, v188, s55, v191
    v_add_u32 v{OF+1}, s49, v{OF}
    v_add_u32 v{OF+2}, s49, v{OF+1}
    v_add_u32 v{OF+3}, s49, v{OF+2}
    v_lshlrev_b32 v188, 4, v188
    v_mul_u32_u24 v{XL}, {BLK}, v103
    v_lshl_add_u32 v{XL}, v102, 7, v{XL}
    v_bfe_u32 v103, v102, 1, 1
    v_lshrrev_b32 v102, 5, v20
    v_xor_b32 v103, v103, v102
    v_lshl_add_u32 v{XL}, v103, 6, v{XL}
    s_mul_i32 s48, s2, {R}
    s_sub_u32 s49, {N}, s48
    s_min_u32 s49, s49, {R}
    v_cmp_gt_u32 s[52:53], s49, v21
    v_add_u32 v109, s48, v21
    s_or_b32 s38, s45, s47
    s_cbranch_scc1 K2_SLOWLOAD
    """)
    for i in range(12, 16): o(f"s_mov_b64 {pm(i)}, 0")
    def ext(i):
        q, j = (i//3, i % 3) if i < 12 else (i-12, 3)
        o(f"v_lshlrev_b32_sdwa v{dl4(i)}, 2, v{meta(q)} dst_sel:DWORD dst_unused:UNUSED_PAD src0_sel:DWORD src1_sel:BYTE_{j}")
    def atom(i): o(f"ds_add_rtn_u32 v{RK+i}, v{dl4(i)}, v31 offset:{L_CNT-4}")
    def cnt(i):
        o(f"s_mov_b64 exec, {pm(i)}"); atom(i)
    def put(sl):
        for i in sl: o(f"s_mov_b64 exec, {pm(i)}\nds_write_b32 v{RK+i}, v{pay(i)}")
        o("s_mov_b64 exec, -1")
    def wload():
        o("s_lshl_b32 s48, s3, 10")
        for i in (2, 0, 1, 3):
            o(f"s_add_u32 m0, s48, {L_WB+8192*i}\ns_movk_i32 s49, {8192*i}")
            o("buffer_load_dwordx4 v24, s[16:19], s49 offen lds")
    def ownload():
        o(f"v_cmp_gt_u32 vcc, {32 if OPT['OWNO'] else 288}, v21")
        for i in range(7):
            o(f"s_add_u32 m0, s50, {L_OWN+4096*i}\ns_add_u32 s49, s28, {4096*i}")
            if i == 6: o("s_or_b64 exec, vcc, 1")
            o(f"buffer_load_dwordx4 v184, s[4:7], s49 offen {OPT['OWNSC']} lds")
        o("s_mov_b64 exec, -1")
    def own67():
        o(f"v_cmp_gt_u32 vcc, {384+32}, v21")
        for i in range(13):
            o(f"s_add_u32 m0, s50, {L_OWN+2048*i}\ns_add_u32 s49, s28, {2048*i}")
            if i == 12: o("s_or_b64 exec, vcc, 1")
            o(f"buffer_load_dwordx4 v184, s[4:7], s49 offen {OPT['OWNSC']} lds")
        o("s_mov_b64 exec, -1")
    def wyoung():
        o("s_and_b32 s48, s3, 3\ns_lshl_b32 s48, s48, 10\nv_and_b32 v107, 0xfff, v24")
        for i in (4, 5, 0, 1, 2, 3, 6, 7):
            o(f"s_add_u32 m0, s48, {L_WB+4096*i}\ns_movk_i32 s49, {4096*i}")
            o("buffer_load_dwordx4 v107, s[16:19], s49 offen lds")
    def count(late):
        for half in ((0, 1), (2, 3)):
            if half == (2, 3) and not OPT["OWN67"] and not OPT["EARLY"]: wload(); late += 4
            for q in half:
                o(f"s_waitcnt vmcnt({3-q+late})")
                if q == 0: o("@SA 1")
                for j in range(3): ext(3*q+j)
                for j in range(3):
                    o(f"v_cmpx_ne_u32 {pm(3*q+j)}, 0, v{dl4(3*q+j)}"); atom(3*q+j)
                o("s_mov_b64 exec, -1")
            if half == (2, 3):
                o(f"""
                v_or3_b32 v102, v{meta(0)}, v{meta(1)}, v{meta(2)}
                v_or_b32 v102, v102, v{meta(3)}
                v_cmp_lt_u32 vcc, 0xffffff, v102
                """)
            if OPT["SPLIT"] or half == (2, 3):
                o("s_waitcnt lgkmcnt(0)")
                put(range(3*half[0], 3*half[0]+6) if OPT["SPLIT"] else range(12))
    if OPT["OWN67"]:
        o("s_cmp_lt_u32 s3, 6\ns_cbranch_scc1 K2_CNT0")
        own67()
        count(15)
        o("s_branch K2_CNT1\nK2_CNT0:")
    if OPT["EARLY"]:
        o("s_cmp_lt_u32 s3, 4\ns_cbranch_scc1 K2_CNT0")
        wyoung(); ownload()
        count(17)
        o("s_branch K2_CNT1\nK2_CNT0:")
    count(2)
    o("K2_CNT1:")
    o(f"""
    s_cbranch_vccnz K2_X3
K2_COUNTED:
@SA 11
    s_cmp_ge_u32 s3, 4
    s_cbranch_scc1 K2_YOUNG
    """)
    if OPT["OWNO"]: ownload()
    o(f"""
    s_waitcnt lgkmcnt(0)
    s_barrier
@SA 2
    ds_read_b32 v111, v30 offset:{L_CNT}
    v_mov_b32 v107, {L_LG+36}
    v_mov_b32 v108, 1
    s_waitcnt lgkmcnt(0)
    v_sub_u32 v111, v111, v187
    v_cmp_lt_u32 vcc, s36, v111
    v_min_u32 v111, s36, v111
    v_sub_u32 v112, 252, v111
    s_mov_b64 exec, s[52:53]
    ds_add_rtn_u32 v113, v112, v108 offset:{L_HIST}
    s_and_b64 exec, exec, vcc
    ds_write_b32 v107, v107
    s_mov_b64 exec, -1
    s_waitcnt lgkmcnt(0)
    s_barrier
    ds_read_b32 v114, v28 offset:{L_HIST}
    s_waitcnt lgkmcnt(0)
    v_mov_b32 v115, v114
    """)
    scan(o, 114)
    o(f"""
    v_sub_u32 v114, v114, v115
    ds_bpermute_b32 v114, v112, v114
    v_mov_b32 v118, 128
    s_movk_i32 s48, {GS}
    s_waitcnt lgkmcnt(0)
    v_add_u32 v114, v114, v113
    v_add_u32 v115, 56, v114
    v_lshrrev_b32 v116, 5, v115
    v_and_b32 v117, 31, v115
    v_add_u32 v115, 8, v114
    v_cmp_gt_u32 vcc, 40, v114
    v_cmp_gt_u32 s[54:55], 8, v114
    v_lshrrev_b32 v119, 4, v115
    v_and_b32 v120, 15, v115
    v_cndmask_b32 v116, v116, v119, vcc
    v_cndmask_b32 v117, v117, v120, vcc
    v_cndmask_b32 v118, v118, 64, vcc
    v_cndmask_b32 v117, v117, v114, s[54:55]
    v_cndmask_b32 v118, v118, 32, s[54:55]
    v_lshlrev_b32 v117, 2, v117
    v_mad_u32_u24 v117, v116, s48, v117
    v_mul_u32_u24 v118, v111, v118
    v_add_u32 v118, 511, v118
    v_lshrrev_b32 v118, 9, v118
    v_lshlrev_b32 v116, 2, v116
    s_mov_b64 exec, s[52:53]
    ds_write_b32 v117, v109
    ds_max_u32 v116, v118 offset:{L_LG}
    s_mov_b64 exec, -1
    s_waitcnt vmcnt({7 if OPT['OWNO'] else 0})
    s_branch K2_B4
K2_YOUNG:
    s_waitcnt lgkmcnt(0)
    s_barrier
@SA 2
    """)
    if not OPT["OWNO"] and not OPT["OWN67"] and not OPT["EARLY"]: ownload()
    o("s_barrier")
    if not OPT["OWN67"]: o(f"s_waitcnt vmcnt({0 if OPT['OWNO'] else 7})")
    def outtlb():
        o(f"""
        v_lshlrev_b32 v107, 12, v20
        v_min_u32 v107, {R*128-4}, v107
        s_mov_b32 m0, {L_CNT}
        s_mov_b64 exec, 0xff
        buffer_load_dword v107, s[20:23], s51 offen lds
        s_mov_b64 exec, -1
        """)
    if OPT["OUTTLB"] and not OPT["OWN67"]: outtlb()
    o(f"""
K2_B4:
    s_cmp_lg_u32 s39, 0
    s_cbranch_scc1 K2_X3PUT
K2_B4B:
    s_mul_i32 s48, s2, {R}
    s_movk_i32 s49, {NMS}
    s_waitcnt lgkmcnt(0)
    s_barrier
@ST 3
    ds_read_b32 v120, v191
    ds_read_b32 v123, v28 offset:{L_LG}
    ds_read_b32 v121, v190
    ds_read_b128 {vr(D0,4)}, v189
    s_waitcnt lgkmcnt(2)
@SB 1
    v_subrev_u32 v120, s48, v120
    v_min_u32 v120, {R}, v120
    v_mad_u32_u24 v120, v120, s49, v188
    v_add_u32 v119, s37, v120
    v_add_u32 v118, s37, v119
    v_cmp_lt_u32 vcc, {LCAP}, v123
    ds_read_b128 {vr(T2,4)}, v120 offset:{L_NM}
    ds_read_b128 {vr(T2+4,4)}, v119 offset:{L_NM}
    ds_read_b128 {vr(T2+8,4)}, v118 offset:{L_NM}
    v_readlane_b32 s43, v123, s44
    s_waitcnt lgkmcnt(4)
    v_subrev_u32 v121, s48, v121
    v_min_u32 v121, {R-1}, v121
    v_lshlrev_b32 v124, 3, v121
    v_and_b32 v124, 0x70, v124
    v_xor_b32 v124, v124, v122
    v_lshl_add_u32 v124, v121, 7, v124
    v_xor_b32 v125, 16, v124
    v_xor_b32 v126, 32, v124
    v_xor_b32 v127, 48, v124
    s_mov_b32 s47, 0
    s_and_b32 s33, vcc_lo, 0x3ff
    s_cbranch_scc1 K2_FLAGS
K2_FLAGSDONE:
    s_lshl_b32 s48, s43, 7
    v_add_u32 v121, s48, v{LD}
    v_mov_b32 v{VT}, v110
    s_mov_b32 m0, s40
    {'s_mov_b32 s76, s43' if DIAG else ''}
    """)
    def build_list():
        for k in range(3):
            for e in range(4):
                o(f"ds_write_b32 v{OF+e}, v{T2+4*k+e} offset:{128+1024*k}")
        o(f"""
        ds_write_b128 v121, {vr(D0,4)} offset:128
        ds_read_b128 {vr(D0,4)}, v{LD} offset:128
        ds_read_b128 {vr(T,4)}, v{LD} offset:256
        ds_read_b128 {vr(T+4,4)}, v{LD} offset:384
        ds_read_b128 {vr(T+8,4)}, v{LD} offset:512
        ds_read_b32 v{EP}, v{LE} offset:128
        """)
    def frags(reg, off):
        for f in range(8): o(f"ds_read_b128 {vr(reg+4*f,4)}, v{VT} offset:{L_WB+off+1024*f}")
    def rowdma(n):
        if n: o(f"s_add_u32 m0, s40, {n*SLOT}")
        for i in range(4): o(f"v_mad_u32_u16 v{D0+i}, v{T+4*(n-1)+i if n else D0+i}, s31, v{CK}")
        for i in range(4): o(dma(i, "PRESC" if n < OPT["PREN"] else "ROWSC"))
    def own_x():
        for s_ in range(4): o(f"ds_read_b128 {vr(X+4*s_,4)}, v{124+s_}")
    def zero():
        for i in range(64): o(f"v_mov_b32 v{DEN+i}, 0")
    def aprime():
        for s_ in range(4):
            for t in range(2):
                o(mf(AP+16*t, WA+16*t+4*s_, X+4*s_, None if s_ == 0 else AP+16*t))
    o("s_cmp_ge_u32 s3, 4\ns_cbranch_scc1 K2_YPRE")
    o("s_waitcnt lgkmcnt(0)\n@SB 11")
    build_list()
    o("s_waitcnt lgkmcnt(4)\n@SB 2\ns_barrier\n@ST 6")
    if OPT["OWN67"]:
        rowdma(0)
        o("s_waitcnt lgkmcnt(0)")
        rowdma(1)
        if OPT["R3E"]: rowdma(2)
        zero()
        o("s_barrier")
        own_x(); frags(WA, 16384)
        o("s_waitcnt lgkmcnt(8)\ns_barrier")
        frags(WB, 0)
        o("s_waitcnt lgkmcnt(8)")
        aprime()
        frags(WV, 8192)
        if not OPT["R3E"]: rowdma(2)
    else:
        rowdma(0)
        frags(WA, 16384)
        o("s_waitcnt lgkmcnt(8)")
        rowdma(1)
        frags(WB, 0)
        if OPT["R3E"]: rowdma(2)
        frags(WV, 8192)
        zero()
        if OPT["OWNO"]: o(f"s_waitcnt vmcnt({12 if OPT['R3E'] else 8})")
        o("s_barrier")
        own_x()
        o("s_waitcnt lgkmcnt(0)")
        aprime()
        o("s_barrier")
        if not OPT["R3E"]: rowdma(2)
    o("s_branch K2_PRE\nK2_YPRE:")
    o("s_waitcnt lgkmcnt(0)\n@SB 11\n@SB 2\ns_barrier\n@ST 6")
    if OPT["OWN67"]:
        wyoung()
        if OPT["OUTTLB"]: outtlb()
        o("s_mov_b32 m0, s40")
    build_list()
    zero()
    o(f"s_waitcnt vmcnt({OPT['OUTTLB']})\ns_barrier")
    own_x()
    o("s_waitcnt lgkmcnt(0)\ns_barrier")
    if OPT["YD"] == 0: rowdma(0); rowdma(1); rowdma(2)
    frags(WA, 16384)
    frags(WB, 0)
    o("s_waitcnt lgkmcnt(8)")
    aprime()
    frags(WV, 8192)
    if OPT["YD"]: rowdma(0); rowdma(1); rowdma(2)
    o("K2_PRE:")
    for i in range(4): o(f"v_mad_u32_u16 v{D0+i}, v{T+8+i}, s31, v{CK}")
    o(f"""
    v_pk_sub_u16 v{EP}, v{EP}, s32 clamp
    v_add_u32 v{XA}, s40, v{XL}
    v_add_u32 v{LD}, {5*128}, v{LD}
    v_add_u32 v{LE}, {2*128}, v{LE}
    s_cmp_lg_u32 s46, 0
    s_cbranch_scc1 K2_LOADACC
K2_ACCDONE:
    s_mov_b32 m0, s40
    s_add_u32 s42, s40, {SLOT}
    s_mov_b32 s54, {f32(NLOG2E)}
    s_mov_b32 s55, {f32(NLOG2E)}
    """)
    for i in range(16): o(f"v_pk_mul_f32 {vr(AP+2*i,2)}, {vr(AP+2*i,2)}, s[54:55]")
    o(f"""
    s_waitcnt vmcnt(8)
@ST 7
    """)
    for s_ in range(4): o(xread(s_))
    ml = mf_list(0)
    o(ml[0])
    o("s_waitcnt lgkmcnt(0)")
    for i in range(4): o(ml[1+2*i]); o(dma(i))
    for i in range(4): o(ml[2+2*i])
    o(f"""
    v_add_u32 v{XA}, {SLOT}, v{XA}
@ST 8
    s_sub_u32 s43, s43, 1
    s_cbranch_scc1 K2_LOOPEND
    .p2align 4
K2_LOOP:
    """)
    sl = [[] for _ in range(9)]
    sl[0] = [f"ds_read_b32 v{VT}, v{LE}"]
    sl[1] = ["s_waitcnt vmcnt(8)"]
    sl[2] = [xread(0)]
    sl[3] = [f"ds_read_b128 {vr(D0,4)}, v{LD}"]
    sl[4] = [xread(1)]
    sl[5] = ["s_mov_b32 m0, s42"]
    sl[6] = [xread(2)]
    sl[7] = ["s_waitcnt lgkmcnt(2)"]
    sl[8] = [xread(3)]
    phase(o, 0, mf_list(1), sl,
          [f"v_add_u32 v{LE}, 128, v{LE}", f"v_add_u32 v{LD}, 128, v{LD}"],
          [f"v_pk_sub_u16 v{EP}, v{VT}, s32 clamp"] + mads(),
          pk1=(), pk2=ADV + ["s_waitcnt lgkmcnt(0)"])
    sl = [[] for _ in range(9)]
    for i in range(4): sl[i] = [dma(i)]
    if OPT["PRIO"]:
        sl[5] = ["s_cmp_lg_u32 s43, s50"]
        sl[6] = ["s_cbranch_scc1 K2_NOP", "s_setprio 0", "K2_NOP:"]
    sl[8] = ["s_sub_u32 s43, s43, 1"]
    phase(o, 1, mf_list(0), sl, [f"v_add_u32 v{XA}, s42, v{XL}"], [])
    o(f"""
    s_cbranch_scc0 K2_LOOP
K2_LOOPEND:
@ST 9
    v_mbcnt_lo_u32_b32 v{D0}, -1, 0
    v_mbcnt_hi_u32_b32 v{D0}, -1, v{D0}
    v_lshlrev_b32 v{D0+1}, 4, v{D0}
    v_subrev_u32 v{LE}, 128, v{LE}
    ds_read_b32 v{VT}, v{LE}
    """)
    if OPT["OUTT"]:
        o(f"""
        v_subrev_u32 v{LD}, 512, v{LD}
        ds_read_b128 {vr(AP,4)}, v{LD}
        v_add_u32 v{AP+4}, {"s42" if OPT["OSL"] else "s40"}, v{D0+1}
        v_add_u32 v{AP+5}, {"s42" if OPT["OSL"] else "s40"}, v{XL}
        s_mov_b64 s[54:55], -1
        """)
    for f in range(8):
        o(f"ds_read_b128 {vr(WB+4*f,4)}, v{D0+1} offset:{L_WU+1024*f}")
    o(f"""
    s_mov_b32 s48, 0
    s_cmp_ge_u32 s44, 3
    s_cbranch_scc1 K2_NOCOMB
    s_mov_b32 s48, 8
    s_mov_b32 s55, 0
    """)
    if OPT["EPI"]: o("s_cmp_eq_u32 s33, 0\ns_cbranch_scc1 K2_SPLITEP")
    for i in range(64): o(f"v_add_f32_dpp v{DEN+i}, v{DEN+i}, v{DEN+i} row_ror:8 row_mask:0xf bank_mask:0xf")
    o(f"""
    s_cmp_lg_u32 s44, 0
    s_cbranch_scc1 K2_NOCOMB
    s_mov_b32 s48, 12
    s_mov_b32 s54, 0xffff
    """)
    for i in range(64): o(f"v_add_f32_dpp v{DEN+i}, v{DEN+i}, v{DEN+i} row_ror:4 row_mask:0xf bank_mask:0xf")
    o(f"""
K2_NOCOMB:
    v_and_b32 v{D0+2}, s48, v{D0}
    v_cmp_eq_u32 vcc, 0, v{D0+2}
    v_mov_b32 v{D0+3}, 0xffff
    v_lshrrev_b32 v{D0}, 5, v{D0}
    s_mov_b32 s49, 0xffff0000
    """)
    if OPT["EPI"]:
        for t in (1, 0):
            for i in range(8):
                o(f"v_lshlrev_b32 v{V[t]+2*i}, 16, v{X+8*t+i}")
                o(f"v_and_b32 v{V[t]+2*i+1}, s49, v{X+8*t+i}")
    o(f"""
    s_waitcnt lgkmcnt(0)
    v_cndmask_b32 v{D0+2}, v{D0+3}, v{VT}, vcc
    s_cmp_lg_u32 s33, 0
    s_cbranch_scc1 K2_STOREACC
    s_mov_b32 s52, {f32(1e-6)}
    s_mov_b32 s53, {f32(1e-6)}
    v_lshlrev_b32 v{D0}, 6, v{D0}
    v_lshl_add_u32 v{D0}, v{D0+2}, 7, v{D0}
    """)
    for i in range(16): o(f"v_pk_add_f32 {vr(DEN+2*i,2)}, {vr(DEN+2*i,2)}, s[52:53]")
    k = 0
    for s in range(4):
        for t in range(2):
            o(mf(G[t], WB+16*t+4*s, X+4*s, (V[t] if OPT['EPI'] else None) if s == 0 else G[t]))
            n = 3 if (s, t) != (3, 1) else 11
            for i in range(k, k+n): o(f"v_rcp_f32 v{DEN+i}, v{DEN+i}")
            k += n
    o("s_mov_b32 s49, 0xffff0000\ns_nop 0")
    for t in range(2):
        for i in range(8):
            o(f"v_pk_fma_f32 {vr(G[t]+2*i,2)}, {vr(NUM+16*t+2*i,2)}, {vr(DEN+16*t+2*i,2)}, {vr(G[t]+2*i,2)}")
    for t in range(2):
        for i in range(8):
            if OPT["EPI"]:
                o(f"v_max_f32 v{G[t]+2*i}, v{V[t]+2*i}, v{G[t]+2*i}")
                o(f"v_max_f32 v{G[t]+2*i+1}, v{V[t]+2*i+1}, v{G[t]+2*i+1}")
            else:
                o(f"v_lshlrev_b32 v{V[t]+2*i}, 16, v{X+8*t+i}")
                o(f"v_and_b32 v{V[t]+2*i+1}, s49, v{X+8*t+i}")
                o(f"v_max_f32 v{G[t]+2*i}, 0, v{G[t]+2*i}")
                o(f"v_max_f32 v{G[t]+2*i+1}, 0, v{G[t]+2*i+1}")
                o(f"v_pk_add_f32 {vr(G[t]+2*i,2)}, {vr(G[t]+2*i,2)}, {vr(V[t]+2*i,2)}")
            o(f"v_cvt_pk_bf16_f32 v{DEN+8*t+i}, v{G[t]+2*i}, v{G[t]+2*i+1}")
            if i % 4 == 3:
                j = 2*t + i//4
                if OPT["OUTT"]:
                    if j == 0: o(f"s_waitcnt vmcnt({8*OPT['OSL']})")
                    o(f"ds_write_b128 v{AP+5}, {vr(DEN+4*j,4)}" + (f" offset:{16*j}" if j else ""))
                else: o(f"buffer_store_dwordx4 {vr(DEN+4*j,4)}, v{D0}, s[20:23], 0 offen" + (f" offset:{16*j}" if j else "") + (" " + OPT["OUTSC"] if OPT["OUTSC"] else ""))
    if OPT["OUTT"]:
        o("K2_OUT:\ns_mov_b64 exec, s[54:55]")
        for i in range(4): o(f"ds_read_b128 {vr(AP+8+4*i,4)}, v{AP+4}" + (f" offset:{BLK*i}" if i else ""))
        for i in range(4): o(f"v_mad_u32_u16 v{AP+i}, v{AP+i}, s31, v{CK}")
        for i in range(4):
            o(f"s_waitcnt lgkmcnt({3-i})")
            o(f"buffer_store_dwordx4 {vr(AP+8+4*i,4)}, v{AP+i}, s[20:23], 0 offen" + (" " + OPT["OUTSC"] if OPT["OUTSC"] else ""))
    o("@ST 10\n@RT 5")
    if DIAG: o("s_getreg_b32 s77, hwreg(HW_REG_HW_ID)\ns_getreg_b32 s78, hwreg(HW_REG_XCC_ID)")
    dump(o, 12, 0x4000000, ("s76", "s77", "s78", "s44"))
    if DIAG and OPT["HD"]:
        o(f"""
        s_cmp_lg_u32 s2, 100
        s_cbranch_scc1 K2_END
        s_cmp_lg_u32 s3, {OPT["HD"]}
        s_cbranch_scc1 K2_END
        s_load_dwordx2 s[80:81], s[0:1], 80
        s_add_u32 s100, s100, {0x4800000 + 100*16*256}
        s_addc_u32 s101, s101, 0
        s_load_dwordx8 s[84:91], s[100:101], 0
        s_load_dword s92, s[100:101], 32
        v_mbcnt_lo_u32_b32 v2, -1, 0
        v_lshlrev_b32 v2, 2, v2
        v_subrev_u32 v1, s56, v1
        s_waitcnt lgkmcnt(0)
        s_sub_u32 s92, s92, s84
        s_sub_u32 s86, s86, s84
        s_sub_u32 s89, s89, s88
        s_sub_u32 s93, s96, s88
        s_sub_u32 s94, s74, s88
        v_writelane_b32 v1, s93, 4
        v_writelane_b32 v1, s94, 5
        v_writelane_b32 v1, s86, 12
        v_writelane_b32 v1, s92, 13
        v_writelane_b32 v1, s89, 14
        v_writelane_b32 v1, s76, 15
        s_mov_b64 exec, 0xffff
        global_store_dword v2, v1, s[80:81]
        """)
    o(f"""
K2_END:
    s_endpgm
    """)
    if OPT["EPI"]:
        assert OPT["OUTT"]
        o(f"""
K2_SPLITEP:
        v_add_u32 v{AP+6}, 32, v{AP+5}
        s_mov_b32 s50, 0xff00ff00
        s_mov_b32 s51, 0xff00ff00
        s_mov_b32 s52, {f32(1e-6)}
        s_mov_b32 s53, {f32(1e-6)}
        s_mov_b32 s49, 0xffff0000
        v_mov_b32_dpp v{AP+5}, v{AP+6} row_ror:8 row_mask:0xf bank_mask:0xc
        """)
        ml = [mf(G[t], WB+16*t+4*s, X+4*s, None if s == 0 else G[t]) for s in range(4) for t in range(2)]
        k = 0
        for b in (DEN, NUM):
            for i in range(16):
                o(f"v_add_f32_dpp v{b+i}, v{b+i}, v{b+i} row_ror:8 row_mask:0xf bank_mask:0x3")
                o(f"v_add_f32_dpp v{b+i}, v{b+16+i}, v{b+16+i} row_ror:8 row_mask:0xf bank_mask:0xc")
                k += 1
                if k == 8: o("s_waitcnt lgkmcnt(0)")
                if k >= 8 and (k - 8) % 3 == 0 and ml: o(ml.pop(0))
        assert not ml
        o("s_cmp_lg_u32 s44, 0\ns_cbranch_scc1 K2_SPLIT2\ns_mov_b32 s54, 0xffff")
        for b in (DEN, NUM):
            for i in range(16):
                o(f"v_add_f32_dpp v{b+i}, v{b+i}, v{b+i} row_shl:4 row_mask:0xf bank_mask:0x5")
        o("K2_SPLIT2:")
        for i in range(8): o(f"v_cndmask_b32 v{DEN+16+i}, v{X+i}, v{X+8+i}, s[50:51]")
        for i in range(8): o(f"v_pk_add_f32 {vr(DEN+2*i,2)}, {vr(DEN+2*i,2)}, s[52:53]")
        for i in range(16): o(f"v_rcp_f32 v{DEN+i}, v{DEN+i}")
        for i in range(16): o(f"v_cndmask_b32 v{G[0]+i}, v{G[0]+i}, v{G[1]+i}, s[50:51]")
        for i in range(8): o(f"v_pk_fma_f32 {vr(G[0]+2*i,2)}, {vr(NUM+2*i,2)}, {vr(DEN+2*i,2)}, {vr(G[0]+2*i,2)}")
        for i in range(8):
            o(f"v_lshlrev_b32 v{V[0]+2*i}, 16, v{DEN+16+i}")
            o(f"v_and_b32 v{V[0]+2*i+1}, s49, v{DEN+16+i}")
            o(f"v_max_f32 v{G[0]+2*i}, 0, v{G[0]+2*i}")
            o(f"v_max_f32 v{G[0]+2*i+1}, 0, v{G[0]+2*i+1}")
            o(f"v_pk_add_f32 {vr(G[0]+2*i,2)}, {vr(G[0]+2*i,2)}, {vr(V[0]+2*i,2)}")
            o(f"v_cvt_pk_bf16_f32 v{DEN+i}, v{G[0]+2*i}, v{G[0]+2*i+1}")
            if i % 4 == 3:
                if i == 3: o(f"s_waitcnt vmcnt({8*OPT['OSL']})")
                o(f"ds_write_b128 v{AP+5}, {vr(DEN+4*(i//4),4)}" + (" offset:16" if i == 7 else ""))
        o("s_branch K2_OUT")
    o(f"""
K2_FLAGS:
    s_and_b32 s48, s33, 0xff
    s_cbranch_scc0 K2_PEND
    s_movk_i32 s36, {LCAP*4}
    s_mov_b32 s47, 1
    s_branch K2_AGAIN
K2_PEND:
    s_and_b32 s47, s33, 0x200
    s_cbranch_scc0 K2_FLAGSDONE
    s_cmp_eq_u32 s38, 0
    s_cbranch_scc1 K2_AGAIN
    """)
    for i in range(NS):
        o(f"v_cmp_le_u32 vcc, v{INF+i}, v{RK+i}\ns_and_b64 {pm(i)}, {pm(i)}, vcc")
    def more():
        o(f"""
        v_mov_b32 v107, {L_LG+32}
        s_and_b64 exec, exec, vcc
        ds_write_b32 v107, v107
        s_mov_b64 exec, -1
        """)
    def clamp(sl):
        o(f"s_add_u32 s48, s36, {L_NM-NMS}")
        for i in sl: o(f"v_mad_u32_u24 v{INF+i}, v{dl4(i)}, {NMS//4}, s48")
        o("s_waitcnt lgkmcnt(0)")
        for i in sl: o(f"v_min_u32 v{RK+i}, v{INF+i}, v{RK+i}")
    o(f"""
    s_branch K2_FLAGSDONE
K2_X3:
    s_mov_b32 s39, 1
    v_mul_u32_u24 v102, {OVS}, v22
    v_mov_b32 v104, 0
    """)
    for q in range(4):
        ext(12+q)
        o(f"""
        s_cmp_lg_u32 s47, 0
        s_cbranch_scc1 K2_X3K{q}
        v_cmp_ne_u32 {pm(12+q)}, 0, v{dl4(12+q)}
K2_X3K{q}:
        s_mov_b32 s48, {q*64*8192}
        s_mov_b64 exec, {pm(12+q)}
        buffer_load_dword v{pay(12+q)}, v186, s[12:15], s48 offen
        """)
        atom(12+q)
        o(f"""
        s_mov_b64 exec, -1
        v_cmp_ne_u32 vcc, 0, v{dl4(12+q)}
        s_mov_b32 s48, 0x80808080
        s_and_b32 exec_lo, vcc_lo, s48
        s_and_b32 exec_hi, vcc_hi, s48
        s_cbranch_execz K2_X3N{q}
        s_mov_b32 s48, {OVL+q*64*OVS}
        buffer_load_dword v103, v102, s[12:15], s48 offen
        s_waitcnt vmcnt(0)
        v_or_b32 v104, v104, v103
K2_X3N{q}:
        s_mov_b64 exec, -1
        """)
    o("v_cmp_ne_u32 vcc, 0, v104")
    more()
    clamp(range(12, 16))
    o(f"""
    s_branch K2_COUNTED
K2_X3PUT:
    {'s_waitcnt vmcnt(0)' if OPT['OWN67'] or OPT['EARLY'] else ''}
    """)
    put(range(12, 16))
    o(f"""
    s_branch K2_B4B
K2_SLOWLOAD:
    """)
    if OPT["OWN67"]:
        o("s_cmp_lt_u32 s3, 6\ns_cbranch_scc1 K2_SL0")
        own67()
        o("K2_SL0:")
    elif OPT["EARLY"]:
        o("s_cmp_lt_u32 s3, 4\ns_cbranch_scc1 K2_SL0")
        wyoung(); ownload()
        o("K2_SL0:")
    else: wload()
    o(f"""
    s_waitcnt vmcnt(0)
    s_cmp_lg_u32 s45, 0
    s_cbranch_scc1 K2_CHUNK
    """)
    for i in range(12): ext(i)
    for i in range(12): cnt(i)
    o("s_mov_b64 exec, -1")
    clamp(range(12))
    put(range(12))
    o(f"""
    s_branch K2_X3
K2_CHUNK:
    s_sub_u32 s48, s45, 16
    s_lshl_b32 s49, s48, 3
    v_mul_u32_u24 v102, {OVS}, v22
    v_add_u32 v102, {OVL}, v102
    v_lshrrev_b32 v105, 3, v23
    v_add_u32 v105, s48, v105
    v_add_u32 v106, 1, v105
    v_or_b32 v107, 28, v28
    v_mov_b32 v104, 0
    """)
    for q in range(4):
        o(f"""
        ds_bpermute_b32 v108, v107, v{meta(q)}
        v_mov_b32 v{QC+q}, 0
        v_add3_u32 v103, v102, v23, s49
        s_waitcnt lgkmcnt(0)
        v_cmp_lt_u32 vcc, 0xffffff, v108
        s_mov_b64 exec, vcc
        buffer_load_dword v{QC+q}, v102, s[12:15], 0 offen
        buffer_load_dwordx4 {vr(INF+4*q,4)}, v103, s[12:15], 0 offen offset:16
        s_waitcnt vmcnt(0)
        s_mov_b64 exec, -1
        v_max_u32 v104, v104, v{QC+q}
        v_add_u32 v102, {64*OVS}, v102
        """)
    o(f"""
    s_cmp_lg_u32 s47, 0
    s_cbranch_scc1 K2_CKEEP
    """)
    for q in range(4):
        o(f"s_mov_b64 {pm(3*q+2)}, 0\ns_mov_b64 {pm(12+q)}, 0")
        for k in range(2):
            o(f"""
            v_cmp_lt_u32 vcc, v{105+k}, v{QC+q}
            v_cmp_eq_u32_sdwa {pm(3*q+k)}, s2, v{INF+4*q+2*k+1} src0_sel:DWORD src1_sel:WORD_1
            s_and_b64 {pm(3*q+k)}, {pm(3*q+k)}, vcc
            """)
    o("K2_CKEEP:")
    sl = [3*q+k for q in range(4) for k in range(2)]
    for q in range(4):
        for k in range(2):
            o(f"v_mov_b32 v{pay(3*q+k)}, v{INF+4*q+2*k}\nv_and_b32 v{dl4(3*q+k)}, 0xffff, v{INF+4*q+2*k+1}")
    o(f"v_cmp_lt_u32 vcc, s45, v104")
    more()
    for i in sl: cnt(i)
    o("s_mov_b64 exec, -1")
    clamp(sl)
    put(sl)
    o(f"""
    s_branch K2_COUNTED
K2_LOADACC:
    s_lshl_b32 s48, s43, 7
    s_sub_u32 s48, s48, 128
    v_add_u32 v{G[0]}, s48, v{LE}
    ds_read_b32 v{G[0]}, v{G[0]}
    v_mbcnt_lo_u32_b32 v{G[0]+1}, -1, 0
    v_mbcnt_hi_u32_b32 v{G[0]+1}, -1, v{G[0]+1}
    s_cmp_ge_u32 s44, 3
    s_cselect_b32 s48, 0, 8
    s_cmp_eq_u32 s44, 0
    s_cselect_b32 s48, 12, s48
    v_and_b32 v{G[0]+2}, s48, v{G[0]+1}
    v_cmp_eq_u32 vcc, 0, v{G[0]+2}
    v_mov_b32 v{G[0]+3}, 0xffff
    v_lshrrev_b32 v{G[0]+1}, 5, v{G[0]+1}
    v_lshlrev_b32 v{G[0]+1}, 8, v{G[0]+1}
    s_waitcnt lgkmcnt(0)
    v_cndmask_b32 v{G[0]}, v{G[0]+3}, v{G[0]}, vcc
    v_lshl_add_u32 v{G[0]}, v{G[0]}, 9, v{G[0]+1}
    """)
    for j in range(16):
        o(f"buffer_load_dwordx4 {vr(DEN+4*j,4)}, v{G[0]}, s[24:27], 0 offen offset:{16*j}")
    o(f"""
    s_waitcnt vmcnt(0)
    s_branch K2_ACCDONE
K2_STOREACC:
    v_lshlrev_b32 v{D0}, 8, v{D0}
    v_lshl_add_u32 v{D0}, v{D0+2}, 9, v{D0}
    """)
    for j in range(16):
        o(f"buffer_store_dwordx4 {vr(DEN+4*j,4)}, v{D0}, s[24:27], 0 offen offset:{16*j}")
    o(f"""
    s_mov_b32 s46, 1
    s_cmp_lg_u32 s47, 0
    s_cselect_b32 s48, 0, 16
    s_add_u32 s45, s45, s48
K2_AGAIN:
    s_waitcnt vmcnt(0) lgkmcnt(0)
    s_barrier
    """)
    celladdr()
    cellissue(first)
    o("s_branch K2_RESTART")
    return o.text()

def desc(name, nv, ns):
    return f"""
.p2align 6
.amdhsa_kernel {name}
  .amdhsa_next_free_vgpr {nv}
  .amdhsa_next_free_sgpr {ns}
  .amdhsa_accum_offset {(nv+3)//4*4}
  .amdhsa_group_segment_fixed_size 0
  .amdhsa_kernarg_size 96
  .amdhsa_user_sgpr_count 2
  .amdhsa_user_sgpr_kernarg_segment_ptr 1
  .amdhsa_system_sgpr_workgroup_id_x 1
  .amdhsa_float_denorm_mode_32 3
.end_amdhsa_kernel
"""

def build():
    hdr = open(f"cdna_kernels/{NAME}.s.ref").read().split("; Override launch geometry")[0]
    s = hdr
    s += f"; @launch kernel=part_kernel grid=({P+5},1,1) block=({896 if OPT['K1TLB'] else 832},1,1) lds={LDS1}\n"
    s += f"; @launch kernel=main_kernel grid=({NB},1,1) block=(512,1,1) lds={LDS2}\n"
    s += '.amdgcn_target "amdgcn-amd-amdhsa--gfx950"\n.text\n'
    for nm, body in (("part_kernel", k1()), ("main_kernel", k2())):
        s += f".globl {nm}\n.p2align 8\n.type {nm},@function\n" + body
    s += '.section .rodata,"a"\n' + desc("part_kernel", 52, 102 if DIAG else 24) + desc("main_kernel", 256, 102 if DIAG else 96)
    return s

if __name__ == "__main__":
    if "--diag" in sys.argv:
        sys.argv.remove("--diag"); DIAG = True
    out = sys.argv[1] if len(sys.argv) > 1 else f"cdna_kernels/{NAME}.s"
    open(out, "w").write(build())
```

```python
import sys, struct
NAME = "gather_scatter__edge_featured_mpnn_gatedgcn__graph"
N, E, R, P, CH = 50000, 800000, 196, 250, 3200
NB = 256
WS_WF, WS_OVF, WS_ACC = 0x800000, 0x840000, 0x1100000
OVL = 0x200000
OVS = 25728
K1_HIST = 40960
LDS1 = K1_HIST + 832*4
LCAP = 24
NMS = 208
GS = (LCAP + 2) * 128
L_LIST = 0
L_WB = 8 * GS
L_WU = L_WB + 24576
L_CNT = L_WB + 32768
L_HIST = L_CNT + 1024
L_LG = L_HIST + 256
L_RING = L_LG + 64
BLK, SLOT = 1040, 4160
RINGW = 3 * SLOT
L_NM = L_RING
L_OWN = (L_RING + 4 * RINGW + 127) // 128 * 128
LDS2 = L_RING + 8 * RINGW
def f32(x): return "0x%08x" % struct.unpack("<I", struct.pack("<f", x))[0]
NLOG2E = -1.4426950408889634

DIAG = False
import os
OPT = dict(XMAP=1, K1PF=0, K1SC="sc1", OUTSC="sc1", K2SC="", EPI=1, OSL=0, MO=0, YD=1, STSET=0, K1TLB=0, OUTTLB=0, OWNE=0, PRIO=0, PK=0, K1T2=0, OUTT=1, SPLIT=1, OWNO=0, R3E=1, OWN67=0, EARLY=0, K1LSC="nt", CELLSC="nt", OWNSC="nt", ROWSC="", PRESC="", PREN=3, HD=0)
for kv in os.environ.get("GOPT", "").split(","):
    if kv:
        k_, v_ = kv.split("="); OPT[k_] = v_.replace("_", " ") if k_.endswith("SC") else int(v_)
ST_REGS = [56, 58, 60, 62, 96, 74, 64, 66, 68, 70, 72, 98]
def stamp(o, i, real=False):
    if DIAG:
        r = ST_REGS[i]
        o(f"s_mem{'real' if real else ''}time s[{r}:{r+1}]")
def dump(o, n, base, extra=()):
    if DIAG:
        o("s_load_dwordx2 s[100:101], s[0:1], 88\ns_waitcnt lgkmcnt(0)\ns_mov_b64 exec, -1")
        for i in range(n): o(f"v_writelane_b32 v1, s{ST_REGS[i]}, {i}")
        for j, x in enumerate(extra): o(f"v_writelane_b32 v1, {x}, {n+j}")
        o(f"""v_mbcnt_lo_u32_b32 v2, -1, 0
        v_mbcnt_hi_u32_b32 v2, -1, v2
        s_lshl_b32 s99, s2, 4
        s_add_u32 s99, s99, s3
        s_lshl_b32 s99, s99, 8
        s_add_u32 s99, s99, {base}
        v_lshl_add_u32 v2, v2, 2, s99
        global_store_dword v2, v1, s[100:101]""")

class A:
    def __init__(s): s.l = []
    def __call__(s, t):
        for x in t.strip("\n").split("\n"):
            x = x.strip()
            if x.startswith("@SA") or x.startswith("@SB"):
                if OPT["STSET"] == (0 if x[2] == "A" else 1): stamp(s, int(x.split()[1]))
                continue
            if x.startswith("@ST") or x.startswith("@RT"):
                stamp(s, int(x.split()[1]), x.startswith("@RT")); continue
            if x: s.l.append(x if x.endswith(":") else "    " + x)
    def text(s): return "\n".join(s.l) + "\n"

def vr(a, n): return f"v[{a}:{a+n-1}]"

def scan(o, v):
    for sh in (1, 2, 4, 8):
        o(f"s_nop 1\nv_add_u32_dpp v{v}, v{v}, v{v} row_shr:{sh} row_mask:0xf bank_mask:0xf")
    o(f"s_nop 1\nv_add_u32_dpp v{v}, v{v}, v{v} row_bcast:15 row_mask:0xa bank_mask:0xf")
    o(f"s_nop 1\nv_add_u32_dpp v{v}, v{v}, v{v} row_bcast:31 row_mask:0xc bank_mask:0xf")

def k1():
    o = A()
    o(f"""
part_kernel:
    s_cmp_ge_u32 s2, {P}
    s_cbranch_scc1 K1_W
@RT 4
@ST 0
    s_load_dwordx2 s[8:9], s[0:1], 24
    s_load_dwordx4 s[4:7], s[0:1], 8
    s_load_dwordx2 s[10:11], s[0:1], 88
    s_load_dwordx2 s[22:23], s[0:1], 0
    """)
    if OPT["K1TLB"]:
        o("v_readfirstlane_b32 s15, v0\ns_cmp_ge_u32 s15, 832\ns_cbranch_scc1 K1_T")
    o(f"""
    v_cmp_gt_u32 vcc, 800, v0
    s_mul_i32 s12, s2, {CH*4}
    v_lshlrev_b32 v1, 4, v0
    v_add_u32 v2, s12, v1
    v_lshrrev_b32 v3, 1, v2
    v_lshlrev_b32 v4, 2, v0
    v_mov_b32 v40, 0
    v_mov_b32 v41, 0
    v_mov_b32 v42, 0
    v_mov_b32 v43, 0
    v_mov_b32 v6, 1
    s_mov_b64 s[20:21], vcc
    s_mov_b64 exec, vcc
    s_waitcnt lgkmcnt(0)
@ST 1
    global_load_dwordx4 v[8:11], v2, s[8:9] {OPT['K1LSC']}
    global_load_dwordx4 v[12:15], v2, s[6:7] {OPT['K1LSC']}
    global_load_dwordx2 v[16:17], v3, s[4:5] {OPT['K1LSC']}
    """)
    npf = 0
    if OPT["K1PF"]:
        o(f"""
        s_mul_i32 s13, s2, {200*128}
        v_cmp_gt_u32 vcc, {200*OPT["K1PF"]}, v0
        v_lshlrev_b32 v5, {8-OPT["K1PF"]}, v0
        v_add_u32 v5, s13, v5
        v_min_u32 v5, {N*128-4}, v5
        s_or_b32 vcc_lo, vcc_lo, 1
        s_and_b64 exec, exec, vcc
        global_load_dword v44, v5, s[22:23]
        """)
        npf = 1
    o(f"""
    s_mov_b64 exec, -1
    ds_write_b32 v4, v40 offset:{K1_HIST}
    ds_write_b128 v1, v[40:43]
    ds_write_b128 v1, v[40:43] offset:13312
    ds_write_b128 v1, v[40:43] offset:26624
    s_movk_i32 s13, -{R}
    s_mov_b32 s14, 0xffff0000
    s_mov_b64 exec, s[20:21]
    s_waitcnt lgkmcnt(0)
    s_barrier
    s_waitcnt vmcnt({2+npf})
@ST 2
    """)
    for i in range(4):
        o(f"""
        v_mul_u32_u24 v{20+i}, 0x14e5f, v{8+i}
        v_lshrrev_b32 v{20+i}, 24, v{20+i}
        v_lshlrev_b32 v{24+i}, 2, v{20+i}
        ds_add_rtn_u32 v{28+i}, v{24+i}, v6 offset:{K1_HIST}
        """)
    for i in range(4):
        o(f"""
        v_mad_i32_i24 v{8+i}, v{20+i}, s13, v{8+i}
        v_add_u32 v{8+i}, 1, v{8+i}
        """)
    o(f"""
    s_waitcnt vmcnt({npf})
    v_lshl_or_b32 v32, v16, 16, v12
    v_and_or_b32 v33, v16, s14, v13
    v_lshl_or_b32 v34, v17, 16, v14
    v_and_or_b32 v35, v17, s14, v15
    """)
    if OPT["K1T2"]:
        o(f"""
        s_andn2_b64 exec, -1, s[20:21]
        s_cbranch_execz K1_NOT2
        s_load_dwordx2 s[16:17], s[0:1], 72
        s_lshr_b32 s15, s2, 3
        s_mul_i32 s15, s15, 6144
        v_and_b32 v5, 31, v0
        v_mul_u32_u24 v5, 200000, v5
        v_add_u32 v5, s15, v5
        v_mov_b32 v7, {WS_WF}
        """)
        if OPT["K1T2"] & 1: o("global_load_dword v44, v5, s[22:23]")
        if OPT["K1T2"] & 4: o("global_load_dword v45, v7, s[10:11]")
        if OPT["K1T2"] & 2: o("s_waitcnt lgkmcnt(0)\nglobal_load_dword v46, v5, s[16:17]")
        o("K1_NOT2:\ns_mov_b64 exec, s[20:21]")
    o(f"""
    s_waitcnt lgkmcnt(0)
@ST 3
    v_max3_u32 v36, v28, v29, v30
    v_max_u32 v36, v36, v31
    v_cmp_lt_u32 vcc, 23, v36
    s_cbranch_vccnz K1_OVF
    """)
    def put(i):
        o(f"""
        v_and_b32 v36, 7, v{28+i}
        v_lshl_add_u32 v36, v{24+i}, 1, v36
        v_lshrrev_b32 v37, 3, v{28+i}
        v_lshlrev_b32 v36, 4, v36
        v_lshl_add_u32 v38, v37, 2, v36
        v_add_u32 v39, v37, v36
        ds_write_b32 v38, v{32+i}
        ds_write_b8 v39, v{8+i} offset:12
        """)
    for i in range(4): put(i)
    sc = (" " + OPT["K1SC"]) if OPT["K1SC"] else ""
    o(f"""
K1_PUTDONE:
    s_mov_b64 exec, -1
    s_lshl_b32 s12, s2, 15
    v_add_u32 v2, s12, v1
    v_add_u32 v3, 13312, v2
    v_add_u32 v5, 26624, v2
    v_cmp_gt_u32 vcc, {2048-2*832}, v0
    v_mov_b32 v7, {K1_HIST+1024}
    s_waitcnt lgkmcnt(0)
    s_barrier
@ST 6
    ds_read_b128 v[8:11], v1
    ds_read_b128 v[12:15], v1 offset:13312
    ds_read_b128 v[16:19], v1 offset:26624
    ds_read_b32 v20, v7
    s_waitcnt lgkmcnt(3)
    global_store_dwordx4 v2, v[8:11], s[10:11]{sc}
    s_waitcnt lgkmcnt(2)
    global_store_dwordx4 v3, v[12:15], s[10:11]{sc}
    s_and_b64 exec, exec, vcc
    s_waitcnt lgkmcnt(0)
    global_store_dwordx4 v5, v[16:19], s[10:11]{sc}
    s_mov_b64 exec, -1
    s_mul_i32 s12, s2, {OVS}
    s_add_u32 s12, s12, {WS_OVF+OVL}
    v_cmp_eq_u32 vcc, 831, v0
    v_mov_b32 v7, s12
    s_and_b64 exec, exec, vcc
    global_store_dword v7, v20, s[10:11] {OPT["K2SC"]}
    """)
    if DIAG: o("@ST 7\ns_waitcnt vmcnt(0)\n@ST 8\n@RT 5\ns_mov_b64 exec, -1\nv_lshrrev_b32 v1, 6, v0\ns_nop 1\nv_readfirstlane_b32 s3, v1")
    dump(o, 9, 0x4800000)
    o(f"""
    s_endpgm
K1_OVF:
    s_mul_i32 s12, s2, {OVS}
    s_add_u32 s12, s12, {WS_OVF+OVL+16}
    s_lshl_b32 s15, s2, 13
    s_add_u32 s15, s15, {WS_OVF}
    v_mov_b32 v7, {K1_HIST+1024}
    """)
    for i in range(4):
        o(f"""
        s_mov_b64 exec, s[20:21]
        v_cmp_lt_u32 vcc, 23, v{28+i}
        v_cmp_lt_u32 s[16:17], 31, v{28+i}
        s_andn2_b64 exec, exec, vcc
        """)
        put(i)
        o(f"""
        s_andn2_b64 exec, vcc, s[16:17]
        s_cbranch_execz K1_OVM{i}
        v_and_b32 v36, 7, v{28+i}
        v_lshl_add_u32 v36, v{24+i}, 1, v36
        v_lshlrev_b32 v37, 4, v36
        v_lshl_add_u32 v36, v36, 2, s15
        ds_write_b8 v37, v{8+i} offset:15
        global_store_dword v36, v{32+i}, s[10:11] {OPT["K2SC"]}
K1_OVM{i}:
        s_mov_b64 exec, s[16:17]
        s_cbranch_execz K1_OVN{i}
        ds_add_rtn_u32 v36, v7, v6
        v_mov_b32 v46, v{32+i}
        v_lshlrev_b32 v47, 2, v{8+i}
        v_lshl_or_b32 v47, v{20+i}, 16, v47
        s_waitcnt lgkmcnt(0)
        v_lshl_add_u32 v36, v36, 3, s12
        global_store_dwordx2 v36, v[46:47], s[10:11]
K1_OVN{i}:
        """)
    o("s_branch K1_PUTDONE")
    if OPT["K1TLB"]:
        m = OPT["K1TLB"]
        o(f"""
K1_T:
        v_and_b32 v5, 63, v0
        s_barrier
        s_waitcnt lgkmcnt(0)
        """)
        if m & 8:
            o(f"""
            s_mul_i32 s12, s2, {CH*4}
            s_add_u32 s12, s12, {CH*4-4}
            v_mov_b32 v7, s12
            global_load_dword v44, v7, s[6:7]
            s_waitcnt vmcnt(0)
            """)
        if m & 2:
            o(f"""
            s_lshl_b32 s13, s2, 15
            v_lshlrev_b32 v7, 12, v5
            v_and_b32 v7, 0x7fff, v7
            v_add_u32 v7, s13, v7
            global_load_dword v45, v7, s[10:11]
            """)
        if m & 1:
            o(f"""
            s_lshr_b32 s13, s2, 3
            s_mul_i32 s13, s13, {50*4096}
            v_lshlrev_b32 v7, 12, v5
            v_add_u32 v7, s13, v7
            v_min_u32 v7, {N*128-4}, v7
            global_load_dword v44, v7, s[22:23]
            """)
        if m & 4:
            o(f"""
            s_mul_i32 s13, s2, {200*128}
            v_cmp_gt_u32 vcc, 50, v5
            v_lshl_add_u32 v7, v5, 7, s13
            s_mov_b64 exec, vcc
            """)
            for i in range(4):
                o(f"global_load_dword v44, v7, s[22:23]")
                if i < 3: o(f"v_add_u32 v7, {50*128}, v7")
        o("s_barrier\ns_endpgm")
    o(f"""
K1_W:
    s_cmp_ge_u32 s2, {P+5}
    s_cbranch_scc1 K1_END
    s_load_dwordx8 s[4:11], s[0:1], 32
    s_load_dwordx2 s[12:13], s[0:1], 64
    s_load_dwordx2 s[14:15], s[0:1], 88
    s_sub_u32 s3, s2, {P}
    v_bfe_u32 v1, v0, 2, 1
    v_lshlrev_b32 v1, 5, v1
    v_and_b32 v2, 3, v0
    v_add_u32 v1, v1, v2
    v_bfe_u32 v2, v0, 3, 2
    v_lshl_add_u32 v1, v2, 2, v1
    s_cmp_eq_u32 s3, 4
    s_cbranch_scc1 K1_WC
    v_cmp_gt_u32 vcc, 512, v0
    s_and_b64 exec, exec, vcc
    s_cbranch_execz K1_END
    v_bfe_u32 v2, v0, 8, 1
    v_lshl_add_u32 v1, v2, 4, v1
    v_lshlrev_b32 v1, 1, v1
    v_bfe_u32 v2, v0, 5, 1
    v_lshl_add_u32 v1, v2, 12, v1
    v_bfe_u32 v2, v0, 6, 2
    v_lshl_add_u32 v1, v2, 10, v1
    s_waitcnt lgkmcnt(0)
    s_mov_b32 s18, 1.0
    s_cmp_eq_u32 s3, 0
    s_cselect_b32 s16, s6, s12
    s_cselect_b32 s17, s7, s13
    s_cselect_b32 s18, {f32(NLOG2E)}, s18
    s_cmp_eq_u32 s3, 2
    s_cselect_b32 s16, s4, s16
    s_cselect_b32 s17, s5, s17
    s_cmp_eq_u32 s3, 3
    s_cselect_b32 s16, s10, s16
    s_cselect_b32 s17, s11, s17
    """)
    for j in range(8):
        o(f"global_load_ushort v{8+j}, v1, s[16:17] offset:{128*j}")
    o(f"""
    s_lshl_b32 s19, s3, 13
    s_add_u32 s19, s19, {WS_WF}
    v_lshlrev_b32 v2, 4, v0
    v_add_u32 v2, s19, v2
    s_waitcnt vmcnt(0)
    """)
    for j in range(8):
        o(f"v_lshlrev_b32 v{8+j}, 16, v{8+j}\nv_mul_f32 v{8+j}, s18, v{8+j}")
    for j in range(4):
        o(f"v_cvt_pk_bf16_f32 v{16+j}, v{8+2*j}, v{9+2*j}")
    o(f"""
    global_store_dwordx4 v2, v[16:19], s[14:15] {OPT["K2SC"]}
    s_endpgm
K1_WC:
    v_cmp_gt_u32 vcc, 128, v0
    s_and_b64 exec, exec, vcc
    s_cbranch_execz K1_END
    v_bfe_u32 v2, v0, 6, 1
    v_lshl_add_u32 v1, v2, 4, v1
    v_lshlrev_b32 v1, 1, v1
    s_waitcnt lgkmcnt(0)
    global_load_ushort v8, v1, s[8:9]
    v_lshlrev_b32 v2, 2, v0
    v_add_u32 v2, {WS_WF+32768}, v2
    v_and_b32 v3, 32, v0
    v_cmp_eq_u32 vcc, 0, v3
    v_mov_b32 v4, 0
    s_waitcnt vmcnt(0)
    v_lshlrev_b32 v8, 16, v8
    v_mul_f32 v8, {f32(NLOG2E)}, v8
    v_cvt_pk_bf16_f32 v9, v4, v8
    v_sub_f32 v10, v8, v9
    v_cvt_pk_bf16_f32 v10, v4, v10
    v_or_b32 v9, 0x7f7f, v9
    v_cndmask_b32 v9, v10, v9, vcc
    global_store_dword v2, v9, s[14:15] {OPT["K2SC"]}
K1_END:
    s_endpgm
    """)
    return o.text()

VT, XL, XA, CK, D0, LD, LE, EP, WC, X, WB, WV, AP, DEN, NUM = 0, 1, 2, 3, 4, 8, 9, 10, 12, 16, 32, 64, 96, 128, 160
G = (192, 224); V = (208, 240)
ENT, DLR, RK, OF, QC, INF, QK, WA = 128, 144, 160, 176, 180, 192, 220, 224
NS = 16
PM = 64

def mf(d, a, b, c):
    cs = "0" if c is None else vr(c, 16)
    return f"v_mfma_f32_32x32x16_bf16 {vr(d,16)}, {vr(a,4)}, {vr(b,4)}, {cs}"
def mfe(t):
    return f"v_mfma_f32_32x32x8_bf16 {vr(G[t],16)}, {vr(WC+2*t,2)}, {vr(EP,2)}, {vr(AP+16*t,16)}"
def mf_list(t):
    l = [mfe(t)]
    for s in range(4):
        l.append(mf(G[t], WB+16*t+4*s, X+4*s, G[t]))
        l.append(mf(V[t], WV+16*t+4*s, X+4*s, None if s == 0 else V[t]))
    return l
def dma(i, k="ROWSC"):
    so = ("s28", "s29", "s30", "0")[i]
    off = f" offset:{BLK*i}" if i else ""
    return f"buffer_load_dwordx4 v{D0+i}, s[4:7], {so} offen{off} {OPT[k]} lds"
def mads():
    return [f"v_mad_u32_u16 v{D0+i}, v{D0+i}, s31, v{CK}" for i in range(4)]
def xread(s): return f"ds_read_b128 {vr(X+4*s,4)}, v{XA}" + (f" offset:{16*s}" if s else "")
ADV = ["s_add_u32 s42, s42, %d" % SLOT, "s_cmp_eq_u32 s42, s41", "s_cselect_b32 s42, s40, s42"]

def phase(o, t, mfs, slots, fill1, fill2, pk1=(), pk2=()):
    g, v, den, num = G[t], V[t], DEN+16*t, NUM+16*t
    e = [f"v_exp_f32 v{g+i}, v{g+i}" for i in range(16)]
    r = [f"v_rcp_f32 v{g+i}, v{g+i}" for i in range(16)]
    def M(i):
        o(mfs[i])
        for x in slots[i]: o(x)
    k = 0
    for i in range(5):
        M(i)
        n = 3 if i < 4 else 4
        for x in e[k:k+n]: o(x)
        k += n
    for x in fill1: o(x)
    pk1 = list(pk1)
    for i in range(8):
        o(f"v_pk_add_f32 {vr(g+2*i,2)}, {vr(g+2*i,2)}, s[34:35]")
        if pk1: o(pk1.pop(0))
    k = 0
    for i in range(5, 9):
        M(i)
        n = 3 if i < 8 else 7
        for x in r[k:k+n]: o(x)
        k += n
    for x in fill2: o(x)
    pk2 = list(pk2)
    for i in range(8):
        o(f"v_pk_add_f32 {vr(den+2*i,2)}, {vr(den+2*i,2)}, {vr(g+2*i,2)}")
        if pk2: o(pk2.pop(0))
        o(f"v_pk_fma_f32 {vr(num+2*i,2)}, {vr(g+2*i,2)}, {vr(v+2*i,2)}, {vr(num+2*i,2)}")
        if pk2: o(pk2.pop(0))

def k2():
    o = A()
    def pay(i): return ENT + 4*(i//3) + i % 3 if i < 12 else QK + i - 12
    def dl4(i): return DLR + i
    def meta(q): return ENT + 4*q + 3
    def pm(i): return f"s[{PM+2*i}:{PM+2*i+1}]"
    T, T2 = G[0], V[0]
    def celladdr():
        o(f"""
        v_mbcnt_lo_u32_b32 v20, -1, 0
        v_mbcnt_hi_u32_b32 v20, -1, v20
        s_lshl_b32 s48, s3, 6
        v_add_u32 v21, s48, v20
        v_lshrrev_b32 v22, 3, v21
        v_and_b32 v23, 7, v20
        v_lshlrev_b32 v23, 4, v23
        s_lshl_b32 s49, s2, 7
        v_lshl_add_u32 v{OF}, v22, 15, s49
        v_add_u32 v{OF}, v{OF}, v23
        """)
        for q in range(1, 4):
            o(f"v_add_u32 v{OF+q}, {q*64*32768}, v{OF}")
    def cellissue(qs):
        for q in qs:
            o(f"buffer_load_dwordx4 {vr(ENT+4*q,4)}, v{OF+q}, s[8:11], 0 offen {OPT['CELLSC']}")
    first = (0, 1) if OPT["SPLIT"] else (0, 1, 2, 3)
    o(f"""
main_kernel:
    s_cmp_ge_u32 s2, {NB}
    s_cbranch_scc1 K2_END
    s_load_dwordx2 s[8:9], s[0:1], 88
    s_load_dwordx2 s[4:5], s[0:1], 0
    s_load_dwordx2 s[20:21], s[0:1], 72
@RT 4
@ST 0
    v_lshrrev_b32 v1, 6, v0
    s_mov_b32 s10, {P*32768}
    s_mov_b32 s11, 0x20000
    v_readfirstlane_b32 s3, v1
    """)
    if OPT["XMAP"]:
        o("""
        s_and_b32 s48, s2, 7
        s_lshr_b32 s2, s2, 3
        s_lshl_b32 s48, s48, 5
        s_or_b32 s2, s2, s48
        """)
    celladdr()
    o("s_waitcnt lgkmcnt(0)")
    cellissue(first)
    o(f"""
    s_add_u32 s16, s8, {WS_WF}
    s_addc_u32 s17, s9, 0
    s_mov_b32 s18, {32768+1024}
    s_mov_b32 s19, 0x20000
    s_add_u32 s12, s8, {WS_OVF}
    s_addc_u32 s13, s9, 0
    s_mov_b32 s14, {OVL+P*OVS+128}
    s_mov_b32 s15, 0x20000
    s_mov_b32 s45, 0
    s_mov_b32 s46, 0
    s_mov_b32 s47, 0
    s_movk_i32 s36, {48*4}
    s_sub_u32 s4, s4, {3*BLK}
    s_subb_u32 s5, s5, 0
    s_mov_b32 s6, {N*128+3*BLK}
    s_mov_b32 s7, 0x20000
    s_mov_b32 s22, {N*128}
    s_mov_b32 s23, 0x20000
    s_add_u32 s24, s8, {WS_ACC}
    s_addc_u32 s25, s9, 0
    s_mov_b32 s26, {N*512}
    s_mov_b32 s27, 0x20000
K2_RESTART:
    v_lshlrev_b32 v28, 2, v20
    v_lshlrev_b32 v24, 4, v21
    v_mov_b32 v96, 0xffff
    v_mov_b32 v97, 0xffff
    v_mov_b32 v98, 0xffff
    v_mov_b32 v99, 0xffff
    v_add_u32 v25, {L_NM}, v24
    v_mul_u32_u24 v187, {NMS}, v21
    v_add_u32 v187, {L_NM}, v187
    v_cmp_gt_u32 vcc, 256, v21
    v_lshlrev_b32 v30, 2, v21
    ds_write_b128 v25, v[96:99]
    ds_write_b128 v25, v[96:99] offset:8192
    v_cndmask_b32 v187, 0, v187, vcc
    ds_write_b128 v25, v[96:99] offset:16384
    ds_write_b128 v25, v[96:99] offset:24576
    v_cmp_gt_u32 vcc, {(L_RING-L_CNT)//4}, v21
    ds_write_b128 v25, v[96:99] offset:32768
    s_mul_i32 s48, s3, {GS}
    v_add_u32 v26, s48, v28
    ds_write_b32 v26, v96
    s_and_b64 exec, exec, vcc
    ds_write_b32 v30, v187 offset:{L_CNT}
    s_mov_b64 exec, -1
    """)
    if OPT["SPLIT"]: cellissue((2, 3))
    o(f"""
    v_add_u32 v29, 32768, v28
    buffer_load_dword v{WC}, v29, s[16:19], 0 offen
    buffer_load_dword v{WC+2}, v29, s[16:19], 0 offen offset:256
    s_mov_b32 s28, {3*BLK}
    s_and_b32 s48, s3, 1
    s_lshl_b32 s48, s48, 6
    v_and_b32 v102, 0x30, v20
    v_or_b32 v102, s48, v102
    v_xor_b32 v102, v102, v24
    v_and_b32 v102, {0x7ff if OPT['OWN67'] else 0xfff}, v102
    s_mul_i32 s51, s2, {R*128}
    v_add_u32 v184, s51, v102
    v_lshlrev_b32 v110, 4, v20
    s_and_b32 s50, s3, {1 if OPT['OWN67'] else 3}
    s_lshl_b32 s50, s50, 10
    v_lshrrev_b32 v186, 2, v{OF}
    ; constants
    s_mov_b32 s29, {2*BLK}
    s_mov_b32 s30, {BLK}
    s_mov_b32 s31, 128
    s_mov_b32 s32, {N}
    s_mov_b32 s34, 1.0
    s_mov_b32 s35, 1.0
    s_mov_b32 s39, 0
    s_mul_i32 s40, s3, {RINGW}
    s_add_u32 s40, s40, {L_RING}
    s_add_u32 s41, s40, {RINGW}
    s_lshl_b32 s48, s3, 2
    s_lshr_b32 s44, 0x72106453, s48
    s_and_b32 s44, s44, 7
    s_waitcnt lgkmcnt(0)
    s_barrier
    v_mov_b32 v{WC+1}, 0
    v_mov_b32 v{WC+3}, 0
    v_mov_b32 v{EP+1}, 0
    v_mov_b32 v31, 4
    v_bfe_u32 v{CK}, v20, 4, 1
    v_lshlrev_b32 v{CK}, 6, v{CK}
    v_xor_b32 v{CK}, v{CK}, v23
    ; column c = l&31, h = l>>5; r = (c3 c2 c4); i = c&3
    v_bfe_u32 v102, v20, 2, 2
    v_bfe_u32 v103, v20, 4, 1
    v_lshl_or_b32 v102, v102, 1, v103
    v_and_b32 v103, 3, v20
    v_lshl_or_b32 v{LE}, v102, 2, v103
    v_lshlrev_b32 v{LE}, 2, v{LE}
    v_lshrrev_b32 v{LD}, 3, v20
    v_lshlrev_b32 v{LD}, 4, v{LD}
    s_cmp_ge_u32 s44, 3
    s_cselect_b32 s49, 0x7c, 0x3c
    s_cmp_eq_u32 s44, 0
    s_cselect_b32 s49, 0x1c, s49
    s_mul_i32 s48, s44, {GS}
    v_and_b32 v189, s49, v{LD}
    v_and_b32 v190, s49, v{LE}
    v_add_u32 v189, s48, v189
    v_add_u32 v190, s48, v190
    v_add_u32 v{LE}, s48, v{LE}
    v_add_u32 v{LD}, s48, v{LD}
    v_and_b32 v122, 32, v20
    v_lshlrev_b32 v122, 1, v122
    v_add_u32 v122, {L_OWN}, v122
    s_add_u32 s49, s49, 4
    s_ff1_i32_b32 s54, s49
    s_sub_u32 s54, s54, 2
    s_lshr_b32 s37, 1024, s54
    v_lshrrev_b32 v188, s54, v20
    v_bfe_u32 v191, v20, 0, s54
    v_lshl_add_u32 v191, v191, 2, s48
    s_lshl_b32 s55, s49, 2
    v_mad_u32_u24 v{OF}, v188, s55, v191
    v_add_u32 v{OF+1}, s49, v{OF}
    v_add_u32 v{OF+2}, s49, v{OF+1}
    v_add_u32 v{OF+3}, s49, v{OF+2}
    v_lshlrev_b32 v188, 4, v188
    v_mul_u32_u24 v{XL}, {BLK}, v103
    v_lshl_add_u32 v{XL}, v102, 7, v{XL}
    v_bfe_u32 v103, v102, 1, 1
    v_lshrrev_b32 v102, 5, v20
    v_xor_b32 v103, v103, v102
    v_lshl_add_u32 v{XL}, v103, 6, v{XL}
    s_mul_i32 s48, s2, {R}
    s_sub_u32 s49, {N}, s48
    s_min_u32 s49, s49, {R}
    v_cmp_gt_u32 s[52:53], s49, v21
    v_add_u32 v109, s48, v21
    s_or_b32 s38, s45, s47
    s_cbranch_scc1 K2_SLOWLOAD
    """)
    for i in range(12, 16): o(f"s_mov_b64 {pm(i)}, 0")
    def ext(i):
        q, j = (i//3, i % 3) if i < 12 else (i-12, 3)
        o(f"v_lshlrev_b32_sdwa v{dl4(i)}, 2, v{meta(q)} dst_sel:DWORD dst_unused:UNUSED_PAD src0_sel:DWORD src1_sel:BYTE_{j}")
    def atom(i): o(f"ds_add_rtn_u32 v{RK+i}, v{dl4(i)}, v31 offset:{L_CNT-4}")
    def cnt(i):
        o(f"s_mov_b64 exec, {pm(i)}"); atom(i)
    def put(sl):
        for i in sl: o(f"s_mov_b64 exec, {pm(i)}\nds_write_b32 v{RK+i}, v{pay(i)}")
        o("s_mov_b64 exec, -1")
    def wload():
        o("s_lshl_b32 s48, s3, 10")
        for i in (2, 0, 1, 3):
            o(f"s_add_u32 m0, s48, {L_WB+8192*i}\ns_movk_i32 s49, {8192*i}")
            o("buffer_load_dwordx4 v24, s[16:19], s49 offen lds")
    def ownload():
        o(f"v_cmp_gt_u32 vcc, {32 if OPT['OWNO'] else 288}, v21")
        for i in range(7):
            o(f"s_add_u32 m0, s50, {L_OWN+4096*i}\ns_add_u32 s49, s28, {4096*i}")
            if i == 6: o("s_or_b64 exec, vcc, 1")
            o(f"buffer_load_dwordx4 v184, s[4:7], s49 offen {OPT['OWNSC']} lds")
        o("s_mov_b64 exec, -1")
    def own67():
        o(f"v_cmp_gt_u32 vcc, {384+32}, v21")
        for i in range(13):
            o(f"s_add_u32 m0, s50, {L_OWN+2048*i}\ns_add_u32 s49, s28, {2048*i}")
            if i == 12: o("s_or_b64 exec, vcc, 1")
            o(f"buffer_load_dwordx4 v184, s[4:7], s49 offen {OPT['OWNSC']} lds")
        o("s_mov_b64 exec, -1")
    def wyoung():
        o("s_and_b32 s48, s3, 3\ns_lshl_b32 s48, s48, 10\nv_and_b32 v107, 0xfff, v24")
        for i in (4, 5, 0, 1, 2, 3, 6, 7):
            o(f"s_add_u32 m0, s48, {L_WB+4096*i}\ns_movk_i32 s49, {4096*i}")
            o("buffer_load_dwordx4 v107, s[16:19], s49 offen lds")
    def count(late):
        for half in ((0, 1), (2, 3)):
            if half == (2, 3) and not OPT["OWN67"] and not OPT["EARLY"]: wload(); late += 4
            for q in half:
                o(f"s_waitcnt vmcnt({3-q+late})")
                if q == 0: o("@SA 1")
                for j in range(3): ext(3*q+j)
                for j in range(3):
                    o(f"v_cmpx_ne_u32 {pm(3*q+j)}, 0, v{dl4(3*q+j)}"); atom(3*q+j)
                o("s_mov_b64 exec, -1")
            if half == (2, 3):
                o(f"""
                v_or3_b32 v102, v{meta(0)}, v{meta(1)}, v{meta(2)}
                v_or_b32 v102, v102, v{meta(3)}
                v_cmp_lt_u32 vcc, 0xffffff, v102
                """)
            if OPT["SPLIT"] or half == (2, 3):
                o("s_waitcnt lgkmcnt(0)")
                put(range(3*half[0], 3*half[0]+6) if OPT["SPLIT"] else range(12))
    if OPT["OWN67"]:
        o("s_cmp_lt_u32 s3, 6\ns_cbranch_scc1 K2_CNT0")
        own67()
        count(15)
        o("s_branch K2_CNT1\nK2_CNT0:")
    if OPT["EARLY"]:
        o("s_cmp_lt_u32 s3, 4\ns_cbranch_scc1 K2_CNT0")
        wyoung(); ownload()
        count(17)
        o("s_branch K2_CNT1\nK2_CNT0:")
    count(2)
    o("K2_CNT1:")
    o(f"""
    s_cbranch_vccnz K2_X3
K2_COUNTED:
@SA 11
    s_cmp_ge_u32 s3, 4
    s_cbranch_scc1 K2_YOUNG
    """)
    if OPT["OWNO"]: ownload()
    o(f"""
    s_waitcnt lgkmcnt(0)
    s_barrier
@SA 2
    ds_read_b32 v111, v30 offset:{L_CNT}
    v_mov_b32 v107, {L_LG+36}
    v_mov_b32 v108, 1
    s_waitcnt lgkmcnt(0)
    v_sub_u32 v111, v111, v187
    v_cmp_lt_u32 vcc, s36, v111
    v_min_u32 v111, s36, v111
    v_sub_u32 v112, 252, v111
    s_mov_b64 exec, s[52:53]
    ds_add_rtn_u32 v113, v112, v108 offset:{L_HIST}
    s_and_b64 exec, exec, vcc
    ds_write_b32 v107, v107
    s_mov_b64 exec, -1
    s_waitcnt lgkmcnt(0)
    s_barrier
    ds_read_b32 v114, v28 offset:{L_HIST}
    s_waitcnt lgkmcnt(0)
    v_mov_b32 v115, v114
    """)
    scan(o, 114)
    o(f"""
    v_sub_u32 v114, v114, v115
    ds_bpermute_b32 v114, v112, v114
    v_mov_b32 v118, 128
    s_movk_i32 s48, {GS}
    s_waitcnt lgkmcnt(0)
    v_add_u32 v114, v114, v113
    v_add_u32 v115, 56, v114
    v_lshrrev_b32 v116, 5, v115
    v_and_b32 v117, 31, v115
    v_add_u32 v115, 8, v114
    v_cmp_gt_u32 vcc, 40, v114
    v_cmp_gt_u32 s[54:55], 8, v114
    v_lshrrev_b32 v119, 4, v115
    v_and_b32 v120, 15, v115
    v_cndmask_b32 v116, v116, v119, vcc
    v_cndmask_b32 v117, v117, v120, vcc
    v_cndmask_b32 v118, v118, 64, vcc
    v_cndmask_b32 v117, v117, v114, s[54:55]
    v_cndmask_b32 v118, v118, 32, s[54:55]
    v_lshlrev_b32 v117, 2, v117
    v_mad_u32_u24 v117, v116, s48, v117
    v_mul_u32_u24 v118, v111, v118
    v_add_u32 v118, 511, v118
    v_lshrrev_b32 v118, 9, v118
    v_lshlrev_b32 v116, 2, v116
    s_mov_b64 exec, s[52:53]
    ds_write_b32 v117, v109
    ds_max_u32 v116, v118 offset:{L_LG}
    s_mov_b64 exec, -1
    s_waitcnt vmcnt({7 if OPT['OWNO'] else 0})
    s_branch K2_B4
K2_YOUNG:
    s_waitcnt lgkmcnt(0)
    s_barrier
@SA 2
    """)
    if not OPT["OWNO"] and not OPT["OWN67"] and not OPT["EARLY"]: ownload()
    o("s_barrier")
    if not OPT["OWN67"]: o(f"s_waitcnt vmcnt({0 if OPT['OWNO'] else 7})")
    def outtlb():
        o(f"""
        v_lshlrev_b32 v107, 12, v20
        v_min_u32 v107, {R*128-4}, v107
        s_mov_b32 m0, {L_CNT}
        s_mov_b64 exec, 0xff
        buffer_load_dword v107, s[20:23], s51 offen lds
        s_mov_b64 exec, -1
        """)
    if OPT["OUTTLB"] and not OPT["OWN67"]: outtlb()
    o(f"""
K2_B4:
    s_cmp_lg_u32 s39, 0
    s_cbranch_scc1 K2_X3PUT
K2_B4B:
    s_mul_i32 s48, s2, {R}
    s_movk_i32 s49, {NMS}
    s_waitcnt lgkmcnt(0)
    s_barrier
@ST 3
    ds_read_b32 v120, v191
    ds_read_b32 v123, v28 offset:{L_LG}
    ds_read_b32 v121, v190
    ds_read_b128 {vr(D0,4)}, v189
    s_waitcnt lgkmcnt(2)
@SB 1
    v_subrev_u32 v120, s48, v120
    v_min_u32 v120, {R}, v120
    v_mad_u32_u24 v120, v120, s49, v188
    v_add_u32 v119, s37, v120
    v_add_u32 v118, s37, v119
    v_cmp_lt_u32 vcc, {LCAP}, v123
    ds_read_b128 {vr(T2,4)}, v120 offset:{L_NM}
    ds_read_b128 {vr(T2+4,4)}, v119 offset:{L_NM}
    ds_read_b128 {vr(T2+8,4)}, v118 offset:{L_NM}
    v_readlane_b32 s43, v123, s44
    s_waitcnt lgkmcnt(4)
    v_subrev_u32 v121, s48, v121
    v_min_u32 v121, {R-1}, v121
    v_lshlrev_b32 v124, 3, v121
    v_and_b32 v124, 0x70, v124
    v_xor_b32 v124, v124, v122
    v_lshl_add_u32 v124, v121, 7, v124
    v_xor_b32 v125, 16, v124
    v_xor_b32 v126, 32, v124
    v_xor_b32 v127, 48, v124
    s_mov_b32 s47, 0
    s_and_b32 s33, vcc_lo, 0x3ff
    s_cbranch_scc1 K2_FLAGS
K2_FLAGSDONE:
    s_lshl_b32 s48, s43, 7
    v_add_u32 v121, s48, v{LD}
    v_mov_b32 v{VT}, v110
    s_mov_b32 m0, s40
    {'s_mov_b32 s76, s43' if DIAG else ''}
    """)
    def build_list():
        for k in range(3):
            for e in range(4):
                o(f"ds_write_b32 v{OF+e}, v{T2+4*k+e} offset:{128+1024*k}")
        o(f"""
        ds_write_b128 v121, {vr(D0,4)} offset:128
        ds_read_b128 {vr(D0,4)}, v{LD} offset:128
        ds_read_b128 {vr(T,4)}, v{LD} offset:256
        ds_read_b128 {vr(T+4,4)}, v{LD} offset:384
        ds_read_b128 {vr(T+8,4)}, v{LD} offset:512
        ds_read_b32 v{EP}, v{LE} offset:128
        """)
    def frags(reg, off):
        for f in range(8): o(f"ds_read_b128 {vr(reg+4*f,4)}, v{VT} offset:{L_WB+off+1024*f}")
    def rowdma(n):
        if n: o(f"s_add_u32 m0, s40, {n*SLOT}")
        for i in range(4): o(f"v_mad_u32_u16 v{D0+i}, v{T+4*(n-1)+i if n else D0+i}, s31, v{CK}")
        for i in range(4): o(dma(i, "PRESC" if n < OPT["PREN"] else "ROWSC"))
    def own_x():
        for s_ in range(4): o(f"ds_read_b128 {vr(X+4*s_,4)}, v{124+s_}")
    def zero():
        for i in range(64): o(f"v_mov_b32 v{DEN+i}, 0")
    def aprime():
        for s_ in range(4):
            for t in range(2):
                o(mf(AP+16*t, WA+16*t+4*s_, X+4*s_, None if s_ == 0 else AP+16*t))
    o("s_cmp_ge_u32 s3, 4\ns_cbranch_scc1 K2_YPRE")
    o("s_waitcnt lgkmcnt(0)\n@SB 11")
    build_list()
    o("s_waitcnt lgkmcnt(4)\n@SB 2\ns_barrier\n@ST 6")
    if OPT["OWN67"]:
        rowdma(0)
        o("s_waitcnt lgkmcnt(0)")
        rowdma(1)
        if OPT["R3E"]: rowdma(2)
        zero()
        o("s_barrier")
        own_x(); frags(WA, 16384)
        o("s_waitcnt lgkmcnt(8)\ns_barrier")
        frags(WB, 0)
        o("s_waitcnt lgkmcnt(8)")
        aprime()
        frags(WV, 8192)
        if not OPT["R3E"]: rowdma(2)
    else:
        rowdma(0)
        frags(WA, 16384)
        o("s_waitcnt lgkmcnt(8)")
        rowdma(1)
        frags(WB, 0)
        if OPT["R3E"]: rowdma(2)
        frags(WV, 8192)
        zero()
        if OPT["OWNO"]: o(f"s_waitcnt vmcnt({12 if OPT['R3E'] else 8})")
        o("s_barrier")
        own_x()
        o("s_waitcnt lgkmcnt(0)")
        aprime()
        o("s_barrier")
        if not OPT["R3E"]: rowdma(2)
    o("s_branch K2_PRE\nK2_YPRE:")
    o("s_waitcnt lgkmcnt(0)\n@SB 11\n@SB 2\ns_barrier\n@ST 6")
    if OPT["OWN67"]:
        wyoung()
        if OPT["OUTTLB"]: outtlb()
        o("s_mov_b32 m0, s40")
    build_list()
    zero()
    o(f"s_waitcnt vmcnt({OPT['OUTTLB']})\ns_barrier")
    own_x()
    o("s_waitcnt lgkmcnt(0)\ns_barrier")
    if OPT["YD"] == 0: rowdma(0); rowdma(1); rowdma(2)
    frags(WA, 16384)
    frags(WB, 0)
    o("s_waitcnt lgkmcnt(8)")
    aprime()
    frags(WV, 8192)
    if OPT["YD"]: rowdma(0); rowdma(1); rowdma(2)
    o("K2_PRE:")
    for i in range(4): o(f"v_mad_u32_u16 v{D0+i}, v{T+8+i}, s31, v{CK}")
    o(f"""
    v_pk_sub_u16 v{EP}, v{EP}, s32 clamp
    v_add_u32 v{XA}, s40, v{XL}
    v_add_u32 v{LD}, {5*128}, v{LD}
    v_add_u32 v{LE}, {2*128}, v{LE}
    s_cmp_lg_u32 s46, 0
    s_cbranch_scc1 K2_LOADACC
K2_ACCDONE:
    s_mov_b32 m0, s40
    s_add_u32 s42, s40, {SLOT}
    s_mov_b32 s54, {f32(NLOG2E)}
    s_mov_b32 s55, {f32(NLOG2E)}
    """)
    for i in range(16): o(f"v_pk_mul_f32 {vr(AP+2*i,2)}, {vr(AP+2*i,2)}, s[54:55]")
    o(f"""
    s_waitcnt vmcnt(8)
@ST 7
    """)
    for s_ in range(4): o(xread(s_))
    ml = mf_list(0)
    o(ml[0])
    o("s_waitcnt lgkmcnt(0)")
    for i in range(4): o(ml[1+2*i]); o(dma(i))
    for i in range(4): o(ml[2+2*i])
    o(f"""
    v_add_u32 v{XA}, {SLOT}, v{XA}
@ST 8
    s_sub_u32 s43, s43, 1
    s_cbranch_scc1 K2_LOOPEND
    .p2align 4
K2_LOOP:
    """)
    sl = [[] for _ in range(9)]
    sl[0] = [f"ds_read_b32 v{VT}, v{LE}"]
    sl[1] = ["s_waitcnt vmcnt(8)"]
    sl[2] = [xread(0)]
    sl[3] = [f"ds_read_b128 {vr(D0,4)}, v{LD}"]
    sl[4] = [xread(1)]
    sl[5] = ["s_mov_b32 m0, s42"]
    sl[6] = [xread(2)]
    sl[7] = ["s_waitcnt lgkmcnt(2)"]
    sl[8] = [xread(3)]
    def mo(l): return [l[0]] + l[1::2] + l[2::2] if OPT["MO"] else l
    if OPT["MO"]:
        sl = [[] for _ in range(9)]
        sl[0] = [f"ds_read_b32 v{VT}, v{LE}"]
        sl[1] = [f"ds_read_b128 {vr(D0,4)}, v{LD}"]
        sl[2] = ["s_mov_b32 m0, s42"]
        sl[4] = ["s_waitcnt vmcnt(8) lgkmcnt(0)"]
        for i in range(4): sl[5+i] = [xread(i)]
    phase(o, 0, mo(mf_list(1)), sl,
          [f"v_add_u32 v{LE}, 128, v{LE}", f"v_add_u32 v{LD}, 128, v{LD}"],
          [f"v_pk_sub_u16 v{EP}, v{VT}, s32 clamp"] + mads(),
          pk1=(), pk2=ADV + ["s_waitcnt lgkmcnt(0)"])
    sl = [[] for _ in range(9)]
    for i in range(4): sl[i] = [dma(i)]
    if OPT["PRIO"]:
        sl[5] = ["s_cmp_lg_u32 s43, s50"]
        sl[6] = ["s_cbranch_scc1 K2_NOP", "s_setprio 0", "K2_NOP:"]
    sl[8] = ["s_sub_u32 s43, s43, 1"]
    phase(o, 1, mo(mf_list(0)), sl, [f"v_add_u32 v{XA}, s42, v{XL}"], [])
    o(f"""
    s_cbranch_scc0 K2_LOOP
K2_LOOPEND:
@ST 9
    v_mbcnt_lo_u32_b32 v{D0}, -1, 0
    v_mbcnt_hi_u32_b32 v{D0}, -1, v{D0}
    v_lshlrev_b32 v{D0+1}, 4, v{D0}
    v_subrev_u32 v{LE}, 128, v{LE}
    ds_read_b32 v{VT}, v{LE}
    """)
    if OPT["OUTT"]:
        o(f"""
        v_subrev_u32 v{LD}, 512, v{LD}
        ds_read_b128 {vr(AP,4)}, v{LD}
        v_add_u32 v{AP+4}, {"s42" if OPT["OSL"] else "s40"}, v{D0+1}
        v_add_u32 v{AP+5}, {"s42" if OPT["OSL"] else "s40"}, v{XL}
        s_mov_b64 s[54:55], -1
        """)
    for f in range(8):
        o(f"ds_read_b128 {vr(WB+4*f,4)}, v{D0+1} offset:{L_WU+1024*f}")
    o(f"""
    s_mov_b32 s48, 0
    s_cmp_ge_u32 s44, 3
    s_cbranch_scc1 K2_NOCOMB
    s_mov_b32 s48, 8
    s_mov_b32 s55, 0
    """)
    if OPT["EPI"]: o("s_cmp_eq_u32 s33, 0\ns_cbranch_scc1 K2_SPLITEP")
    for i in range(64): o(f"v_add_f32_dpp v{DEN+i}, v{DEN+i}, v{DEN+i} row_ror:8 row_mask:0xf bank_mask:0xf")
    o(f"""
    s_cmp_lg_u32 s44, 0
    s_cbranch_scc1 K2_NOCOMB
    s_mov_b32 s48, 12
    s_mov_b32 s54, 0xffff
    """)
    for i in range(64): o(f"v_add_f32_dpp v{DEN+i}, v{DEN+i}, v{DEN+i} row_ror:4 row_mask:0xf bank_mask:0xf")
    o(f"""
K2_NOCOMB:
    v_and_b32 v{D0+2}, s48, v{D0}
    v_cmp_eq_u32 vcc, 0, v{D0+2}
    v_mov_b32 v{D0+3}, 0xffff
    v_lshrrev_b32 v{D0}, 5, v{D0}
    s_mov_b32 s49, 0xffff0000
    """)
    if OPT["EPI"]:
        for t in (1, 0):
            for i in range(8):
                o(f"v_lshlrev_b32 v{V[t]+2*i}, 16, v{X+8*t+i}")
                o(f"v_and_b32 v{V[t]+2*i+1}, s49, v{X+8*t+i}")
    o(f"""
    s_waitcnt lgkmcnt(0)
    v_cndmask_b32 v{D0+2}, v{D0+3}, v{VT}, vcc
    s_cmp_lg_u32 s33, 0
    s_cbranch_scc1 K2_STOREACC
    s_mov_b32 s52, {f32(1e-6)}
    s_mov_b32 s53, {f32(1e-6)}
    v_lshlrev_b32 v{D0}, 6, v{D0}
    v_lshl_add_u32 v{D0}, v{D0+2}, 7, v{D0}
    """)
    for i in range(16): o(f"v_pk_add_f32 {vr(DEN+2*i,2)}, {vr(DEN+2*i,2)}, s[52:53]")
    k = 0
    for s in range(4):
        for t in range(2):
            o(mf(G[t], WB+16*t+4*s, X+4*s, (V[t] if OPT['EPI'] else None) if s == 0 else G[t]))
            n = 3 if (s, t) != (3, 1) else 11
            for i in range(k, k+n): o(f"v_rcp_f32 v{DEN+i}, v{DEN+i}")
            k += n
    o("s_mov_b32 s49, 0xffff0000\ns_nop 0")
    for t in range(2):
        for i in range(8):
            o(f"v_pk_fma_f32 {vr(G[t]+2*i,2)}, {vr(NUM+16*t+2*i,2)}, {vr(DEN+16*t+2*i,2)}, {vr(G[t]+2*i,2)}")
    for t in range(2):
        for i in range(8):
            if OPT["EPI"]:
                o(f"v_max_f32 v{G[t]+2*i}, v{V[t]+2*i}, v{G[t]+2*i}")
                o(f"v_max_f32 v{G[t]+2*i+1}, v{V[t]+2*i+1}, v{G[t]+2*i+1}")
            else:
                o(f"v_lshlrev_b32 v{V[t]+2*i}, 16, v{X+8*t+i}")
                o(f"v_and_b32 v{V[t]+2*i+1}, s49, v{X+8*t+i}")
                o(f"v_max_f32 v{G[t]+2*i}, 0, v{G[t]+2*i}")
                o(f"v_max_f32 v{G[t]+2*i+1}, 0, v{G[t]+2*i+1}")
                o(f"v_pk_add_f32 {vr(G[t]+2*i,2)}, {vr(G[t]+2*i,2)}, {vr(V[t]+2*i,2)}")
            o(f"v_cvt_pk_bf16_f32 v{DEN+8*t+i}, v{G[t]+2*i}, v{G[t]+2*i+1}")
            if i % 4 == 3:
                j = 2*t + i//4
                if OPT["OUTT"]:
                    if j == 0: o(f"s_waitcnt vmcnt({8*OPT['OSL']})")
                    o(f"ds_write_b128 v{AP+5}, {vr(DEN+4*j,4)}" + (f" offset:{16*j}" if j else ""))
                else: o(f"buffer_store_dwordx4 {vr(DEN+4*j,4)}, v{D0}, s[20:23], 0 offen" + (f" offset:{16*j}" if j else "") + (" " + OPT["OUTSC"] if OPT["OUTSC"] else ""))
    if OPT["OUTT"]:
        o("K2_OUT:\ns_mov_b64 exec, s[54:55]")
        for i in range(4): o(f"ds_read_b128 {vr(AP+8+4*i,4)}, v{AP+4}" + (f" offset:{BLK*i}" if i else ""))
        for i in range(4): o(f"v_mad_u32_u16 v{AP+i}, v{AP+i}, s31, v{CK}")
        for i in range(4):
            o(f"s_waitcnt lgkmcnt({3-i})")
            o(f"buffer_store_dwordx4 {vr(AP+8+4*i,4)}, v{AP+i}, s[20:23], 0 offen" + (" " + OPT["OUTSC"] if OPT["OUTSC"] else ""))
    o("@ST 10\n@RT 5")
    if DIAG: o("s_getreg_b32 s77, hwreg(HW_REG_HW_ID)\ns_getreg_b32 s78, hwreg(HW_REG_XCC_ID)")
    dump(o, 12, 0x4000000, ("s76", "s77", "s78", "s44"))
    if DIAG and OPT["HD"]:
        o(f"""
        s_cmp_lg_u32 s2, 100
        s_cbranch_scc1 K2_END
        s_cmp_lg_u32 s3, {OPT["HD"]}
        s_cbranch_scc1 K2_END
        s_load_dwordx2 s[80:81], s[0:1], 80
        s_add_u32 s100, s100, {0x4800000 + 100*16*256}
        s_addc_u32 s101, s101, 0
        s_load_dwordx8 s[84:91], s[100:101], 0
        s_load_dword s92, s[100:101], 32
        v_mbcnt_lo_u32_b32 v2, -1, 0
        v_lshlrev_b32 v2, 2, v2
        v_subrev_u32 v1, s56, v1
        s_waitcnt lgkmcnt(0)
        s_sub_u32 s92, s92, s84
        s_sub_u32 s86, s86, s84
        s_sub_u32 s89, s89, s88
        s_sub_u32 s93, s96, s88
        s_sub_u32 s94, s74, s88
        v_writelane_b32 v1, s93, 4
        v_writelane_b32 v1, s94, 5
        v_writelane_b32 v1, s86, 12
        v_writelane_b32 v1, s92, 13
        v_writelane_b32 v1, s89, 14
        v_writelane_b32 v1, s76, 15
        s_mov_b64 exec, 0xffff
        global_store_dword v2, v1, s[80:81]
        """)
    o(f"""
K2_END:
    s_endpgm
    """)
    if OPT["EPI"]:
        assert OPT["OUTT"]
        o(f"""
K2_SPLITEP:
        v_add_u32 v{AP+6}, 32, v{AP+5}
        s_mov_b32 s50, 0xff00ff00
        s_mov_b32 s51, 0xff00ff00
        s_mov_b32 s52, {f32(1e-6)}
        s_mov_b32 s53, {f32(1e-6)}
        s_mov_b32 s49, 0xffff0000
        v_mov_b32_dpp v{AP+5}, v{AP+6} row_ror:8 row_mask:0xf bank_mask:0xc
        """)
        ml = [mf(G[t], WB+16*t+4*s, X+4*s, None if s == 0 else G[t]) for s in range(4) for t in range(2)]
        k = 0
        for b in (DEN, NUM):
            for i in range(16):
                o(f"v_add_f32_dpp v{b+i}, v{b+i}, v{b+i} row_ror:8 row_mask:0xf bank_mask:0x3")
                o(f"v_add_f32_dpp v{b+i}, v{b+16+i}, v{b+16+i} row_ror:8 row_mask:0xf bank_mask:0xc")
                k += 1
                if k == 8: o("s_waitcnt lgkmcnt(0)")
                if k >= 8 and (k - 8) % 3 == 0 and ml: o(ml.pop(0))
        assert not ml
        o("s_cmp_lg_u32 s44, 0\ns_cbranch_scc1 K2_SPLIT2\ns_mov_b32 s54, 0xffff")
        for b in (DEN, NUM):
            for i in range(16):
                o(f"v_add_f32_dpp v{b+i}, v{b+i}, v{b+i} row_shl:4 row_mask:0xf bank_mask:0x5")
        o("K2_SPLIT2:")
        for i in range(8): o(f"v_cndmask_b32 v{DEN+16+i}, v{X+i}, v{X+8+i}, s[50:51]")
        for i in range(8): o(f"v_pk_add_f32 {vr(DEN+2*i,2)}, {vr(DEN+2*i,2)}, s[52:53]")
        for i in range(16): o(f"v_rcp_f32 v{DEN+i}, v{DEN+i}")
        for i in range(16): o(f"v_cndmask_b32 v{G[0]+i}, v{G[0]+i}, v{G[1]+i}, s[50:51]")
        for i in range(8): o(f"v_pk_fma_f32 {vr(G[0]+2*i,2)}, {vr(NUM+2*i,2)}, {vr(DEN+2*i,2)}, {vr(G[0]+2*i,2)}")
        for i in range(8):
            o(f"v_lshlrev_b32 v{V[0]+2*i}, 16, v{DEN+16+i}")
            o(f"v_and_b32 v{V[0]+2*i+1}, s49, v{DEN+16+i}")
            o(f"v_max_f32 v{G[0]+2*i}, 0, v{G[0]+2*i}")
            o(f"v_max_f32 v{G[0]+2*i+1}, 0, v{G[0]+2*i+1}")
            o(f"v_pk_add_f32 {vr(G[0]+2*i,2)}, {vr(G[0]+2*i,2)}, {vr(V[0]+2*i,2)}")
            o(f"v_cvt_pk_bf16_f32 v{DEN+i}, v{G[0]+2*i}, v{G[0]+2*i+1}")
            if i % 4 == 3:
                if i == 3: o(f"s_waitcnt vmcnt({8*OPT['OSL']})")
                o(f"ds_write_b128 v{AP+5}, {vr(DEN+4*(i//4),4)}" + (" offset:16" if i == 7 else ""))
        o("s_branch K2_OUT")
    o(f"""
K2_FLAGS:
    s_and_b32 s48, s33, 0xff
    s_cbranch_scc0 K2_PEND
    s_movk_i32 s36, {LCAP*4}
    s_mov_b32 s47, 1
    s_branch K2_AGAIN
K2_PEND:
    s_and_b32 s47, s33, 0x200
    s_cbranch_scc0 K2_FLAGSDONE
    s_cmp_eq_u32 s38, 0
    s_cbranch_scc1 K2_AGAIN
    """)
    for i in range(NS):
        o(f"v_cmp_le_u32 vcc, v{INF+i}, v{RK+i}\ns_and_b64 {pm(i)}, {pm(i)}, vcc")
    def more():
        o(f"""
        v_mov_b32 v107, {L_LG+32}
        s_and_b64 exec, exec, vcc
        ds_write_b32 v107, v107
        s_mov_b64 exec, -1
        """)
    def clamp(sl):
        o(f"s_add_u32 s48, s36, {L_NM-NMS}")
        for i in sl: o(f"v_mad_u32_u24 v{INF+i}, v{dl4(i)}, {NMS//4}, s48")
        o("s_waitcnt lgkmcnt(0)")
        for i in sl: o(f"v_min_u32 v{RK+i}, v{INF+i}, v{RK+i}")
    o(f"""
    s_branch K2_FLAGSDONE
K2_X3:
    s_mov_b32 s39, 1
    v_mul_u32_u24 v102, {OVS}, v22
    v_mov_b32 v104, 0
    """)
    for q in range(4):
        ext(12+q)
        o(f"""
        s_cmp_lg_u32 s47, 0
        s_cbranch_scc1 K2_X3K{q}
        v_cmp_ne_u32 {pm(12+q)}, 0, v{dl4(12+q)}
K2_X3K{q}:
        s_mov_b32 s48, {q*64*8192}
        s_mov_b64 exec, {pm(12+q)}
        buffer_load_dword v{pay(12+q)}, v186, s[12:15], s48 offen
        """)
        atom(12+q)
        o(f"""
        s_mov_b64 exec, -1
        v_cmp_ne_u32 vcc, 0, v{dl4(12+q)}
        s_mov_b32 s48, 0x80808080
        s_and_b32 exec_lo, vcc_lo, s48
        s_and_b32 exec_hi, vcc_hi, s48
        s_cbranch_execz K2_X3N{q}
        s_mov_b32 s48, {OVL+q*64*OVS}
        buffer_load_dword v103, v102, s[12:15], s48 offen
        s_waitcnt vmcnt(0)
        v_or_b32 v104, v104, v103
K2_X3N{q}:
        s_mov_b64 exec, -1
        """)
    o("v_cmp_ne_u32 vcc, 0, v104")
    more()
    clamp(range(12, 16))
    o(f"""
    s_branch K2_COUNTED
K2_X3PUT:
    {'s_waitcnt vmcnt(0)' if OPT['OWN67'] or OPT['EARLY'] else ''}
    """)
    put(range(12, 16))
    o(f"""
    s_branch K2_B4B
K2_SLOWLOAD:
    """)
    if OPT["OWN67"]:
        o("s_cmp_lt_u32 s3, 6\ns_cbranch_scc1 K2_SL0")
        own67()
        o("K2_SL0:")
    elif OPT["EARLY"]:
        o("s_cmp_lt_u32 s3, 4\ns_cbranch_scc1 K2_SL0")
        wyoung(); ownload()
        o("K2_SL0:")
    else: wload()
    o(f"""
    s_waitcnt vmcnt(0)
    s_cmp_lg_u32 s45, 0
    s_cbranch_scc1 K2_CHUNK
    """)
    for i in range(12): ext(i)
    for i in range(12): cnt(i)
    o("s_mov_b64 exec, -1")
    clamp(range(12))
    put(range(12))
    o(f"""
    s_branch K2_X3
K2_CHUNK:
    s_sub_u32 s48, s45, 16
    s_lshl_b32 s49, s48, 3
    v_mul_u32_u24 v102, {OVS}, v22
    v_add_u32 v102, {OVL}, v102
    v_lshrrev_b32 v105, 3, v23
    v_add_u32 v105, s48, v105
    v_add_u32 v106, 1, v105
    v_or_b32 v107, 28, v28
    v_mov_b32 v104, 0
    """)
    for q in range(4):
        o(f"""
        ds_bpermute_b32 v108, v107, v{meta(q)}
        v_mov_b32 v{QC+q}, 0
        v_add3_u32 v103, v102, v23, s49
        s_waitcnt lgkmcnt(0)
        v_cmp_lt_u32 vcc, 0xffffff, v108
        s_mov_b64 exec, vcc
        buffer_load_dword v{QC+q}, v102, s[12:15], 0 offen
        buffer_load_dwordx4 {vr(INF+4*q,4)}, v103, s[12:15], 0 offen offset:16
        s_waitcnt vmcnt(0)
        s_mov_b64 exec, -1
        v_max_u32 v104, v104, v{QC+q}
        v_add_u32 v102, {64*OVS}, v102
        """)
    o(f"""
    s_cmp_lg_u32 s47, 0
    s_cbranch_scc1 K2_CKEEP
    """)
    for q in range(4):
        o(f"s_mov_b64 {pm(3*q+2)}, 0\ns_mov_b64 {pm(12+q)}, 0")
        for k in range(2):
            o(f"""
            v_cmp_lt_u32 vcc, v{105+k}, v{QC+q}
            v_cmp_eq_u32_sdwa {pm(3*q+k)}, s2, v{INF+4*q+2*k+1} src0_sel:DWORD src1_sel:WORD_1
            s_and_b64 {pm(3*q+k)}, {pm(3*q+k)}, vcc
            """)
    o("K2_CKEEP:")
    sl = [3*q+k for q in range(4) for k in range(2)]
    for q in range(4):
        for k in range(2):
            o(f"v_mov_b32 v{pay(3*q+k)}, v{INF+4*q+2*k}\nv_and_b32 v{dl4(3*q+k)}, 0xffff, v{INF+4*q+2*k+1}")
    o(f"v_cmp_lt_u32 vcc, s45, v104")
    more()
    for i in sl: cnt(i)
    o("s_mov_b64 exec, -1")
    clamp(sl)
    put(sl)
    o(f"""
    s_branch K2_COUNTED
K2_LOADACC:
    s_lshl_b32 s48, s43, 7
    s_sub_u32 s48, s48, 128
    v_add_u32 v{G[0]}, s48, v{LE}
    ds_read_b32 v{G[0]}, v{G[0]}
    v_mbcnt_lo_u32_b32 v{G[0]+1}, -1, 0
    v_mbcnt_hi_u32_b32 v{G[0]+1}, -1, v{G[0]+1}
    s_cmp_ge_u32 s44, 3
    s_cselect_b32 s48, 0, 8
    s_cmp_eq_u32 s44, 0
    s_cselect_b32 s48, 12, s48
    v_and_b32 v{G[0]+2}, s48, v{G[0]+1}
    v_cmp_eq_u32 vcc, 0, v{G[0]+2}
    v_mov_b32 v{G[0]+3}, 0xffff
    v_lshrrev_b32 v{G[0]+1}, 5, v{G[0]+1}
    v_lshlrev_b32 v{G[0]+1}, 8, v{G[0]+1}
    s_waitcnt lgkmcnt(0)
    v_cndmask_b32 v{G[0]}, v{G[0]+3}, v{G[0]}, vcc
    v_lshl_add_u32 v{G[0]}, v{G[0]}, 9, v{G[0]+1}
    """)
    for j in range(16):
        o(f"buffer_load_dwordx4 {vr(DEN+4*j,4)}, v{G[0]}, s[24:27], 0 offen offset:{16*j}")
    o(f"""
    s_waitcnt vmcnt(0)
    s_branch K2_ACCDONE
K2_STOREACC:
    v_lshlrev_b32 v{D0}, 8, v{D0}
    v_lshl_add_u32 v{D0}, v{D0+2}, 9, v{D0}
    """)
    for j in range(16):
        o(f"buffer_store_dwordx4 {vr(DEN+4*j,4)}, v{D0}, s[24:27], 0 offen offset:{16*j}")
    o(f"""
    s_mov_b32 s46, 1
    s_cmp_lg_u32 s47, 0
    s_cselect_b32 s48, 0, 16
    s_add_u32 s45, s45, s48
K2_AGAIN:
    s_waitcnt vmcnt(0) lgkmcnt(0)
    s_barrier
    """)
    celladdr()
    cellissue(first)
    o("s_branch K2_RESTART")
    return o.text()

def desc(name, nv, ns):
    return f"""
.p2align 6
.amdhsa_kernel {name}
  .amdhsa_next_free_vgpr {nv}
  .amdhsa_next_free_sgpr {ns}
  .amdhsa_accum_offset {(nv+3)//4*4}
  .amdhsa_group_segment_fixed_size 0
  .amdhsa_kernarg_size 96
  .amdhsa_user_sgpr_count 2
  .amdhsa_user_sgpr_kernarg_segment_ptr 1
  .amdhsa_system_sgpr_workgroup_id_x 1
  .amdhsa_float_denorm_mode_32 3
.end_amdhsa_kernel
"""

def build():
    hdr = open(f"cdna_kernels/{NAME}.s.ref").read().split("; Override launch geometry")[0]
    s = hdr
    s += f"; @launch kernel=part_kernel grid=({P+5},1,1) block=({896 if OPT['K1TLB'] else 832},1,1) lds={LDS1}\n"
    s += f"; @launch kernel=main_kernel grid=({NB},1,1) block=(512,1,1) lds={LDS2}\n"
    s += '.amdgcn_target "amdgcn-amd-amdhsa--gfx950"\n.text\n'
    for nm, body in (("part_kernel", k1()), ("main_kernel", k2())):
        s += f".globl {nm}\n.p2align 8\n.type {nm},@function\n" + body
    s += '.section .rodata,"a"\n' + desc("part_kernel", 52, 102 if DIAG else 24) + desc("main_kernel", 256, 102 if DIAG else 96)
    return s

if __name__ == "__main__":
    if "--diag" in sys.argv:
        sys.argv.remove("--diag"); DIAG = True
    out = sys.argv[1] if len(sys.argv) > 1 else f"cdna_kernels/{NAME}.s"
    open(out, "w").write(build())
```

```python
import sys, struct
NAME = "gather_scatter__edge_featured_mpnn_gatedgcn__graph"
N, E, R, P, CH = 50000, 800000, 196, 250, 3200
NB = 256
WS_WF, WS_OVF, WS_ACC = 0x800000, 0x840000, 0x1100000
OVL = 0x200000
OVS = 25728
K1_HIST = 40960
LDS1 = K1_HIST + 832*4
LCAP = 24
NMS = 208
GS = (LCAP + 2) * 128
L_LIST = 0
L_WB = 8 * GS
L_WU = L_WB + 24576
L_CNT = L_WB + 32768
L_HIST = L_CNT + 1024
L_LG = L_HIST + 256
L_RING = L_LG + 64
BLK, SLOT = 1040, 4160
RINGW = 3 * SLOT
L_NM = L_RING
L_OWN = (L_RING + 4 * RINGW + 127) // 128 * 128
LDS2 = L_RING + 8 * RINGW
def f32(x): return "0x%08x" % struct.unpack("<I", struct.pack("<f", x))[0]
NLOG2E = -1.4426950408889634

DIAG = False
import os
OPT = dict(XMAP=1, K1PF=0, K1SC="sc1", OUTSC="sc1", K2SC="", EPI=1, OSL=0, MO=0, UNR=0, EPS=1, YD=1, STSET=0, K1TLB=0, OUTTLB=1, OWNE=0, PRIO=0, PK=0, K1T2=0, OUTT=1, SPLIT=1, OWNO=0, R3E=1, OWN67=0, EARLY=0, K1LSC="nt", CELLSC="nt", OWNSC="nt", ROWSC="", PRESC="", PREN=3, HD=0)
for kv in os.environ.get("GOPT", "").split(","):
    if kv:
        k_, v_ = kv.split("="); OPT[k_] = v_.replace("_", " ") if k_.endswith("SC") else int(v_)
ST_REGS = [56, 58, 60, 62, 96, 74, 64, 66, 68, 70, 72, 98]
def stamp(o, i, real=False):
    if DIAG:
        r = ST_REGS[i]
        o(f"s_mem{'real' if real else ''}time s[{r}:{r+1}]")
def dump(o, n, base, extra=()):
    if DIAG:
        o("s_load_dwordx2 s[100:101], s[0:1], 88\ns_waitcnt lgkmcnt(0)\ns_mov_b64 exec, -1")
        for i in range(n): o(f"v_writelane_b32 v1, s{ST_REGS[i]}, {i}")
        for j, x in enumerate(extra): o(f"v_writelane_b32 v1, {x}, {n+j}")
        o(f"""v_mbcnt_lo_u32_b32 v2, -1, 0
        v_mbcnt_hi_u32_b32 v2, -1, v2
        s_lshl_b32 s99, s2, 4
        s_add_u32 s99, s99, s3
        s_lshl_b32 s99, s99, 8
        s_add_u32 s99, s99, {base}
        v_lshl_add_u32 v2, v2, 2, s99
        global_store_dword v2, v1, s[100:101]""")

class A:
    def __init__(s): s.l = []
    def __call__(s, t):
        for x in t.strip("\n").split("\n"):
            x = x.strip()
            if x.startswith("@SA") or x.startswith("@SB"):
                if OPT["STSET"] == (0 if x[2] == "A" else 1): stamp(s, int(x.split()[1]))
                continue
            if x.startswith("@ST") or x.startswith("@RT"):
                stamp(s, int(x.split()[1]), x.startswith("@RT")); continue
            if x: s.l.append(x if x.endswith(":") else "    " + x)
    def text(s): return "\n".join(s.l) + "\n"

def vr(a, n): return f"v[{a}:{a+n-1}]"

def scan(o, v):
    for sh in (1, 2, 4, 8):
        o(f"s_nop 1\nv_add_u32_dpp v{v}, v{v}, v{v} row_shr:{sh} row_mask:0xf bank_mask:0xf")
    o(f"s_nop 1\nv_add_u32_dpp v{v}, v{v}, v{v} row_bcast:15 row_mask:0xa bank_mask:0xf")
    o(f"s_nop 1\nv_add_u32_dpp v{v}, v{v}, v{v} row_bcast:31 row_mask:0xc bank_mask:0xf")

def k1():
    o = A()
    o(f"""
part_kernel:
    s_cmp_ge_u32 s2, {P}
    s_cbranch_scc1 K1_W
@RT 4
@ST 0
    s_load_dwordx2 s[8:9], s[0:1], 24
    s_load_dwordx4 s[4:7], s[0:1], 8
    s_load_dwordx2 s[10:11], s[0:1], 88
    s_load_dwordx2 s[22:23], s[0:1], 0
    """)
    if OPT["K1TLB"]:
        o("v_readfirstlane_b32 s15, v0\ns_cmp_ge_u32 s15, 832\ns_cbranch_scc1 K1_T")
    o(f"""
    v_cmp_gt_u32 vcc, 800, v0
    s_mul_i32 s12, s2, {CH*4}
    v_lshlrev_b32 v1, 4, v0
    v_add_u32 v2, s12, v1
    v_lshrrev_b32 v3, 1, v2
    v_lshlrev_b32 v4, 2, v0
    v_mov_b32 v40, 0
    v_mov_b32 v41, 0
    v_mov_b32 v42, 0
    v_mov_b32 v43, 0
    v_mov_b32 v6, 1
    s_mov_b64 s[20:21], vcc
    s_mov_b64 exec, vcc
    s_waitcnt lgkmcnt(0)
@ST 1
    global_load_dwordx4 v[8:11], v2, s[8:9] {OPT['K1LSC']}
    global_load_dwordx4 v[12:15], v2, s[6:7] {OPT['K1LSC']}
    global_load_dwordx2 v[16:17], v3, s[4:5] {OPT['K1LSC']}
    """)
    npf = 0
    if OPT["K1PF"]:
        o(f"""
        s_mul_i32 s13, s2, {200*128}
        v_cmp_gt_u32 vcc, {200*OPT["K1PF"]}, v0
        v_lshlrev_b32 v5, {8-OPT["K1PF"]}, v0
        v_add_u32 v5, s13, v5
        v_min_u32 v5, {N*128-4}, v5
        s_or_b32 vcc_lo, vcc_lo, 1
        s_and_b64 exec, exec, vcc
        global_load_dword v44, v5, s[22:23]
        """)
        npf = 1
    o(f"""
    s_mov_b64 exec, -1
    ds_write_b32 v4, v40 offset:{K1_HIST}
    ds_write_b128 v1, v[40:43]
    ds_write_b128 v1, v[40:43] offset:13312
    ds_write_b128 v1, v[40:43] offset:26624
    s_movk_i32 s13, -{R}
    s_mov_b32 s14, 0xffff0000
    s_mov_b64 exec, s[20:21]
    s_waitcnt lgkmcnt(0)
    s_barrier
    s_waitcnt vmcnt({2+npf})
@ST 2
    """)
    for i in range(4):
        o(f"""
        v_mul_u32_u24 v{20+i}, 0x14e5f, v{8+i}
        v_lshrrev_b32 v{20+i}, 24, v{20+i}
        v_lshlrev_b32 v{24+i}, 2, v{20+i}
        ds_add_rtn_u32 v{28+i}, v{24+i}, v6 offset:{K1_HIST}
        """)
    for i in range(4):
        o(f"""
        v_mad_i32_i24 v{8+i}, v{20+i}, s13, v{8+i}
        v_add_u32 v{8+i}, 1, v{8+i}
        """)
    o(f"""
    s_waitcnt vmcnt({npf})
    v_lshl_or_b32 v32, v16, 16, v12
    v_and_or_b32 v33, v16, s14, v13
    v_lshl_or_b32 v34, v17, 16, v14
    v_and_or_b32 v35, v17, s14, v15
    """)
    if OPT["K1T2"]:
        o(f"""
        s_andn2_b64 exec, -1, s[20:21]
        s_cbranch_execz K1_NOT2
        s_load_dwordx2 s[16:17], s[0:1], 72
        s_lshr_b32 s15, s2, 3
        s_mul_i32 s15, s15, 6144
        v_and_b32 v5, 31, v0
        v_mul_u32_u24 v5, 200000, v5
        v_add_u32 v5, s15, v5
        v_mov_b32 v7, {WS_WF}
        """)
        if OPT["K1T2"] & 1: o("global_load_dword v44, v5, s[22:23]")
        if OPT["K1T2"] & 4: o("global_load_dword v45, v7, s[10:11]")
        if OPT["K1T2"] & 2: o("s_waitcnt lgkmcnt(0)\nglobal_load_dword v46, v5, s[16:17]")
        o("K1_NOT2:\ns_mov_b64 exec, s[20:21]")
    o(f"""
    s_waitcnt lgkmcnt(0)
@ST 3
    v_max3_u32 v36, v28, v29, v30
    v_max_u32 v36, v36, v31
    v_cmp_lt_u32 vcc, 23, v36
    s_cbranch_vccnz K1_OVF
    """)
    def put(i):
        o(f"""
        v_and_b32 v36, 7, v{28+i}
        v_lshl_add_u32 v36, v{24+i}, 1, v36
        v_lshrrev_b32 v37, 3, v{28+i}
        v_lshlrev_b32 v36, 4, v36
        v_lshl_add_u32 v38, v37, 2, v36
        v_add_u32 v39, v37, v36
        ds_write_b32 v38, v{32+i}
        ds_write_b8 v39, v{8+i} offset:12
        """)
    for i in range(4): put(i)
    sc = (" " + OPT["K1SC"]) if OPT["K1SC"] else ""
    o(f"""
K1_PUTDONE:
    s_mov_b64 exec, -1
    s_lshl_b32 s12, s2, 15
    v_add_u32 v2, s12, v1
    v_add_u32 v3, 13312, v2
    v_add_u32 v5, 26624, v2
    v_cmp_gt_u32 vcc, {2048-2*832}, v0
    v_mov_b32 v7, {K1_HIST+1024}
    s_waitcnt lgkmcnt(0)
    s_barrier
@ST 6
    ds_read_b128 v[8:11], v1
    ds_read_b128 v[12:15], v1 offset:13312
    ds_read_b128 v[16:19], v1 offset:26624
    ds_read_b32 v20, v7
    s_waitcnt lgkmcnt(3)
    global_store_dwordx4 v2, v[8:11], s[10:11]{sc}
    s_waitcnt lgkmcnt(2)
    global_store_dwordx4 v3, v[12:15], s[10:11]{sc}
    s_and_b64 exec, exec, vcc
    s_waitcnt lgkmcnt(0)
    global_store_dwordx4 v5, v[16:19], s[10:11]{sc}
    s_mov_b64 exec, -1
    s_mul_i32 s12, s2, {OVS}
    s_add_u32 s12, s12, {WS_OVF+OVL}
    v_cmp_eq_u32 vcc, 831, v0
    v_mov_b32 v7, s12
    s_and_b64 exec, exec, vcc
    global_store_dword v7, v20, s[10:11] {OPT["K2SC"]}
    """)
    if DIAG: o("@ST 7\ns_waitcnt vmcnt(0)\n@ST 8\n@RT 5\ns_mov_b64 exec, -1\nv_lshrrev_b32 v1, 6, v0\ns_nop 1\nv_readfirstlane_b32 s3, v1")
    dump(o, 9, 0x4800000)
    o(f"""
    s_endpgm
K1_OVF:
    s_mul_i32 s12, s2, {OVS}
    s_add_u32 s12, s12, {WS_OVF+OVL+16}
    s_lshl_b32 s15, s2, 13
    s_add_u32 s15, s15, {WS_OVF}
    v_mov_b32 v7, {K1_HIST+1024}
    """)
    for i in range(4):
        o(f"""
        s_mov_b64 exec, s[20:21]
        v_cmp_lt_u32 vcc, 23, v{28+i}
        v_cmp_lt_u32 s[16:17], 31, v{28+i}
        s_andn2_b64 exec, exec, vcc
        """)
        put(i)
        o(f"""
        s_andn2_b64 exec, vcc, s[16:17]
        s_cbranch_execz K1_OVM{i}
        v_and_b32 v36, 7, v{28+i}
        v_lshl_add_u32 v36, v{24+i}, 1, v36
        v_lshlrev_b32 v37, 4, v36
        v_lshl_add_u32 v36, v36, 2, s15
        ds_write_b8 v37, v{8+i} offset:15
        global_store_dword v36, v{32+i}, s[10:11] {OPT["K2SC"]}
K1_OVM{i}:
        s_mov_b64 exec, s[16:17]
        s_cbranch_execz K1_OVN{i}
        ds_add_rtn_u32 v36, v7, v6
        v_mov_b32 v46, v{32+i}
        v_lshlrev_b32 v47, 2, v{8+i}
        v_lshl_or_b32 v47, v{20+i}, 16, v47
        s_waitcnt lgkmcnt(0)
        v_lshl_add_u32 v36, v36, 3, s12
        global_store_dwordx2 v36, v[46:47], s[10:11]
K1_OVN{i}:
        """)
    o("s_branch K1_PUTDONE")
    if OPT["K1TLB"]:
        m = OPT["K1TLB"]
        o(f"""
K1_T:
        v_and_b32 v5, 63, v0
        s_barrier
        s_waitcnt lgkmcnt(0)
        """)
        if m & 8:
            o(f"""
            s_mul_i32 s12, s2, {CH*4}
            s_add_u32 s12, s12, {CH*4-4}
            v_mov_b32 v7, s12
            global_load_dword v44, v7, s[6:7]
            s_waitcnt vmcnt(0)
            """)
        if m & 2:
            o(f"""
            s_lshl_b32 s13, s2, 15
            v_lshlrev_b32 v7, 12, v5
            v_and_b32 v7, 0x7fff, v7
            v_add_u32 v7, s13, v7
            global_load_dword v45, v7, s[10:11]
            """)
        if m & 1:
            o(f"""
            s_lshr_b32 s13, s2, 3
            s_mul_i32 s13, s13, {50*4096}
            v_lshlrev_b32 v7, 12, v5
            v_add_u32 v7, s13, v7
            v_min_u32 v7, {N*128-4}, v7
            global_load_dword v44, v7, s[22:23]
            """)
        if m & 4:
            o(f"""
            s_mul_i32 s13, s2, {200*128}
            v_cmp_gt_u32 vcc, 50, v5
            v_lshl_add_u32 v7, v5, 7, s13
            s_mov_b64 exec, vcc
            """)
            for i in range(4):
                o(f"global_load_dword v44, v7, s[22:23]")
                if i < 3: o(f"v_add_u32 v7, {50*128}, v7")
        o("s_barrier\ns_endpgm")
    o(f"""
K1_W:
    s_cmp_ge_u32 s2, {P+5}
    s_cbranch_scc1 K1_END
    s_load_dwordx8 s[4:11], s[0:1], 32
    s_load_dwordx2 s[12:13], s[0:1], 64
    s_load_dwordx2 s[14:15], s[0:1], 88
    s_sub_u32 s3, s2, {P}
    v_bfe_u32 v1, v0, 2, 1
    v_lshlrev_b32 v1, 5, v1
    v_and_b32 v2, 3, v0
    v_add_u32 v1, v1, v2
    v_bfe_u32 v2, v0, 3, 2
    v_lshl_add_u32 v1, v2, 2, v1
    s_cmp_eq_u32 s3, 4
    s_cbranch_scc1 K1_WC
    v_cmp_gt_u32 vcc, 512, v0
    s_and_b64 exec, exec, vcc
    s_cbranch_execz K1_END
    v_bfe_u32 v2, v0, 8, 1
    v_lshl_add_u32 v1, v2, 4, v1
    v_lshlrev_b32 v1, 1, v1
    v_bfe_u32 v2, v0, 5, 1
    v_lshl_add_u32 v1, v2, 12, v1
    v_bfe_u32 v2, v0, 6, 2
    v_lshl_add_u32 v1, v2, 10, v1
    s_waitcnt lgkmcnt(0)
    s_mov_b32 s18, 1.0
    s_cmp_eq_u32 s3, 0
    s_cselect_b32 s16, s6, s12
    s_cselect_b32 s17, s7, s13
    s_cselect_b32 s18, {f32(NLOG2E)}, s18
    s_cmp_eq_u32 s3, 2
    s_cselect_b32 s16, s4, s16
    s_cselect_b32 s17, s5, s17
    s_cmp_eq_u32 s3, 3
    s_cselect_b32 s16, s10, s16
    s_cselect_b32 s17, s11, s17
    """)
    for j in range(8):
        o(f"global_load_ushort v{8+j}, v1, s[16:17] offset:{128*j}")
    o(f"""
    s_lshl_b32 s19, s3, 13
    s_add_u32 s19, s19, {WS_WF}
    v_lshlrev_b32 v2, 4, v0
    v_add_u32 v2, s19, v2
    s_waitcnt vmcnt(0)
    """)
    for j in range(8):
        o(f"v_lshlrev_b32 v{8+j}, 16, v{8+j}\nv_mul_f32 v{8+j}, s18, v{8+j}")
    for j in range(4):
        o(f"v_cvt_pk_bf16_f32 v{16+j}, v{8+2*j}, v{9+2*j}")
    o(f"""
    global_store_dwordx4 v2, v[16:19], s[14:15] {OPT["K2SC"]}
    s_endpgm
K1_WC:
    v_cmp_gt_u32 vcc, 128, v0
    s_and_b64 exec, exec, vcc
    s_cbranch_execz K1_END
    v_bfe_u32 v2, v0, 6, 1
    v_lshl_add_u32 v1, v2, 4, v1
    v_lshlrev_b32 v1, 1, v1
    s_waitcnt lgkmcnt(0)
    global_load_ushort v8, v1, s[8:9]
    v_lshlrev_b32 v2, 2, v0
    v_add_u32 v2, {WS_WF+32768}, v2
    v_and_b32 v3, 32, v0
    v_cmp_eq_u32 vcc, 0, v3
    v_mov_b32 v4, 0
    s_waitcnt vmcnt(0)
    v_lshlrev_b32 v8, 16, v8
    v_mul_f32 v8, {f32(NLOG2E)}, v8
    v_cvt_pk_bf16_f32 v9, v4, v8
    v_sub_f32 v10, v8, v9
    v_cvt_pk_bf16_f32 v10, v4, v10
    v_or_b32 v9, 0x7f7f, v9
    v_cndmask_b32 v9, v10, v9, vcc
    global_store_dword v2, v9, s[14:15] {OPT["K2SC"]}
K1_END:
    s_endpgm
    """)
    return o.text()

VT, XL, XA, CK, D0, LD, LE, EP, WC, X, WB, WV, AP, DEN, NUM = 0, 1, 2, 3, 4, 8, 9, 10, 12, 16, 32, 64, 96, 128, 160
G = (192, 224); V = (208, 240)
ENT, DLR, RK, OF, QC, INF, QK, WA = 128, 144, 160, 176, 180, 192, 220, 224
NS = 16
PM = 64

def mf(d, a, b, c):
    cs = "0" if c is None else vr(c, 16)
    return f"v_mfma_f32_32x32x16_bf16 {vr(d,16)}, {vr(a,4)}, {vr(b,4)}, {cs}"
def mfe(t):
    return f"v_mfma_f32_32x32x8_bf16 {vr(G[t],16)}, {vr(WC+2*t,2)}, {vr(EP,2)}, {vr(AP+16*t,16)}"
def mf_list(t):
    l = [mfe(t)]
    for s in range(4):
        l.append(mf(G[t], WB+16*t+4*s, X+4*s, G[t]))
        l.append(mf(V[t], WV+16*t+4*s, X+4*s, None if s == 0 else V[t]))
    return l
def dma(i, k="ROWSC"):
    so = ("s28", "s29", "s30", "0")[i]
    off = f" offset:{BLK*i}" if i else ""
    return f"buffer_load_dwordx4 v{D0+i}, s[4:7], {so} offen{off} {OPT[k]} lds"
def mads():
    return [f"v_mad_u32_u16 v{D0+i}, v{D0+i}, s31, v{CK}" for i in range(4)]
def xread(s): return f"ds_read_b128 {vr(X+4*s,4)}, v{XA}" + (f" offset:{16*s}" if s else "")
ADV = ["s_add_u32 s42, s42, %d" % SLOT, "s_cmp_eq_u32 s42, s41", "s_cselect_b32 s42, s40, s42"]

def phase(o, t, mfs, slots, fill1, fill2, pk1=(), pk2=()):
    g, v, den, num = G[t], V[t], DEN+16*t, NUM+16*t
    e = [f"v_exp_f32 v{g+i}, v{g+i}" for i in range(16)]
    r = [f"v_rcp_f32 v{g+i}, v{g+i}" for i in range(16)]
    def M(i):
        o(mfs[i])
        for x in slots[i]: o(x)
    k = 0
    for i in range(5):
        M(i)
        n = 3 if i < 4 else 4
        for x in e[k:k+n]: o(x)
        k += n
    for x in fill1: o(x)
    pk1 = list(pk1)
    for i in range(8):
        o(f"v_pk_add_f32 {vr(g+2*i,2)}, {vr(g+2*i,2)}, s[34:35]")
        if pk1: o(pk1.pop(0))
    k = 0
    for i in range(5, 9):
        M(i)
        n = 3 if i < 8 else 7
        for x in r[k:k+n]: o(x)
        k += n
    for x in fill2: o(x)
    pk2 = list(pk2)
    for i in range(8):
        o(f"v_pk_add_f32 {vr(den+2*i,2)}, {vr(den+2*i,2)}, {vr(g+2*i,2)}")
        if pk2: o(pk2.pop(0))
        o(f"v_pk_fma_f32 {vr(num+2*i,2)}, {vr(g+2*i,2)}, {vr(v+2*i,2)}, {vr(num+2*i,2)}")
        if pk2: o(pk2.pop(0))

def k2():
    o = A()
    def pay(i): return ENT + 4*(i//3) + i % 3 if i < 12 else QK + i - 12
    def dl4(i): return DLR + i
    def meta(q): return ENT + 4*q + 3
    def pm(i): return f"s[{PM+2*i}:{PM+2*i+1}]"
    T, T2 = G[0], V[0]
    def celladdr():
        o(f"""
        v_mbcnt_lo_u32_b32 v20, -1, 0
        v_mbcnt_hi_u32_b32 v20, -1, v20
        s_lshl_b32 s48, s3, 6
        v_add_u32 v21, s48, v20
        v_lshrrev_b32 v22, 3, v21
        v_and_b32 v23, 7, v20
        v_lshlrev_b32 v23, 4, v23
        s_lshl_b32 s49, s2, 7
        v_lshl_add_u32 v{OF}, v22, 15, s49
        v_add_u32 v{OF}, v{OF}, v23
        """)
        for q in range(1, 4):
            o(f"v_add_u32 v{OF+q}, {q*64*32768}, v{OF}")
    def cellissue(qs):
        for q in qs:
            o(f"buffer_load_dwordx4 {vr(ENT+4*q,4)}, v{OF+q}, s[8:11], 0 offen {OPT['CELLSC']}")
    first = (0, 1) if OPT["SPLIT"] else (0, 1, 2, 3)
    o(f"""
main_kernel:
    s_cmp_ge_u32 s2, {NB}
    s_cbranch_scc1 K2_END
    s_load_dwordx2 s[8:9], s[0:1], 88
    s_load_dwordx2 s[4:5], s[0:1], 0
    s_load_dwordx2 s[20:21], s[0:1], 72
@RT 4
@ST 0
    v_lshrrev_b32 v1, 6, v0
    s_mov_b32 s10, {P*32768}
    s_mov_b32 s11, 0x20000
    v_readfirstlane_b32 s3, v1
    """)
    if OPT["XMAP"]:
        o("""
        s_and_b32 s48, s2, 7
        s_lshr_b32 s2, s2, 3
        s_lshl_b32 s48, s48, 5
        s_or_b32 s2, s2, s48
        """)
    celladdr()
    o("s_waitcnt lgkmcnt(0)")
    cellissue(first)
    o(f"""
    s_add_u32 s16, s8, {WS_WF}
    s_addc_u32 s17, s9, 0
    s_mov_b32 s18, {32768+1024}
    s_mov_b32 s19, 0x20000
    s_add_u32 s12, s8, {WS_OVF}
    s_addc_u32 s13, s9, 0
    s_mov_b32 s14, {OVL+P*OVS+128}
    s_mov_b32 s15, 0x20000
    s_mov_b32 s45, 0
    s_mov_b32 s46, 0
    s_mov_b32 s47, 0
    s_movk_i32 s36, {48*4}
    s_sub_u32 s4, s4, {3*BLK}
    s_subb_u32 s5, s5, 0
    s_mov_b32 s6, {N*128+3*BLK}
    s_mov_b32 s7, 0x20000
    s_mov_b32 s22, {N*128}
    s_mov_b32 s23, 0x20000
    s_add_u32 s24, s8, {WS_ACC}
    s_addc_u32 s25, s9, 0
    s_mov_b32 s26, {N*512}
    s_mov_b32 s27, 0x20000
K2_RESTART:
    v_lshlrev_b32 v28, 2, v20
    v_lshlrev_b32 v24, 4, v21
    v_mov_b32 v96, 0xffff
    v_mov_b32 v97, 0xffff
    v_mov_b32 v98, 0xffff
    v_mov_b32 v99, 0xffff
    v_add_u32 v25, {L_NM}, v24
    v_mul_u32_u24 v187, {NMS}, v21
    v_add_u32 v187, {L_NM}, v187
    v_cmp_gt_u32 vcc, 256, v21
    v_lshlrev_b32 v30, 2, v21
    ds_write_b128 v25, v[96:99]
    ds_write_b128 v25, v[96:99] offset:8192
    v_cndmask_b32 v187, 0, v187, vcc
    ds_write_b128 v25, v[96:99] offset:16384
    ds_write_b128 v25, v[96:99] offset:24576
    v_cmp_gt_u32 vcc, {(L_RING-L_CNT)//4}, v21
    ds_write_b128 v25, v[96:99] offset:32768
    s_mul_i32 s48, s3, {GS}
    v_add_u32 v26, s48, v28
    ds_write_b32 v26, v96
    s_and_b64 exec, exec, vcc
    ds_write_b32 v30, v187 offset:{L_CNT}
    s_mov_b64 exec, -1
    """)
    if OPT["SPLIT"]: cellissue((2, 3))
    o(f"""
    v_add_u32 v29, 32768, v28
    buffer_load_dword v{WC}, v29, s[16:19], 0 offen
    buffer_load_dword v{WC+2}, v29, s[16:19], 0 offen offset:256
    s_mov_b32 s28, {3*BLK}
    s_and_b32 s48, s3, 1
    s_lshl_b32 s48, s48, 6
    v_and_b32 v102, 0x30, v20
    v_or_b32 v102, s48, v102
    v_xor_b32 v102, v102, v24
    v_and_b32 v102, {0x7ff if OPT['OWN67'] else 0xfff}, v102
    s_mul_i32 s51, s2, {R*128}
    v_add_u32 v184, s51, v102
    v_lshlrev_b32 v110, 4, v20
    s_and_b32 s50, s3, {1 if OPT['OWN67'] else 3}
    s_lshl_b32 s50, s50, 10
    v_lshrrev_b32 v186, 2, v{OF}
    ; constants
    s_mov_b32 s29, {2*BLK}
    s_mov_b32 s30, {BLK}
    s_mov_b32 s31, 128
    s_mov_b32 s32, {N}
    s_mov_b32 s34, 1.0
    s_mov_b32 s35, 1.0
    s_mov_b32 s39, 0
    s_mul_i32 s40, s3, {RINGW}
    s_add_u32 s40, s40, {L_RING}
    s_add_u32 s41, s40, {RINGW}
    s_lshl_b32 s48, s3, 2
    s_lshr_b32 s44, 0x72106453, s48
    s_and_b32 s44, s44, 7
    s_waitcnt lgkmcnt(0)
    s_barrier
    v_mov_b32 v{WC+1}, 0
    v_mov_b32 v{WC+3}, 0
    v_mov_b32 v{EP+1}, 0
    v_mov_b32 v31, 4
    v_bfe_u32 v{CK}, v20, 4, 1
    v_lshlrev_b32 v{CK}, 6, v{CK}
    v_xor_b32 v{CK}, v{CK}, v23
    ; column c = l&31, h = l>>5; r = (c3 c2 c4); i = c&3
    v_bfe_u32 v102, v20, 2, 2
    v_bfe_u32 v103, v20, 4, 1
    v_lshl_or_b32 v102, v102, 1, v103
    v_and_b32 v103, 3, v20
    v_lshl_or_b32 v{LE}, v102, 2, v103
    v_lshlrev_b32 v{LE}, 2, v{LE}
    v_lshrrev_b32 v{LD}, 3, v20
    v_lshlrev_b32 v{LD}, 4, v{LD}
    s_cmp_ge_u32 s44, 3
    s_cselect_b32 s49, 0x7c, 0x3c
    s_cmp_eq_u32 s44, 0
    s_cselect_b32 s49, 0x1c, s49
    s_mul_i32 s48, s44, {GS}
    v_and_b32 v189, s49, v{LD}
    v_and_b32 v190, s49, v{LE}
    v_add_u32 v189, s48, v189
    v_add_u32 v190, s48, v190
    v_add_u32 v{LE}, s48, v{LE}
    v_add_u32 v{LD}, s48, v{LD}
    v_and_b32 v122, 32, v20
    v_lshlrev_b32 v122, 1, v122
    v_add_u32 v122, {L_OWN}, v122
    s_add_u32 s49, s49, 4
    s_ff1_i32_b32 s54, s49
    s_sub_u32 s54, s54, 2
    s_lshr_b32 s37, 1024, s54
    v_lshrrev_b32 v188, s54, v20
    v_bfe_u32 v191, v20, 0, s54
    v_lshl_add_u32 v191, v191, 2, s48
    s_lshl_b32 s55, s49, 2
    v_mad_u32_u24 v{OF}, v188, s55, v191
    v_add_u32 v{OF+1}, s49, v{OF}
    v_add_u32 v{OF+2}, s49, v{OF+1}
    v_add_u32 v{OF+3}, s49, v{OF+2}
    v_lshlrev_b32 v188, 4, v188
    v_mul_u32_u24 v{XL}, {BLK}, v103
    v_lshl_add_u32 v{XL}, v102, 7, v{XL}
    v_bfe_u32 v103, v102, 1, 1
    v_lshrrev_b32 v102, 5, v20
    v_xor_b32 v103, v103, v102
    v_lshl_add_u32 v{XL}, v103, 6, v{XL}
    s_mul_i32 s48, s2, {R}
    s_sub_u32 s49, {N}, s48
    s_min_u32 s49, s49, {R}
    v_cmp_gt_u32 s[52:53], s49, v21
    v_add_u32 v109, s48, v21
    s_or_b32 s38, s45, s47
    s_cbranch_scc1 K2_SLOWLOAD
    """)
    for i in range(12, 16): o(f"s_mov_b64 {pm(i)}, 0")
    def ext(i):
        q, j = (i//3, i % 3) if i < 12 else (i-12, 3)
        o(f"v_lshlrev_b32_sdwa v{dl4(i)}, 2, v{meta(q)} dst_sel:DWORD dst_unused:UNUSED_PAD src0_sel:DWORD src1_sel:BYTE_{j}")
    def atom(i): o(f"ds_add_rtn_u32 v{RK+i}, v{dl4(i)}, v31 offset:{L_CNT-4}")
    def cnt(i):
        o(f"s_mov_b64 exec, {pm(i)}"); atom(i)
    def put(sl):
        for i in sl: o(f"s_mov_b64 exec, {pm(i)}\nds_write_b32 v{RK+i}, v{pay(i)}")
        o("s_mov_b64 exec, -1")
    def wload():
        o("s_lshl_b32 s48, s3, 10")
        for i in (2, 0, 1, 3):
            o(f"s_add_u32 m0, s48, {L_WB+8192*i}\ns_movk_i32 s49, {8192*i}")
            o("buffer_load_dwordx4 v24, s[16:19], s49 offen lds")
    def ownload():
        o(f"v_cmp_gt_u32 vcc, {32 if OPT['OWNO'] else 288}, v21")
        for i in range(7):
            o(f"s_add_u32 m0, s50, {L_OWN+4096*i}\ns_add_u32 s49, s28, {4096*i}")
            if i == 6: o("s_or_b64 exec, vcc, 1")
            o(f"buffer_load_dwordx4 v184, s[4:7], s49 offen {OPT['OWNSC']} lds")
        o("s_mov_b64 exec, -1")
    def own67():
        o(f"v_cmp_gt_u32 vcc, {384+32}, v21")
        for i in range(13):
            o(f"s_add_u32 m0, s50, {L_OWN+2048*i}\ns_add_u32 s49, s28, {2048*i}")
            if i == 12: o("s_or_b64 exec, vcc, 1")
            o(f"buffer_load_dwordx4 v184, s[4:7], s49 offen {OPT['OWNSC']} lds")
        o("s_mov_b64 exec, -1")
    def wyoung():
        o("s_and_b32 s48, s3, 3\ns_lshl_b32 s48, s48, 10\nv_and_b32 v107, 0xfff, v24")
        for i in (4, 5, 0, 1, 2, 3, 6, 7):
            o(f"s_add_u32 m0, s48, {L_WB+4096*i}\ns_movk_i32 s49, {4096*i}")
            o("buffer_load_dwordx4 v107, s[16:19], s49 offen lds")
    def count(late):
        for half in ((0, 1), (2, 3)):
            if half == (2, 3) and not OPT["OWN67"] and not OPT["EARLY"]: wload(); late += 4
            for q in half:
                o(f"s_waitcnt vmcnt({3-q+late})")
                if q == 0: o("@SA 1")
                for j in range(3): ext(3*q+j)
                for j in range(3):
                    o(f"v_cmpx_ne_u32 {pm(3*q+j)}, 0, v{dl4(3*q+j)}"); atom(3*q+j)
                o("s_mov_b64 exec, -1")
            if half == (2, 3):
                o(f"""
                v_or3_b32 v102, v{meta(0)}, v{meta(1)}, v{meta(2)}
                v_or_b32 v102, v102, v{meta(3)}
                v_cmp_lt_u32 vcc, 0xffffff, v102
                """)
            if OPT["SPLIT"] or half == (2, 3):
                o("s_waitcnt lgkmcnt(0)")
                put(range(3*half[0], 3*half[0]+6) if OPT["SPLIT"] else range(12))
    if OPT["OWN67"]:
        o("s_cmp_lt_u32 s3, 6\ns_cbranch_scc1 K2_CNT0")
        own67()
        count(15)
        o("s_branch K2_CNT1\nK2_CNT0:")
    if OPT["EARLY"]:
        o("s_cmp_lt_u32 s3, 4\ns_cbranch_scc1 K2_CNT0")
        wyoung(); ownload()
        count(17)
        o("s_branch K2_CNT1\nK2_CNT0:")
    count(2)
    o("K2_CNT1:")
    o(f"""
    s_cbranch_vccnz K2_X3
K2_COUNTED:
@SA 11
    s_cmp_ge_u32 s3, 4
    s_cbranch_scc1 K2_YOUNG
    """)
    if OPT["OWNO"]: ownload()
    o(f"""
    s_waitcnt lgkmcnt(0)
    s_barrier
@SA 2
    ds_read_b32 v111, v30 offset:{L_CNT}
    v_mov_b32 v107, {L_LG+36}
    v_mov_b32 v108, 1
    s_waitcnt lgkmcnt(0)
    v_sub_u32 v111, v111, v187
    v_cmp_lt_u32 vcc, s36, v111
    v_min_u32 v111, s36, v111
    v_sub_u32 v112, 252, v111
    s_mov_b64 exec, s[52:53]
    ds_add_rtn_u32 v113, v112, v108 offset:{L_HIST}
    s_and_b64 exec, exec, vcc
    ds_write_b32 v107, v107
    s_mov_b64 exec, -1
    s_waitcnt lgkmcnt(0)
    s_barrier
    ds_read_b32 v114, v28 offset:{L_HIST}
    s_waitcnt lgkmcnt(0)
    v_mov_b32 v115, v114
    """)
    scan(o, 114)
    o(f"""
    v_sub_u32 v114, v114, v115
    ds_bpermute_b32 v114, v112, v114
    v_mov_b32 v118, 128
    s_movk_i32 s48, {GS}
    s_waitcnt lgkmcnt(0)
    v_add_u32 v114, v114, v113
    v_add_u32 v115, 56, v114
    v_lshrrev_b32 v116, 5, v115
    v_and_b32 v117, 31, v115
    v_add_u32 v115, 8, v114
    v_cmp_gt_u32 vcc, 40, v114
    v_cmp_gt_u32 s[54:55], 8, v114
    v_lshrrev_b32 v119, 4, v115
    v_and_b32 v120, 15, v115
    v_cndmask_b32 v116, v116, v119, vcc
    v_cndmask_b32 v117, v117, v120, vcc
    v_cndmask_b32 v118, v118, 64, vcc
    v_cndmask_b32 v117, v117, v114, s[54:55]
    v_cndmask_b32 v118, v118, 32, s[54:55]
    v_lshlrev_b32 v117, 2, v117
    v_mad_u32_u24 v117, v116, s48, v117
    v_mul_u32_u24 v118, v111, v118
    v_add_u32 v118, 511, v118
    v_lshrrev_b32 v118, 9, v118
    v_lshlrev_b32 v116, 2, v116
    s_mov_b64 exec, s[52:53]
    ds_write_b32 v117, v109
    ds_max_u32 v116, v118 offset:{L_LG}
    s_mov_b64 exec, -1
    s_waitcnt vmcnt({7 if OPT['OWNO'] else 0})
    s_branch K2_B4
K2_YOUNG:
    s_waitcnt lgkmcnt(0)
    s_barrier
@SA 2
    """)
    if not OPT["OWNO"] and not OPT["OWN67"] and not OPT["EARLY"]: ownload()
    o("s_barrier")
    if not OPT["OWN67"]: o(f"s_waitcnt vmcnt({0 if OPT['OWNO'] else 7})")
    def outtlb():
        o(f"""
        v_lshlrev_b32 v107, 12, v20
        v_min_u32 v107, {R*128-4}, v107
        s_mov_b32 m0, {L_CNT}
        s_mov_b64 exec, 0xff
        buffer_load_dword v107, s[20:23], s51 offen lds
        s_mov_b64 exec, -1
        """)
    if OPT["OUTTLB"] and not OPT["OWN67"]: outtlb()
    o(f"""
K2_B4:
    s_cmp_lg_u32 s39, 0
    s_cbranch_scc1 K2_X3PUT
K2_B4B:
    s_mul_i32 s48, s2, {R}
    s_movk_i32 s49, {NMS}
    s_waitcnt lgkmcnt(0)
    s_barrier
@ST 3
    ds_read_b32 v120, v191
    ds_read_b32 v123, v28 offset:{L_LG}
    ds_read_b32 v121, v190
    ds_read_b128 {vr(D0,4)}, v189
    s_waitcnt lgkmcnt(2)
@SB 1
    v_subrev_u32 v120, s48, v120
    v_min_u32 v120, {R}, v120
    v_mad_u32_u24 v120, v120, s49, v188
    v_add_u32 v119, s37, v120
    v_add_u32 v118, s37, v119
    v_cmp_lt_u32 vcc, {LCAP}, v123
    ds_read_b128 {vr(T2,4)}, v120 offset:{L_NM}
    ds_read_b128 {vr(T2+4,4)}, v119 offset:{L_NM}
    ds_read_b128 {vr(T2+8,4)}, v118 offset:{L_NM}
    v_readlane_b32 s43, v123, s44
    s_waitcnt lgkmcnt(4)
    v_subrev_u32 v121, s48, v121
    v_min_u32 v121, {R-1}, v121
    v_lshlrev_b32 v124, 3, v121
    v_and_b32 v124, 0x70, v124
    v_xor_b32 v124, v124, v122
    v_lshl_add_u32 v124, v121, 7, v124
    v_xor_b32 v125, 16, v124
    v_xor_b32 v126, 32, v124
    v_xor_b32 v127, 48, v124
    s_mov_b32 s47, 0
    s_and_b32 s33, vcc_lo, 0x3ff
    s_cbranch_scc1 K2_FLAGS
K2_FLAGSDONE:
    s_lshl_b32 s48, s43, 7
    v_add_u32 v121, s48, v{LD}
    v_mov_b32 v{VT}, v110
    s_mov_b32 m0, s40
    {'s_mov_b32 s76, s43' if DIAG else ''}
    """)
    def build_list():
        for k in range(3):
            for e in range(4):
                o(f"ds_write_b32 v{OF+e}, v{T2+4*k+e} offset:{128+1024*k}")
        o(f"""
        ds_write_b128 v121, {vr(D0,4)} offset:128
        ds_read_b128 {vr(D0,4)}, v{LD} offset:128
        ds_read_b128 {vr(T,4)}, v{LD} offset:256
        ds_read_b128 {vr(T+4,4)}, v{LD} offset:384
        ds_read_b128 {vr(T+8,4)}, v{LD} offset:512
        ds_read_b32 v{EP}, v{LE} offset:128
        """)
    def frags(reg, off):
        for f in range(8): o(f"ds_read_b128 {vr(reg+4*f,4)}, v{VT} offset:{L_WB+off+1024*f}")
    def rowdma(n):
        if n: o(f"s_add_u32 m0, s40, {n*SLOT}")
        for i in range(4): o(f"v_mad_u32_u16 v{D0+i}, v{T+4*(n-1)+i if n else D0+i}, s31, v{CK}")
        for i in range(4): o(dma(i, "PRESC" if n < OPT["PREN"] else "ROWSC"))
    def own_x():
        for s_ in range(4): o(f"ds_read_b128 {vr(X+4*s_,4)}, v{124+s_}")
    def zero():
        if OPT["EPS"]:
            e = struct.unpack("<I", struct.pack("<f", 1e-6))[0]
            o(f"""
            s_mov_b32 s54, 0x{e - (1 << 23):08x}
            s_cmp_ge_u32 s44, 3
            s_cselect_b32 s54, 0x{e:08x}, s54
            s_cmp_eq_u32 s44, 0
            s_cselect_b32 s54, 0x{e - (2 << 23):08x}, s54
            """)
        for i in range(64): o(f"v_mov_b32 v{DEN+i}, {'s54' if OPT['EPS'] and i < 32 else 0}")
    def aprime():
        for s_ in range(4):
            for t in range(2):
                o(mf(AP+16*t, WA+16*t+4*s_, X+4*s_, None if s_ == 0 else AP+16*t))
    o("s_cmp_ge_u32 s3, 4\ns_cbranch_scc1 K2_YPRE")
    o("s_waitcnt lgkmcnt(0)\n@SB 11")
    build_list()
    o("s_waitcnt lgkmcnt(4)\n@SB 2\ns_barrier\n@ST 6")
    if OPT["OWN67"]:
        rowdma(0)
        o("s_waitcnt lgkmcnt(0)")
        rowdma(1)
        if OPT["R3E"]: rowdma(2)
        zero()
        o("s_barrier")
        own_x(); frags(WA, 16384)
        o("s_waitcnt lgkmcnt(8)\ns_barrier")
        frags(WB, 0)
        o("s_waitcnt lgkmcnt(8)")
        aprime()
        frags(WV, 8192)
        if not OPT["R3E"]: rowdma(2)
    else:
        rowdma(0)
        frags(WA, 16384)
        o("s_waitcnt lgkmcnt(8)")
        rowdma(1)
        frags(WB, 0)
        if OPT["R3E"]: rowdma(2)
        frags(WV, 8192)
        zero()
        if OPT["OWNO"]: o(f"s_waitcnt vmcnt({12 if OPT['R3E'] else 8})")
        o("s_barrier")
        own_x()
        o("s_waitcnt lgkmcnt(0)")
        aprime()
        o("s_barrier")
        if not OPT["R3E"]: rowdma(2)
    o("s_branch K2_PRE\nK2_YPRE:")
    o("s_waitcnt lgkmcnt(0)\n@SB 11\n@SB 2\ns_barrier\n@ST 6")
    if OPT["OWN67"]:
        wyoung()
        if OPT["OUTTLB"]: outtlb()
        o("s_mov_b32 m0, s40")
    build_list()
    zero()
    o(f"s_waitcnt vmcnt({OPT['OUTTLB']})\ns_barrier")
    own_x()
    o("s_waitcnt lgkmcnt(0)\ns_barrier")
    if OPT["YD"] == 0: rowdma(0); rowdma(1); rowdma(2)
    frags(WA, 16384)
    frags(WB, 0)
    o("s_waitcnt lgkmcnt(8)")
    aprime()
    frags(WV, 8192)
    if OPT["YD"]: rowdma(0); rowdma(1); rowdma(2)
    o("K2_PRE:")
    for i in range(4): o(f"v_mad_u32_u16 v{D0+i}, v{T+8+i}, s31, v{CK}")
    o(f"""
    v_pk_sub_u16 v{EP}, v{EP}, s32 clamp
    v_add_u32 v{XA}, s40, v{XL}
    v_add_u32 v{LD}, {5*128}, v{LD}
    v_add_u32 v{LE}, {2*128}, v{LE}
    s_cmp_lg_u32 s46, 0
    s_cbranch_scc1 K2_LOADACC
K2_ACCDONE:
    s_mov_b32 m0, s40
    s_add_u32 s42, s40, {SLOT}
    s_mov_b32 s54, {f32(NLOG2E)}
    s_mov_b32 s55, {f32(NLOG2E)}
    """)
    for i in range(16): o(f"v_pk_mul_f32 {vr(AP+2*i,2)}, {vr(AP+2*i,2)}, s[54:55]")
    o(f"""
    s_waitcnt vmcnt(8)
@ST 7
    """)
    for s_ in range(4): o(xread(s_))
    ml = mf_list(0)
    o(ml[0])
    o("s_waitcnt lgkmcnt(0)")
    for i in range(4): o(ml[1+2*i]); o(dma(i))
    for i in range(4): o(ml[2+2*i])
    o(f"""
    {"" if OPT["UNR"] else f"v_add_u32 v{XA}, {SLOT}, v{XA}"}
@ST 8
    s_sub_u32 s43, s43, 1
    s_cbranch_scc1 K2_LOOPEND
    .p2align 4
K2_LOOP:
    """)
    if OPT["UNR"]:
        assert not OPT["OSL"] and not OPT["PRIO"] and not OPT["MO"]
        for u in range(3):
            so = ((u + 1) % 3) * SLOT
            def xr(s_): return f"ds_read_b128 {vr(X+4*s_,4)}, v{XA} offset:{so+16*s_}"
            sl = [[] for _ in range(9)]
            sl[0] = [f"ds_read_b32 v{VT}, v{LE} offset:{128*u}"]
            sl[1] = ["s_waitcnt vmcnt(8)"]
            sl[2] = [xr(0)]
            sl[3] = [f"ds_read_b128 {vr(D0,4)}, v{LD} offset:{128*u}"]
            sl[4] = [xr(1)]
            sl[5] = [f"s_add_u32 m0, s40, {so}" if so else "s_mov_b32 m0, s40"]
            sl[6] = [xr(2)]
            sl[7] = ["s_waitcnt lgkmcnt(2)"]
            sl[8] = [xr(3)]
            phase(o, 0, mf_list(1), sl, [],
                  [f"v_pk_sub_u16 v{EP}, v{VT}, s32 clamp"] + mads(),
                  pk1=(), pk2=["", "", "", "s_waitcnt lgkmcnt(0)"])
            sl = [[] for _ in range(9)]
            for i in range(4): sl[i] = [dma(i)]
            sl[8] = ["s_sub_u32 s43, s43, 1"]
            phase(o, 1, mf_list(0), sl, [f"v_add_u32 v{LE}, 384, v{LE}", f"v_add_u32 v{LD}, 384, v{LD}"] if u == 2 else [], [])
            if u < 2: o(f"s_cbranch_scc1 K2_EXIT{u}")
    else:
        sl = [[] for _ in range(9)]
        sl[0] = [f"ds_read_b32 v{VT}, v{LE}"]
        sl[1] = ["s_waitcnt vmcnt(8)"]
        sl[2] = [xread(0)]
        sl[3] = [f"ds_read_b128 {vr(D0,4)}, v{LD}"]
        sl[4] = [xread(1)]
        sl[5] = ["s_mov_b32 m0, s42"]
        sl[6] = [xread(2)]
        sl[7] = ["s_waitcnt lgkmcnt(2)"]
        sl[8] = [xread(3)]
        def mo(l): return [l[0]] + l[1::2] + l[2::2] if OPT["MO"] else l
        if OPT["MO"]:
            sl = [[] for _ in range(9)]
            sl[0] = [f"ds_read_b32 v{VT}, v{LE}"]
            sl[1] = [f"ds_read_b128 {vr(D0,4)}, v{LD}"]
            sl[2] = ["s_mov_b32 m0, s42"]
            sl[4] = ["s_waitcnt vmcnt(8) lgkmcnt(0)"]
            for i in range(4): sl[5+i] = [xread(i)]
        phase(o, 0, mo(mf_list(1)), sl,
              [f"v_add_u32 v{LE}, 128, v{LE}", f"v_add_u32 v{LD}, 128, v{LD}"],
              [f"v_pk_sub_u16 v{EP}, v{VT}, s32 clamp"] + mads(),
              pk1=(), pk2=ADV + ["s_waitcnt lgkmcnt(0)"])
        sl = [[] for _ in range(9)]
        for i in range(4): sl[i] = [dma(i)]
        if OPT["PRIO"]:
            sl[5] = ["s_cmp_lg_u32 s43, s50"]
            sl[6] = ["s_cbranch_scc1 K2_NOP", "s_setprio 0", "K2_NOP:"]
        sl[8] = ["s_sub_u32 s43, s43, 1"]
        phase(o, 1, mo(mf_list(0)), sl, [f"v_add_u32 v{XA}, s42, v{XL}"], [])
    o(f"""
    s_cbranch_scc0 K2_LOOP
K2_LOOPEND:
@ST 9
    v_mbcnt_lo_u32_b32 v{D0}, -1, 0
    v_mbcnt_hi_u32_b32 v{D0}, -1, v{D0}
    v_lshlrev_b32 v{D0+1}, 4, v{D0}
    v_subrev_u32 v{LE}, 128, v{LE}
    ds_read_b32 v{VT}, v{LE}
    """)
    if OPT["OUTT"]:
        o(f"""
        v_subrev_u32 v{LD}, 512, v{LD}
        ds_read_b128 {vr(AP,4)}, v{LD}
        v_add_u32 v{AP+4}, {"s42" if OPT["OSL"] else "s40"}, v{D0+1}
        v_add_u32 v{AP+5}, {"s42" if OPT["OSL"] else "s40"}, v{XL}
        s_mov_b64 s[54:55], -1
        """)
    for f in range(8):
        o(f"ds_read_b128 {vr(WB+4*f,4)}, v{D0+1} offset:{L_WU+1024*f}")
    o(f"""
    s_mov_b32 s48, 0
    s_cmp_ge_u32 s44, 3
    s_cbranch_scc1 K2_NOCOMB
    s_mov_b32 s48, 8
    s_mov_b32 s55, 0
    """)
    if OPT["EPI"]: o("s_cmp_eq_u32 s33, 0\ns_cbranch_scc1 K2_SPLITEP")
    for i in range(64): o(f"v_add_f32_dpp v{DEN+i}, v{DEN+i}, v{DEN+i} row_ror:8 row_mask:0xf bank_mask:0xf")
    o(f"""
    s_cmp_lg_u32 s44, 0
    s_cbranch_scc1 K2_NOCOMB
    s_mov_b32 s48, 12
    s_mov_b32 s54, 0xffff
    """)
    for i in range(64): o(f"v_add_f32_dpp v{DEN+i}, v{DEN+i}, v{DEN+i} row_ror:4 row_mask:0xf bank_mask:0xf")
    o(f"""
K2_NOCOMB:
    v_and_b32 v{D0+2}, s48, v{D0}
    v_cmp_eq_u32 vcc, 0, v{D0+2}
    v_mov_b32 v{D0+3}, 0xffff
    v_lshrrev_b32 v{D0}, 5, v{D0}
    s_mov_b32 s49, 0xffff0000
    """)
    if OPT["EPI"]:
        for t in (1, 0):
            for i in range(8):
                o(f"v_lshlrev_b32 v{V[t]+2*i}, 16, v{X+8*t+i}")
                o(f"v_and_b32 v{V[t]+2*i+1}, s49, v{X+8*t+i}")
    o(f"""
    s_waitcnt lgkmcnt(0)
    v_cndmask_b32 v{D0+2}, v{D0+3}, v{VT}, vcc
    s_cmp_lg_u32 s33, 0
    s_cbranch_scc1 K2_STOREACC
    s_mov_b32 s52, {f32(1e-6)}
    s_mov_b32 s53, {f32(1e-6)}
    v_lshlrev_b32 v{D0}, 6, v{D0}
    v_lshl_add_u32 v{D0}, v{D0+2}, 7, v{D0}
    """)
    for i in range(0 if OPT["EPS"] else 16): o(f"v_pk_add_f32 {vr(DEN+2*i,2)}, {vr(DEN+2*i,2)}, s[52:53]")
    k = 0
    for s in range(4):
        for t in range(2):
            o(mf(G[t], WB+16*t+4*s, X+4*s, (V[t] if OPT['EPI'] else None) if s == 0 else G[t]))
            n = 3 if (s, t) != (3, 1) else 11
            for i in range(k, k+n): o(f"v_rcp_f32 v{DEN+i}, v{DEN+i}")
            k += n
    o("s_mov_b32 s49, 0xffff0000\ns_nop 0")
    for t in range(2):
        for i in range(8):
            o(f"v_pk_fma_f32 {vr(G[t]+2*i,2)}, {vr(NUM+16*t+2*i,2)}, {vr(DEN+16*t+2*i,2)}, {vr(G[t]+2*i,2)}")
    for t in range(2):
        for i in range(8):
            if OPT["EPI"]:
                o(f"v_max_f32 v{G[t]+2*i}, v{V[t]+2*i}, v{G[t]+2*i}")
                o(f"v_max_f32 v{G[t]+2*i+1}, v{V[t]+2*i+1}, v{G[t]+2*i+1}")
            else:
                o(f"v_lshlrev_b32 v{V[t]+2*i}, 16, v{X+8*t+i}")
                o(f"v_and_b32 v{V[t]+2*i+1}, s49, v{X+8*t+i}")
                o(f"v_max_f32 v{G[t]+2*i}, 0, v{G[t]+2*i}")
                o(f"v_max_f32 v{G[t]+2*i+1}, 0, v{G[t]+2*i+1}")
                o(f"v_pk_add_f32 {vr(G[t]+2*i,2)}, {vr(G[t]+2*i,2)}, {vr(V[t]+2*i,2)}")
            o(f"v_cvt_pk_bf16_f32 v{DEN+8*t+i}, v{G[t]+2*i}, v{G[t]+2*i+1}")
            if i % 4 == 3:
                j = 2*t + i//4
                if OPT["OUTT"]:
                    if j == 0: o(f"s_waitcnt vmcnt({8*OPT['OSL']})")
                    o(f"ds_write_b128 v{AP+5}, {vr(DEN+4*j,4)}" + (f" offset:{16*j}" if j else ""))
                else: o(f"buffer_store_dwordx4 {vr(DEN+4*j,4)}, v{D0}, s[20:23], 0 offen" + (f" offset:{16*j}" if j else "") + (" " + OPT["OUTSC"] if OPT["OUTSC"] else ""))
    if OPT["OUTT"]:
        o("K2_OUT:\ns_mov_b64 exec, s[54:55]")
        for i in range(4): o(f"ds_read_b128 {vr(AP+8+4*i,4)}, v{AP+4}" + (f" offset:{BLK*i}" if i else ""))
        for i in range(4): o(f"v_mad_u32_u16 v{AP+i}, v{AP+i}, s31, v{CK}")
        for i in range(4):
            o(f"s_waitcnt lgkmcnt({3-i})")
            o(f"buffer_store_dwordx4 {vr(AP+8+4*i,4)}, v{AP+i}, s[20:23], 0 offen" + (" " + OPT["OUTSC"] if OPT["OUTSC"] else ""))
    o("@ST 10\n@RT 5")
    if DIAG: o("s_getreg_b32 s77, hwreg(HW_REG_HW_ID)\ns_getreg_b32 s78, hwreg(HW_REG_XCC_ID)")
    dump(o, 12, 0x4000000, ("s76", "s77", "s78", "s44"))
    if DIAG and OPT["HD"]:
        o(f"""
        s_cmp_lg_u32 s2, 100
        s_cbranch_scc1 K2_END
        s_cmp_lg_u32 s3, {OPT["HD"]}
        s_cbranch_scc1 K2_END
        s_load_dwordx2 s[80:81], s[0:1], 80
        s_add_u32 s100, s100, {0x4800000 + 100*16*256}
        s_addc_u32 s101, s101, 0
        s_load_dwordx8 s[84:91], s[100:101], 0
        s_load_dword s92, s[100:101], 32
        v_mbcnt_lo_u32_b32 v2, -1, 0
        v_lshlrev_b32 v2, 2, v2
        v_subrev_u32 v1, s56, v1
        s_waitcnt lgkmcnt(0)
        s_sub_u32 s92, s92, s84
        s_sub_u32 s86, s86, s84
        s_sub_u32 s89, s89, s88
        s_sub_u32 s93, s96, s88
        s_sub_u32 s94, s74, s88
        v_writelane_b32 v1, s93, 4
        v_writelane_b32 v1, s94, 5
        v_writelane_b32 v1, s86, 12
        v_writelane_b32 v1, s92, 13
        v_writelane_b32 v1, s89, 14
        v_writelane_b32 v1, s76, 15
        s_mov_b64 exec, 0xffff
        global_store_dword v2, v1, s[80:81]
        """)
    o(f"""
K2_END:
    s_endpgm
    """)
    if OPT["UNR"]:
        for u in range(2):
            o(f"K2_EXIT{u}:\nv_add_u32 v{LE}, {128*(u+1)}, v{LE}\nv_add_u32 v{LD}, {128*(u+1)}, v{LD}\ns_branch K2_LOOPEND")
    if OPT["EPI"]:
        assert OPT["OUTT"]
        o(f"""
K2_SPLITEP:
        v_add_u32 v{AP+6}, 32, v{AP+5}
        s_mov_b32 s50, 0xff00ff00
        s_mov_b32 s51, 0xff00ff00
        s_mov_b32 s52, {f32(1e-6)}
        s_mov_b32 s53, {f32(1e-6)}
        s_mov_b32 s49, 0xffff0000
        v_mov_b32_dpp v{AP+5}, v{AP+6} row_ror:8 row_mask:0xf bank_mask:0xc
        """)
        ml = [mf(G[t], WB+16*t+4*s, X+4*s, None if s == 0 else G[t]) for s in range(4) for t in range(2)]
        k = 0
        for b in (DEN, NUM):
            for i in range(16):
                o(f"v_add_f32_dpp v{b+i}, v{b+i}, v{b+i} row_ror:8 row_mask:0xf bank_mask:0x3")
                o(f"v_add_f32_dpp v{b+i}, v{b+16+i}, v{b+16+i} row_ror:8 row_mask:0xf bank_mask:0xc")
                k += 1
                if k == 8: o("s_waitcnt lgkmcnt(0)")
                if k >= 8 and (k - 8) % 3 == 0 and ml: o(ml.pop(0))
        assert not ml
        o("s_cmp_lg_u32 s44, 0\ns_cbranch_scc1 K2_SPLIT2\ns_mov_b32 s54, 0xffff")
        for b in (DEN, NUM):
            for i in range(16):
                o(f"v_add_f32_dpp v{b+i}, v{b+i}, v{b+i} row_shl:4 row_mask:0xf bank_mask:0x5")
        o("K2_SPLIT2:")
        for i in range(8): o(f"v_cndmask_b32 v{DEN+16+i}, v{X+i}, v{X+8+i}, s[50:51]")
        for i in range(0 if OPT["EPS"] else 8): o(f"v_pk_add_f32 {vr(DEN+2*i,2)}, {vr(DEN+2*i,2)}, s[52:53]")
        for i in range(16): o(f"v_rcp_f32 v{DEN+i}, v{DEN+i}")
        for i in range(16): o(f"v_cndmask_b32 v{G[0]+i}, v{G[0]+i}, v{G[1]+i}, s[50:51]")
        for i in range(8): o(f"v_pk_fma_f32 {vr(G[0]+2*i,2)}, {vr(NUM+2*i,2)}, {vr(DEN+2*i,2)}, {vr(G[0]+2*i,2)}")
        for i in range(8):
            o(f"v_lshlrev_b32 v{V[0]+2*i}, 16, v{DEN+16+i}")
            o(f"v_and_b32 v{V[0]+2*i+1}, s49, v{DEN+16+i}")
            o(f"v_max_f32 v{G[0]+2*i}, 0, v{G[0]+2*i}")
            o(f"v_max_f32 v{G[0]+2*i+1}, 0, v{G[0]+2*i+1}")
            o(f"v_pk_add_f32 {vr(G[0]+2*i,2)}, {vr(G[0]+2*i,2)}, {vr(V[0]+2*i,2)}")
            o(f"v_cvt_pk_bf16_f32 v{DEN+i}, v{G[0]+2*i}, v{G[0]+2*i+1}")
            if i % 4 == 3:
                if i == 3: o(f"s_waitcnt vmcnt({8*OPT['OSL']})")
                o(f"ds_write_b128 v{AP+5}, {vr(DEN+4*(i//4),4)}" + (" offset:16" if i == 7 else ""))
        o("s_branch K2_OUT")
    o(f"""
K2_FLAGS:
    s_and_b32 s48, s33, 0xff
    s_cbranch_scc0 K2_PEND
    s_movk_i32 s36, {LCAP*4}
    s_mov_b32 s47, 1
    s_branch K2_AGAIN
K2_PEND:
    s_and_b32 s47, s33, 0x200
    s_cbranch_scc0 K2_FLAGSDONE
    s_cmp_eq_u32 s38, 0
    s_cbranch_scc1 K2_AGAIN
    """)
    for i in range(NS):
        o(f"v_cmp_le_u32 vcc, v{INF+i}, v{RK+i}\ns_and_b64 {pm(i)}, {pm(i)}, vcc")
    def more():
        o(f"""
        v_mov_b32 v107, {L_LG+32}
        s_and_b64 exec, exec, vcc
        ds_write_b32 v107, v107
        s_mov_b64 exec, -1
        """)
    def clamp(sl):
        o(f"s_add_u32 s48, s36, {L_NM-NMS}")
        for i in sl: o(f"v_mad_u32_u24 v{INF+i}, v{dl4(i)}, {NMS//4}, s48")
        o("s_waitcnt lgkmcnt(0)")
        for i in sl: o(f"v_min_u32 v{RK+i}, v{INF+i}, v{RK+i}")
    o(f"""
    s_branch K2_FLAGSDONE
K2_X3:
    s_mov_b32 s39, 1
    v_mul_u32_u24 v102, {OVS}, v22
    v_mov_b32 v104, 0
    """)
    for q in range(4):
        ext(12+q)
        o(f"""
        s_cmp_lg_u32 s47, 0
        s_cbranch_scc1 K2_X3K{q}
        v_cmp_ne_u32 {pm(12+q)}, 0, v{dl4(12+q)}
K2_X3K{q}:
        s_mov_b32 s48, {q*64*8192}
        s_mov_b64 exec, {pm(12+q)}
        buffer_load_dword v{pay(12+q)}, v186, s[12:15], s48 offen
        """)
        atom(12+q)
        o(f"""
        s_mov_b64 exec, -1
        v_cmp_ne_u32 vcc, 0, v{dl4(12+q)}
        s_mov_b32 s48, 0x80808080
        s_and_b32 exec_lo, vcc_lo, s48
        s_and_b32 exec_hi, vcc_hi, s48
        s_cbranch_execz K2_X3N{q}
        s_mov_b32 s48, {OVL+q*64*OVS}
        buffer_load_dword v103, v102, s[12:15], s48 offen
        s_waitcnt vmcnt(0)
        v_or_b32 v104, v104, v103
K2_X3N{q}:
        s_mov_b64 exec, -1
        """)
    o("v_cmp_ne_u32 vcc, 0, v104")
    more()
    clamp(range(12, 16))
    o(f"""
    s_branch K2_COUNTED
K2_X3PUT:
    {'s_waitcnt vmcnt(0)' if OPT['OWN67'] or OPT['EARLY'] else ''}
    """)
    put(range(12, 16))
    o(f"""
    s_branch K2_B4B
K2_SLOWLOAD:
    """)
    if OPT["OWN67"]:
        o("s_cmp_lt_u32 s3, 6\ns_cbranch_scc1 K2_SL0")
        own67()
        o("K2_SL0:")
    elif OPT["EARLY"]:
        o("s_cmp_lt_u32 s3, 4\ns_cbranch_scc1 K2_SL0")
        wyoung(); ownload()
        o("K2_SL0:")
    else: wload()
    o(f"""
    s_waitcnt vmcnt(0)
    s_cmp_lg_u32 s45, 0
    s_cbranch_scc1 K2_CHUNK
    """)
    for i in range(12): ext(i)
    for i in range(12): cnt(i)
    o("s_mov_b64 exec, -1")
    clamp(range(12))
    put(range(12))
    o(f"""
    s_branch K2_X3
K2_CHUNK:
    s_sub_u32 s48, s45, 16
    s_lshl_b32 s49, s48, 3
    v_mul_u32_u24 v102, {OVS}, v22
    v_add_u32 v102, {OVL}, v102
    v_lshrrev_b32 v105, 3, v23
    v_add_u32 v105, s48, v105
    v_add_u32 v106, 1, v105
    v_or_b32 v107, 28, v28
    v_mov_b32 v104, 0
    """)
    for q in range(4):
        o(f"""
        ds_bpermute_b32 v108, v107, v{meta(q)}
        v_mov_b32 v{QC+q}, 0
        v_add3_u32 v103, v102, v23, s49
        s_waitcnt lgkmcnt(0)
        v_cmp_lt_u32 vcc, 0xffffff, v108
        s_mov_b64 exec, vcc
        buffer_load_dword v{QC+q}, v102, s[12:15], 0 offen
        buffer_load_dwordx4 {vr(INF+4*q,4)}, v103, s[12:15], 0 offen offset:16
        s_waitcnt vmcnt(0)
        s_mov_b64 exec, -1
        v_max_u32 v104, v104, v{QC+q}
        v_add_u32 v102, {64*OVS}, v102
        """)
    o(f"""
    s_cmp_lg_u32 s47, 0
    s_cbranch_scc1 K2_CKEEP
    """)
    for q in range(4):
        o(f"s_mov_b64 {pm(3*q+2)}, 0\ns_mov_b64 {pm(12+q)}, 0")
        for k in range(2):
            o(f"""
            v_cmp_lt_u32 vcc, v{105+k}, v{QC+q}
            v_cmp_eq_u32_sdwa {pm(3*q+k)}, s2, v{INF+4*q+2*k+1} src0_sel:DWORD src1_sel:WORD_1
            s_and_b64 {pm(3*q+k)}, {pm(3*q+k)}, vcc
            """)
    o("K2_CKEEP:")
    sl = [3*q+k for q in range(4) for k in range(2)]
    for q in range(4):
        for k in range(2):
            o(f"v_mov_b32 v{pay(3*q+k)}, v{INF+4*q+2*k}\nv_and_b32 v{dl4(3*q+k)}, 0xffff, v{INF+4*q+2*k+1}")
    o(f"v_cmp_lt_u32 vcc, s45, v104")
    more()
    for i in sl: cnt(i)
    o("s_mov_b64 exec, -1")
    clamp(sl)
    put(sl)
    o(f"""
    s_branch K2_COUNTED
K2_LOADACC:
    s_lshl_b32 s48, s43, 7
    s_sub_u32 s48, s48, 128
    v_add_u32 v{G[0]}, s48, v{LE}
    ds_read_b32 v{G[0]}, v{G[0]}
    v_mbcnt_lo_u32_b32 v{G[0]+1}, -1, 0
    v_mbcnt_hi_u32_b32 v{G[0]+1}, -1, v{G[0]+1}
    s_cmp_ge_u32 s44, 3
    s_cselect_b32 s48, 0, 8
    s_cmp_eq_u32 s44, 0
    s_cselect_b32 s48, 12, s48
    v_and_b32 v{G[0]+2}, s48, v{G[0]+1}
    v_cmp_eq_u32 vcc, 0, v{G[0]+2}
    v_mov_b32 v{G[0]+3}, 0xffff
    v_lshrrev_b32 v{G[0]+1}, 5, v{G[0]+1}
    v_lshlrev_b32 v{G[0]+1}, 8, v{G[0]+1}
    s_waitcnt lgkmcnt(0)
    v_cndmask_b32 v{G[0]}, v{G[0]+3}, v{G[0]}, vcc
    v_lshl_add_u32 v{G[0]}, v{G[0]}, 9, v{G[0]+1}
    """)
    for j in range(16):
        o(f"buffer_load_dwordx4 {vr(DEN+4*j,4)}, v{G[0]}, s[24:27], 0 offen offset:{16*j}")
    o(f"""
    s_waitcnt vmcnt(0)
    s_branch K2_ACCDONE
K2_STOREACC:
    v_lshlrev_b32 v{D0}, 8, v{D0}
    v_lshl_add_u32 v{D0}, v{D0+2}, 9, v{D0}
    """)
    for j in range(16):
        o(f"buffer_store_dwordx4 {vr(DEN+4*j,4)}, v{D0}, s[24:27], 0 offen offset:{16*j}")
    o(f"""
    s_mov_b32 s46, 1
    s_cmp_lg_u32 s47, 0
    s_cselect_b32 s48, 0, 16
    s_add_u32 s45, s45, s48
K2_AGAIN:
    s_waitcnt vmcnt(0) lgkmcnt(0)
    s_barrier
    """)
    celladdr()
    cellissue(first)
    o("s_branch K2_RESTART")
    return o.text()

def desc(name, nv, ns):
    return f"""
.p2align 6
.amdhsa_kernel {name}
  .amdhsa_next_free_vgpr {nv}
  .amdhsa_next_free_sgpr {ns}
  .amdhsa_accum_offset {(nv+3)//4*4}
  .amdhsa_group_segment_fixed_size 0
  .amdhsa_kernarg_size 96
  .amdhsa_user_sgpr_count 2
  .amdhsa_user_sgpr_kernarg_segment_ptr 1
  .amdhsa_system_sgpr_workgroup_id_x 1
  .amdhsa_float_denorm_mode_32 3
.end_amdhsa_kernel
"""

def build():
    hdr = open(f"cdna_kernels/{NAME}.s.ref").read().split("; Override launch geometry")[0]
    s = hdr
    s += f"; @launch kernel=part_kernel grid=({P+5},1,1) block=({896 if OPT['K1TLB'] else 832},1,1) lds={LDS1}\n"
    s += f"; @launch kernel=main_kernel grid=({NB},1,1) block=(512,1,1) lds={LDS2}\n"
    s += '.amdgcn_target "amdgcn-amd-amdhsa--gfx950"\n.text\n'
    for nm, body in (("part_kernel", k1()), ("main_kernel", k2())):
        s += f".globl {nm}\n.p2align 8\n.type {nm},@function\n" + body
    s += '.section .rodata,"a"\n' + desc("part_kernel", 52, 102 if DIAG else 24) + desc("main_kernel", 256, 102 if DIAG else 96)
    return s

if __name__ == "__main__":
    if "--diag" in sys.argv:
        sys.argv.remove("--diag"); DIAG = True
    out = sys.argv[1] if len(sys.argv) > 1 else f"cdna_kernels/{NAME}.s"
    open(out, "w").write(build())
```
